```python
import torch

def _softmax(x, axis=-1):
    return torch.softmax(x, dim=axis)
def _gelu(x):
    return torch.nn.functional.gelu(x, approximate="tanh")
def _silu(x):
    return torch.nn.functional.silu(x)
def _sigmoid(x):
    return torch.sigmoid(x)
def _layernorm(x, axis=-1, eps=1e-5):
    m = x.mean(dim=axis, keepdim=True)
    v = x.var(dim=axis, keepdim=True, unbiased=False)
    return (x - m) / torch.sqrt(v + eps)
def _scatter_add(tgt, idx, src, axis=0):
    return tgt.clone().index_add_(axis, idx, src)
def _segment_sum(src, seg, n):
    out = torch.zeros((n,) + src.shape[1:], dtype=src.dtype)
    return out.index_add_(0, seg, src)
def _pad(x, pw):
    flat = tuple(v for pair in reversed(pw) for v in pair)
    return torch.nn.functional.pad(x, flat)

kernel_name = 'standalone__linear_kernel_rfa__prompt'

def setup_inputs():

    _w = (lambda a: (lambda t: t.to(torch.bfloat16) if t.is_floating_point() else t)(torch.as_tensor(a)))
    B, H, Sq, Sk, D, M = 1, 32, 2048, 2048, 128, 16
    return {
        "q": _w((lambda *s: torch.randn(*s, dtype=torch.bfloat16) * 0.2)(B, H, Sq, D)),
        "k": _w((lambda *s: torch.randn(*s, dtype=torch.bfloat16) * 1.6)(B, H, Sk, D)),
        "v": _w((lambda *s: torch.randn(*s, dtype=torch.bfloat16) * 1.6)(B, H, Sk, D)),
        "omega": _w((lambda *s: torch.randn(*s, dtype=torch.bfloat16) * 1.6)(M, D)),
    }

def reference(q, k, v, omega):
    d = q.shape[-1]
    m = omega.shape[0]
    scale = float(d) ** -0.25
    qs = q * scale
    ks = k * scale
    q_proj = torch.einsum("bhsd,md->bhsm", qs, omega)
    k_proj = torch.einsum("bhsd,md->bhsm", ks, omega)
    q_sq = 0.5 * torch.einsum("bhsd,bhsd->bhs", qs, qs)[..., None]
    k_sq = 0.5 * torch.einsum("bhsd,bhsd->bhs", ks, ks)[..., None]
    inv_sqrt_m = float(m) ** -0.5
    phi_q = torch.exp(q_proj - q_sq) * inv_sqrt_m + 1e-6
    phi_k = torch.exp(k_proj - k_sq) * inv_sqrt_m + 1e-6
    kv = torch.einsum("bhsm,bhsd->bhmd", phi_k, v)
    z  = torch.einsum("bhsm->bhm", phi_k)
    num = torch.einsum("bhqm,bhmd->bhqd", phi_q, kv)
    den = torch.einsum("bhqm,bhm->bhq", phi_q, z)[..., None] + 1e-6
    return num / den
```

```python
import sys, struct

def f2u(x): return struct.unpack('<I', struct.pack('<f', x))[0]

HEADER = """; Kernarg layout for this problem (56 bytes, ptrs only, base s[0:1]):
; @launch grid=(256,1,1) block=(512,1,1) lds={lds}
.amdgcn_target "amdgcn-amd-amdhsa--gfx950"
.text
.globl standalone__linear_kernel_rfa__prompt_kernel
.p2align 8
.type standalone__linear_kernel_rfa__prompt_kernel,@function
standalone__linear_kernel_rfa__prompt_kernel:
"""
FOOTER = """
.section .rodata,"a"
.p2align 6
.amdhsa_kernel standalone__linear_kernel_rfa__prompt_kernel
  .amdhsa_next_free_vgpr {vgpr}
  .amdhsa_next_free_sgpr {sgpr}
  .amdhsa_accum_offset {acc}
  .amdhsa_group_segment_fixed_size 0
  .amdhsa_kernarg_size 56
  .amdhsa_user_sgpr_count 2
  .amdhsa_user_sgpr_kernarg_segment_ptr 1
  .amdhsa_system_sgpr_workgroup_id_x 1
  .amdhsa_float_denorm_mode_32 3
  .amdhsa_float_denorm_mode_16_64 3
.end_amdhsa_kernel
"""

LDS_V, LDS_PHI, LDS_KVT = 0, 65536, 73728
LDS_TOTAL = 77824
WS_Z = 2 << 20
WS_BYTES = 4 << 20
WS_STAMP = 3 << 20

def gen(ld='nt', st='sc1', stamps=False, b0=True, g_late=False, spin=200000):
    L = []
    def A(s): L.append("    " + s)
    def C(s): L.append("    ; " + s)
    def LB(s): L.append(s + ":")
    def vr(a, n): return f"v[{a}:{a+n-1}]"
    def sr(a, n): return f"s[{a}:{a+n-1}]"

    SQ, SK, SV, SO, SOM, SWS, SDB = 24, 28, 32, 36, 40, 44, 48
    sBase, sBase2, sW, sH, sP = 52, 53, 54, 55, 56
    sScale, sL2E, sQuart = 58, 60, 62
    sM = [64, 66, 68, 70]
    sHi = 72
    sKVo, sKVo2, sZo, sT, sSpin = 73, 74, 75, 76, 77
    sSt = 80
    vLane, vA_kq, vA_v0, vA_v1, vA_lin, vA_tr, vA_phi, vA_kvw = 1, 2, 3, 4, 5, 6, 7, 8
    vA_kvr = 10
    vA_z, vA_o = 9, 14
    vFlag = 16
    vEps = 18
    vNH = 20
    vXA = 22
    vOM = 24
    vK = 40
    vQ = 72
    vT = 104
    vP = 120
    vG = 124
    vPHQ = [vQ, vQ + 16]
    nst = [0]
    def stamp():
        if stamps:
            A(f"s_memrealtime {sr(sSt + 2*nst[0], 2)}")
            nst[0] += 1

    A("s_cmp_ge_u32 s2, 256")
    A("s_cbranch_scc1 L_end")
    stamp()
    A("s_load_dwordx8 s[4:11], s[0:1], 0")
    A("s_load_dwordx4 s[12:15], s[0:1], 32")
    A("s_load_dwordx2 s[16:17], s[0:1], 48")
    A(f"v_lshrrev_b32 v{vT}, 6, v0")
    A(f"v_and_b32 v{vLane}, 63, v0")
    A(f"v_readfirstlane_b32 s{sW}, v{vT}")
    A(f"s_and_b32 s{sH}, s2, 31")
    A(f"s_lshr_b32 s{sP}, s2, 5")
    vc, vg = vT + 1, vT + 2
    A(f"v_and_b32 v{vc}, 15, v{vLane}")
    A(f"v_lshrrev_b32 v{vg}, 4, v{vLane}")
    A(f"v_lshlrev_b32 v{vA_lin}, 4, v{vLane}")
    A(f"v_lshlrev_b32 v{vT+3}, 4, v{vg}")
    A(f"v_lshl_add_u32 v{vA_kq}, v{vc}, 8, v{vT+3}")
    A(f"s_lshl_b32 s{sBase}, s{sH}, 19")
    A(f"s_lshl_b32 s{sT}, s{sP}, 16")
    A(f"s_add_u32 s{sBase}, s{sBase}, s{sT}")
    A(f"s_lshl_b32 s{sT}, s{sW}, 13")
    A(f"s_add_u32 s{sBase}, s{sBase}, s{sT}")
    A(f"s_add_u32 s{sBase2}, s{sBase}, 4096")
    A(f"s_lshl_b32 s{sKVo}, s{sH}, 16")
    A(f"s_add_u32 s{sKVo}, s{sKVo}, s{sT}")
    A(f"s_add_u32 s{sKVo2}, s{sKVo}, 4096")
    A(f"s_lshl_b32 s{sZo}, s{sH}, 9")
    A(f"s_add_u32 s{sZo}, s{sZo}, {WS_Z}")
    A("s_waitcnt lgkmcnt(0)")
    def srd(d, b, n):
        A(f"s_mov_b32 s{d}, s{b}"); A(f"s_mov_b32 s{d+1}, s{b+1}")
        A(f"s_mov_b32 s{d+2}, {n}"); A(f"s_mov_b32 s{d+3}, 0x20000")
    srd(SOM, 10, 4096); srd(SK, 6, 1 << 24); srd(SWS, 16, WS_BYTES); srd(SDB, 14, 256)
    A(f"s_cmp_lg_u32 s{sW}, 0")
    A("s_cbranch_scc1 L_noclear")
    for i in range(4): A(f"v_mov_b32 v{vT+4+i}, -1")
    A(f"s_lshl_b32 s{sT}, s{sP}, 10")
    A(f"s_add_u32 s{sT}, s{sT}, s{sKVo}")
    for w in range(8):
        A(f"buffer_store_dwordx4 {vr(vT+4,4)}, v{vA_lin}, {sr(SWS,4)}, s{sT} offen sc1")
        if w < 7: A(f"s_add_u32 s{sT}, s{sT}, 8192")
    A(f"s_lshl_b32 s{sT}, s{sP}, 6")
    A(f"s_add_u32 s{sT}, s{sT}, s{sZo}")
    A("s_mov_b64 exec, 15")
    A(f"buffer_store_dwordx4 {vr(vT+4,4)}, v{vA_lin}, {sr(SWS,4)}, s{sT} offen sc1")
    A("s_mov_b64 exec, 1")
    A(f"s_lshl_b32 s{sT}, s{sH}, 3")
    A(f"s_add_u32 s{sT}, s{sT}, s{sP}")
    A(f"v_mov_b32 v{vT+8}, 1")
    A("s_waitcnt vmcnt(0)")
    A(f"buffer_store_byte v{vT+8}, off, {sr(SDB,4)}, s{sT} sc1")
    A("s_mov_b64 exec, -1")
    LB("L_noclear")
    for s in range(4):
        A(f"buffer_load_dwordx4 {vr(vOM+4*s,4)}, v{vA_kq}, {sr(SOM,4)}, 0 offen offset:{64*s}")
    for t in range(2):
        for s in range(4):
            A(f"buffer_load_dwordx4 {vr(vK+16*t+4*s,4)}, v{vA_kq}, {sr(SK,4)}, s{sBase+t} offen offset:{64*s} {ld}")
    srd(SV, 8, 1 << 24); srd(SQ, 4, 1 << 24); srd(SO, 12, 1 << 24)
    A(f"v_lshlrev_b32 v{vT+4}, 1, v{vg}")
    A(f"v_xor_b32 v{vT+4}, v{vT+4}, v{vc}")
    A(f"v_lshlrev_b32 v{vT+4}, 4, v{vT+4}")
    A(f"v_lshl_add_u32 v{vA_v0}, v{vg}, 8, v{vT+4}")
    A(f"v_xor_b32 v{vA_v1}, 128, v{vA_v0}")
    A(f"s_lshl_b32 s{sT}, s{sW}, 13")
    if b0: A("s_barrier")
    for i in range(8):
        if i % 4 == 0:
            A(f"s_add_u32 m0, s{sT}, {LDS_V + (i//4)*4096}")
            A("s_nop 0")
        A(f"buffer_load_dwordx4 v{vA_v0 + (i&1)}, {sr(SV,4)}, s{sBase + i//4} offen offset:{(i%4)*1024} {ld} lds")
    stamp()
    sc = f2u(128.0 ** -0.25)
    A(f"s_mov_b32 s{sScale}, {sc:#x}"); A(f"s_mov_b32 s{sScale+1}, {sc:#x}")
    l2e = f2u(1.4426950408889634)
    A(f"s_mov_b32 s{sL2E}, {l2e:#x}"); A(f"s_mov_b32 s{sL2E+1}, {l2e:#x}")
    A(f"s_mov_b32 s{sQuart}, {f2u(0.25):#x}"); A(f"s_mov_b32 s{sQuart+1}, {f2u(0.25):#x}")
    for r in range(4):
        A(f"s_mov_b32 s{sM[r]}, {(1<<r)|(1<<(20+r)):#x}")
        A(f"s_mov_b32 s{sM[r]+1}, {(1<<(8+r))|(1<<(28+r)):#x}")
    A(f"s_mov_b32 s{sHi}, 0xffff0000")
    A(f"v_mov_b32 v{vEps}, {f2u(1e-6):#x}"); A(f"v_mov_b32 v{vEps+1}, {f2u(1e-6):#x}")
    A(f"v_mov_b32 v{vNH}, 0xbf00bf00"); A(f"v_mov_b32 v{vNH+1}, 0xbf00bf00")
    A(f"v_mov_b32 v{vXA+1}, 0")
    A(f"v_add_u32 v{vA_phi}, {LDS_PHI}, v{vA_lin}")
    A(f"v_lshrrev_b32 v{vT+4}, 2, v{vc}")
    A(f"v_lshl_add_u32 v{vT+4}, v{vg}, 2, v{vT+4}")
    A(f"v_and_b32 v{vT+5}, 7, v{vT+4}")
    A(f"v_xor_b32 v{vT+5}, s{sW}, v{vT+5}")
    A(f"v_lshlrev_b32 v{vT+5}, 5, v{vT+5}")
    A(f"v_lshl_add_u32 v{vT+5}, v{vT+4}, 8, v{vT+5}")
    A(f"v_and_b32 v{vT+6}, 3, v{vc}")
    A(f"v_lshl_add_u32 v{vA_tr}, v{vT+6}, 3, v{vT+5}")
    A(f"s_lshr_b32 s{sT}, s{sW}, 1")
    A(f"v_bfe_u32 v{vT+4}, v{vc}, 1, 2")
    A(f"v_xor_b32 v{vT+4}, s{sT}, v{vT+4}")
    A(f"v_lshlrev_b32 v{vT+4}, 4, v{vT+4}")
    A(f"v_and_b32 v{vT+5}, 1, v{vc}")
    A(f"v_lshl_add_u32 v{vT+4}, v{vT+5}, 3, v{vT+4}")
    A(f"v_lshrrev_b32 v{vT+5}, 3, v{vc}")
    A(f"v_lshl_add_u32 v{vT+4}, v{vT+5}, 6, v{vT+4}")
    A(f"v_lshl_add_u32 v{vT+4}, v{vg}, 10, v{vT+4}")
    A(f"s_lshl_b32 s{sT}, s{sW}, 7")
    A(f"s_add_u32 s{sT}, s{sT}, {LDS_KVT}")
    A(f"v_add_u32 v{vA_kvw}, s{sT}, v{vT+4}")
    A(f"v_lshrrev_b32 v{vT+4}, 2, v{vc}")
    A(f"v_lshlrev_b32 v{vT+4}, 4, v{vT+4}")
    A(f"v_lshl_add_u32 v{vT+4}, v{vc}, 6, v{vT+4}")
    A(f"v_lshl_add_u32 v{vT+4}, v{vg}, 10, v{vT+4}")
    A(f"v_add_u32 v{vA_kvr}, {LDS_KVT}, v{vT+4}")
    for k in range(1, 4):
        A(f"v_xor_b32 v{vA_kvr+k}, {16*k}, v{vA_kvr}")
    A(f"v_and_b32 v{vT+4}, 7, v{vc}")
    A(f"v_lshlrev_b32 v{vT+5}, 4, v{vg}")
    A(f"v_lshl_add_u32 v{vA_z}, v{vT+4}, 6, v{vT+5}")
    A(f"v_lshlrev_b32 v{vT+4}, 4, v{vc}")
    A(f"v_lshl_add_u32 v{vA_o}, v{vg}, 10, v{vT+4}")

    def scale4(base):
        for i in range(4):
            A(f"v_lshlrev_b32 v{vT+2*i}, 16, v{base+i}")
            A(f"v_and_b32 v{vT+2*i+1}, s{sHi}, v{base+i}")
        for i in range(4):
            A(f"v_pk_mul_f32 {vr(vT+2*i,2)}, {vr(vT+2*i,2)}, {sr(sScale,2)}")
        for i in range(4):
            A(f"v_cvt_pk_bf16_f32 v{base+i}, v{vT+2*i}, v{vT+2*i+1}")

    def round4(dst, src, t):
        A(f"v_cvt_pk_bf16_f32 v{t}, v{src}, v{src+1}")
        A(f"v_cvt_pk_bf16_f32 v{t+1}, v{src+2}, v{src+3}")
        A(f"v_lshlrev_b32 v{dst}, 16, v{t}")
        A(f"v_and_b32 v{dst+1}, s{sHi}, v{t}")
        A(f"v_lshlrev_b32 v{dst+2}, 16, v{t+1}")
        A(f"v_and_b32 v{dst+3}, s{sHi}, v{t+1}")

    def phi(base, isq, out):
        for s in range(4):
            scale4(base + 4*s)
            if s > 0:
                x = vr(base+4*(s-1), 4); o = vr(vOM+4*(s-1), 4)
                c0 = "0" if s == 1 else vr(vG, 4); c1 = "0" if s == 1 else vr(vP, 4)
                A(f"v_mfma_f32_16x16x32_bf16 {vr(vG,4)}, {x}, {x}, {c0}")
                A(f"v_mfma_f32_16x16x32_bf16 {vr(vP,4)}, {o if isq else x}, {x if isq else o}, {c1}")
        x = vr(base+12, 4); o = vr(vOM+12, 4)
        A("s_nop 1")
        A(f"v_mfma_f32_16x16x32_bf16 {vr(vG,4)}, {x}, {x}, {vr(vG,4)}")
        A(f"v_mfma_f32_16x16x32_bf16 {vr(vP,4)}, {o if isq else x}, {x if isq else o}, {vr(vP,4)}")
        A("s_nop 6")
        A(f"v_cndmask_b32 v{vT}, 0, v{vG}, {sr(sM[0],2)}")
        for r in range(1, 4):
            A(f"v_cndmask_b32 v{vT}, v{vT}, v{vG+r}, {sr(sM[r],2)}")
        A(f"v_cvt_pk_bf16_f32 v{vXA}, v{vT}, v{vXA+1}")
        round4(vT+4, vP, vT+2)
        A("s_nop 1")
        a, b = (vr(vNH,2), vr(vXA,2)) if isq else (vr(vXA,2), vr(vNH,2))
        A(f"v_mfma_f32_16x16x16_bf16 {vr(vP,4)}, {a}, {b}, {vr(vT+4,4)}")
        A("s_nop 7")
        round4(vT+8, vP, vT+2)
        A(f"v_pk_mul_f32 {vr(vT+8,2)}, {vr(vT+8,2)}, {sr(sL2E,2)}")
        A(f"v_pk_mul_f32 {vr(vT+10,2)}, {vr(vT+10,2)}, {sr(sL2E,2)}")
        for i in range(4):
            A(f"v_exp_f32 v{vT+8+i}, v{vT+8+i}")
        A("s_nop 0")
        round4(vT+12, vT+8, vT+2)
        A(f"v_pk_fma_f32 {vr(vT+12,2)}, {vr(vT+12,2)}, {sr(sQuart,2)}, {vr(vEps,2)}")
        A(f"v_pk_fma_f32 {vr(vT+14,2)}, {vr(vT+14,2)}, {sr(sQuart,2)}, {vr(vEps,2)}")
        A(f"v_cvt_pk_bf16_f32 v{out}, v{vT+12}, v{vT+13}")
        A(f"v_cvt_pk_bf16_f32 v{out+1}, v{vT+14}, v{vT+15}")

    A("s_waitcnt vmcnt(12)")
    stamp()
    phi(vK, False, vK)
    A("s_waitcnt vmcnt(8)")
    phi(vK+16, False, vK+2)
    A(f"s_lshl_b32 s{sT}, s{sW}, 10")
    A(f"v_add_u32 v{vT}, s{sT}, v{vA_phi}")
    A(f"ds_write_b128 v{vT}, {vr(vK,4)}")
    A("s_waitcnt lgkmcnt(0)")
    A("s_barrier")
    stamp()
    for b in range(8):
        A(f"ds_read_b128 {vr(vK+4*b,4)}, v{vA_phi} offset:{1024*b}")
    A(f"s_lshl_b32 s{sT}, s{sH}, 3")
    A(f"s_cmp_lg_u32 s{sW}, 0")
    A("s_cbranch_scc1 L_noz")
    A(f"v_mov_b32 v{vT}, 0x3f803f80")
    for i in range(1, 4): A(f"v_mov_b32 v{vT+i}, v{vT}")
    A("s_nop 0")
    A("s_waitcnt lgkmcnt(0)")
    for b in range(8):
        A(f"v_mfma_f32_16x16x32_bf16 {vr(vP,4)}, {vr(vK+4*b,4)}, {vr(vT,4)}, {'0' if b==0 else vr(vP,4)}")
    A(f"s_lshl_b32 s{sSpin}, s{sP}, 6")
    A(f"s_add_u32 s{sSpin}, s{sSpin}, s{sZo}")
    A(f"v_lshrrev_b32 v{vT+4}, 4, v{vA_lin}")
    A(f"v_and_b32 v{vT+4}, 0x30, v{vT+4}")
    A("s_nop 4")
    for i in range(4): A(f"v_min_u32 v{vP+i}, -2, v{vP+i}")
    A("s_mov_b32 exec_lo, 0x00010001")
    A("s_mov_b32 exec_hi, 0x00010001")
    A(f"buffer_store_dwordx4 {vr(vP,4)}, v{vT+4}, {sr(SWS,4)}, s{sSpin} offen sc1")
    A("s_mov_b64 exec, -1")
    LB("L_noz")
    A(f"buffer_load_dwordx2 {vr(vFlag,2)}, off, {sr(SDB,4)}, s{sT} sc1")
    for s in range(4):
        A(f"buffer_load_dwordx4 {vr(vQ+4*s,4)}, v{vA_kq}, {sr(SQ,4)}, s{sBase} offen offset:{64*s} {ld}")
    A("s_waitcnt vmcnt(4) lgkmcnt(0)")
    A("s_barrier")
    stamp()
    vB = vQ + 16
    def breg(b): return (vQ + 16 + 4*b) if b < 4 else (vT + 4*(b-4))
    for b in range(8):
        A(f"ds_read_b64_tr_b16 {vr(breg(b),2)}, v{vA_tr} offset:{8192*b}")
        A(f"ds_read_b64_tr_b16 {vr(breg(b)+2,2)}, v{vA_tr} offset:{8192*b+4096}")
    for b in range(8):
        A(f"s_waitcnt lgkmcnt({14-2*b})")
        A(f"v_mfma_f32_16x16x32_bf16 {vr(vP,4)}, {vr(vK+4*b,4)}, {vr(breg(b),4)}, {'0' if b==0 else vr(vP,4)}")
    A(f"s_lshl_b32 s{sT}, s{sP}, 10")
    A(f"s_add_u32 s{sT}, s{sT}, s{sKVo}")
    A(f"v_and_b32 v{vFlag}, v{vFlag}, v{vFlag+1}")
    A(f"v_cmp_ne_u32 vcc, 0x01010101, v{vFlag}")
    A("s_nop 3")
    for i in range(4): A(f"v_min_u32 v{vP+i}, -2, v{vP+i}")
    A(f"buffer_store_dwordx4 {vr(vP,4)}, v{vA_lin}, {sr(SWS,4)}, s{sT} offen sc1")
    stamp()
    for s in range(4):
        A(f"buffer_load_dwordx4 {vr(vQ+16+4*s,4)}, v{vA_kq}, {sr(SQ,4)}, s{sBase2} offen offset:{64*s} {ld}")
    A(f"s_mov_b32 s{sSpin}, {spin}")
    A("s_cbranch_vccnz L_flagspin")
    LB("L_flagok")
    vGa = vK
    vZ = vG
    def gather():
        for p in range(8):
            A(f"buffer_load_dwordx4 {vr(vGa+4*p,4)}, v{vA_lin}, {sr(SWS,4)}, s{sKVo + p//4} offen offset:{(p%4)*1024} sc1")
        A(f"buffer_load_dwordx4 {vr(vZg,4)}, v{vA_z}, {sr(SWS,4)}, s{sZo} offen sc1")
    vZg = 128
    if not g_late:
        gather()
        A("s_waitcnt vmcnt(14)")
        phi(vQ, True, vPHQ[0])
    else:
        A("s_waitcnt vmcnt(5)")
        phi(vQ, True, vPHQ[0])
        gather()
    stamp()
    A("s_waitcnt vmcnt(9)")
    phi(vQ+16, True, vPHQ[1])
    stamp()
    LB("L_gwait")
    A("s_waitcnt vmcnt(0)")
    vS = vT
    A(f"v_pk_add_f32 {vr(vS,2)}, {vr(vGa,2)}, {vr(vGa+4,2)}")
    A(f"v_pk_add_f32 {vr(vS+2,2)}, {vr(vGa+2,2)}, {vr(vGa+6,2)}")
    for i in range(4):
        A(f"v_add_f32_dpp v{vT+4+i}, v{vZg+i}, v{vZg+i} quad_perm:[1,0,3,2] row_mask:0xf bank_mask:0xf")
    for p in range(2, 5):
        A(f"v_pk_add_f32 {vr(vS,2)}, {vr(vS,2)}, {vr(vGa+4*p,2)}")
        A(f"v_pk_add_f32 {vr(vS+2,2)}, {vr(vS+2,2)}, {vr(vGa+4*p+2,2)}")
    for i in range(4):
        A(f"v_add_f32_dpp v{vT+8+i}, v{vT+4+i}, v{vT+4+i} quad_perm:[2,3,0,1] row_mask:0xf bank_mask:0xf")
    for p in range(5, 8):
        A(f"v_pk_add_f32 {vr(vS,2)}, {vr(vS,2)}, {vr(vGa+4*p,2)}")
        A(f"v_pk_add_f32 {vr(vS+2,2)}, {vr(vS+2,2)}, {vr(vGa+4*p+2,2)}")
    for i in range(4):
        A(f"v_add_f32_dpp v{vT+4+i}, v{vT+8+i}, v{vT+8+i} row_half_mirror row_mask:0xf bank_mask:0xf")
    A(f"v_pk_add_f32 {vr(vT+8,2)}, {vr(vS,2)}, {vr(vS+2,2)}")
    A(f"v_pk_add_f32 {vr(vT+10,2)}, {vr(vT+4,2)}, {vr(vT+6,2)}")
    A(f"v_pk_add_f32 {vr(vT+8,2)}, {vr(vT+8,2)}, {vr(vT+10,2)}")
    A(f"v_cvt_pk_bf16_f32 v{vT+12}, v{vS}, v{vS+1}")
    A(f"v_cmp_u_f32 vcc, v{vT+8}, v{vT+9}")
    A(f"v_cvt_pk_bf16_f32 v{vT+13}, v{vS+2}, v{vS+3}")
    A("s_cbranch_vccnz L_gcheck")
    LB("L_gok")
    stamp()
    A(f"ds_write_b64 v{vA_kvw}, {vr(vT+12,2)}")
    vZB = vXA
    A(f"v_cvt_pk_bf16_f32 v{vZB}, v{vT+4}, v{vT+5}")
    A(f"v_cvt_pk_bf16_f32 v{vZB+1}, v{vT+6}, v{vT+7}")
    A("s_waitcnt lgkmcnt(0)")
    A("s_barrier")
    vKVB = vOM
    for k in range(4):
        A(f"ds_read_b128 {vr(vKVB+4*k,4)}, v{vA_kvr+k}")
    vD = [vP, vG]
    for t in range(2):
        A(f"v_mfma_f32_16x16x16_bf16 {vr(vD[t],4)}, {vr(vPHQ[t],2)}, {vr(vZB,2)}, 0")
    vN = [vK, vQ]
    vN[1] = 132
    for k in range(4):
        A(f"s_waitcnt lgkmcnt({3-k})")
        for j in range(2):
            dd = 2*k + j
            A(f"v_mfma_f32_16x16x16_bf16 {vr(vN[0]+4*dd,4)}, {vr(vPHQ[0],2)}, {vr(vKVB+2*dd,2)}, 0")
    for dd in range(8):
        A(f"v_mfma_f32_16x16x16_bf16 {vr(vN[1]+4*dd,4)}, {vr(vPHQ[1],2)}, {vr(vKVB+2*dd,2)}, 0")
    for t in range(2):
        round4(vD[t], vD[t], vT)
        A(f"v_pk_add_f32 {vr(vD[t],2)}, {vr(vD[t],2)}, {vr(vEps,2)}")
        A(f"v_pk_add_f32 {vr(vD[t]+2,2)}, {vr(vD[t]+2,2)}, {vr(vEps,2)}")
        round4(vD[t], vD[t], vT)
        for i in range(4): A(f"v_rcp_f32 v{vD[t]+i}, v{vD[t]+i}")
    vO = [vQ+4, vQ+8, vQ+20, vQ+24]
    n = 0
    for t in range(2):
        for r in range(4):
            o = vO[n % 4]; n += 1
            for j in range(4):
                A(f"v_cvt_pk_bf16_f32 v{vT+8+j}, v{vN[t]+8*j+r}, v{vN[t]+8*j+4+r}")
            for j in range(4):
                A(f"v_lshlrev_b32 v{vT+2*j}, 16, v{vT+8+j}")
                A(f"v_and_b32 v{vT+2*j+1}, s{sHi}, v{vT+8+j}")
            pr = vD[t] + (r & ~1)
            sel = "op_sel:[0,1] op_sel_hi:[1,1]" if (r & 1) else "op_sel:[0,0] op_sel_hi:[1,0]"
            for j in range(4):
                A(f"v_pk_mul_f32 {vr(vT+2*j,2)}, {vr(vT+2*j,2)}, {vr(pr,2)} {sel}")
            for j in range(4):
                A(f"v_cvt_pk_bf16_f32 v{o+j}, v{vT+2*j}, v{vT+2*j+1}")
            A(f"buffer_store_dwordx4 {vr(o,4)}, v{vA_o}, {sr(SO,4)}, s{sBase+t} offen offset:{256*r} {st}")
    if stamps:
        stamp()
        A("s_waitcnt vmcnt(0)")
        stamp()
        A("s_waitcnt lgkmcnt(0)")
        assert nst[0] <= 12
        for i in range(12):
            A(f"v_mov_b32 v{vK+i}, s{sSt+2*i}" if i < nst[0] else f"v_mov_b32 v{vK+i}, s{sSpin}")
        A(f"s_lshl_b32 s{sT}, s2, 3")
        A(f"s_add_u32 s{sT}, s{sT}, s{sW}")
        A(f"s_mul_i32 s{sT}, s{sT}, 48")
        A(f"s_add_u32 s{sT}, s{sT}, {WS_STAMP}")
        A("s_mov_b64 exec, 1")
        for i in range(3):
            A(f"buffer_store_dwordx4 {vr(vK+4*i,4)}, off, {sr(SWS,4)}, s{sT} offset:{16*i}")
    LB("L_end")
    A("s_endpgm")
    LB("L_flagspin")
    A(f"s_lshl_b32 s{sT}, s{sH}, 3")
    A(f"buffer_load_dwordx2 {vr(vFlag,2)}, off, {sr(SDB,4)}, s{sT} sc1")
    A(f"s_sub_u32 s{sSpin}, s{sSpin}, 1")
    A("s_cbranch_scc1 L_flagok")
    A("s_waitcnt vmcnt(0)")
    A(f"v_and_b32 v{vFlag}, v{vFlag}, v{vFlag+1}")
    A(f"v_cmp_ne_u32 vcc, 0x01010101, v{vFlag}")
    A("s_cbranch_vccnz L_flagspin")
    A("s_branch L_flagok")
    LB("L_gcheck")
    A(f"v_max3_u32 v{vT+14}, v{vZg}, v{vZg+1}, v{vZg+2}")
    A(f"v_max_u32 v{vT+14}, v{vT+14}, v{vZg+3}")
    for i in range(16):
        A(f"v_max3_u32 v{vT+14}, v{vT+14}, v{vGa+2*i}, v{vGa+2*i+1}")
    A(f"v_cmp_eq_u32 vcc, -1, v{vT+14}")
    A("s_cbranch_vccz L_gok")
    A(f"s_sub_u32 s{sSpin}, s{sSpin}, 1")
    A("s_cbranch_scc1 L_gok")
    gather()
    A("s_branch L_gwait")
    nv = 164
    return HEADER.format(lds=LDS_TOTAL) + "\n".join(L) + FOOTER.format(vgpr=nv, sgpr=102 if stamps else 80, acc=nv)

if __name__ == '__main__':
    import os
    out = sys.argv[1]
    kw = {}
    for a in sys.argv[2:]:
        k, v = a.split('=')
        kw[k] = v if k in ('ld', 'st') else int(v)
    open(out, 'w').write(gen(**kw))
```

```python
import sys, struct

def f2u(x): return struct.unpack('<I', struct.pack('<f', x))[0]

HEADER = """; Kernarg layout for this problem (56 bytes, ptrs only, base s[0:1]):
;   offset  40: d_debug   256 bytes
;   offset  48: d_ws      268435456 bytes workspace
; @launch grid=(256,1,1) block=(576,1,1) lds={lds}
.amdgcn_target "amdgcn-amd-amdhsa--gfx950"
.text
.globl standalone__linear_kernel_rfa__prompt_kernel
.p2align 8
.type standalone__linear_kernel_rfa__prompt_kernel,@function
standalone__linear_kernel_rfa__prompt_kernel:
"""
FOOTER = """
.section .rodata,"a"
.p2align 6
.amdhsa_kernel standalone__linear_kernel_rfa__prompt_kernel
  .amdhsa_next_free_vgpr {vgpr}
  .amdhsa_next_free_sgpr {sgpr}
  .amdhsa_accum_offset {acc}
  .amdhsa_group_segment_fixed_size 0
  .amdhsa_kernarg_size 56
  .amdhsa_user_sgpr_count 2
  .amdhsa_user_sgpr_kernarg_segment_ptr 1
  .amdhsa_system_sgpr_workgroup_id_x 1
  .amdhsa_float_denorm_mode_32 3
  .amdhsa_float_denorm_mode_16_64 3
.end_amdhsa_kernel
"""

LDS_V, LDS_KQ, LDS_PHI, LDS_KVT, LDS_OM, LDS_FLAG = 0, 65536, 131072, 139264, 143360, 147456
LDS_TOTAL = 147520
WS_Z = 2 << 20
WS_BYTES = 4 << 20
WS_STAMP = 3 << 20

def gen(ld='nt', st='sc1', stamps=False, gpos=0, qb_late=0, spin=200000, kqdma=1, sig='byte', vboth=0, b1pos=0, hprio=3, pprio=3, pollpos=2):
    L = []
    def A(s): L.append("    " + s)
    def LB(s): L.append(s + ":")
    def vr(a, n): return f"v[{a}:{a+n-1}]"
    def sr(a, n): return f"s[{a}:{a+n-1}]"

    SQ, SK, SV, SO, SOM, SWS, SDB = 24, 28, 32, 36, 40, 44, 48
    sBase, sBase2, sW, sH, sP = 52, 53, 54, 55, 56
    sScale, sL2E, sQuart = 58, 60, 62
    sM = [64, 66, 68, 70]
    sHi = 72
    sKVo, sKVo2, sZo, sT, sSpin, sM0, sSpin2 = 73, 74, 75, 76, 77, 78, 79
    sSt = 80
    vLane, vA_kq, vA_v0, vA_v1, vA_lin, vA_tr, vA_phi, vA_kvw = 1, 2, 3, 4, 5, 6, 7, 8
    vA_z, vA_kvr, vA_o, vA_phw = 9, 10, 14, 15
    vA_fl = vLane
    vPHQ = 16
    vEps = 18
    vNH = 20
    vXA = 22
    vOM = 24
    vK = 40
    vQ = 72
    vT = 104
    vP = 120
    vG = 124
    vB = 128
    vKVB, vZg, vZB, vD = 128, 144, 148, 152
    vA_kd = 160
    vA_kr = 164
    NV = 168
    nst = [0]
    def stamp():
        if stamps:
            A(f"s_memrealtime {sr(sSt + 2*nst[0], 2)}")
            nst[0] += 1

    A("s_cmp_ge_u32 s2, 256")
    A("s_cbranch_scc1 L_end")
    stamp()
    A("s_load_dwordx8 s[4:11], s[0:1], 0")
    A("s_load_dwordx4 s[12:15], s[0:1], 32")
    A("s_load_dwordx2 s[16:17], s[0:1], 48")
    A(f"v_lshrrev_b32 v{vT}, 6, v0")
    A(f"v_and_b32 v{vLane}, 63, v0")
    A(f"v_readfirstlane_b32 s{sW}, v{vT}")
    A(f"s_and_b32 s{sH}, s2, 31")
    A(f"s_lshr_b32 s{sP}, s2, 5")
    vc, vg = vT + 1, vT + 2
    A(f"v_and_b32 v{vc}, 15, v{vLane}")
    A(f"v_lshrrev_b32 v{vg}, 4, v{vLane}")
    A(f"v_lshlrev_b32 v{vA_lin}, 4, v{vLane}")
    A(f"v_lshlrev_b32 v{vT+3}, 4, v{vg}")
    A(f"v_lshl_add_u32 v{vA_kq}, v{vc}, 8, v{vT+3}")
    if kqdma:
        A(f"v_xor_b32 v{vT+4}, v{vc}, v{vg}")
        A(f"v_lshlrev_b32 v{vT+4}, 4, v{vT+4}")
        A(f"v_lshl_add_u32 v{vA_kd}, v{vg}, 8, v{vT+4}")
        for i in range(1, 4):
            A(f"v_xor_b32 v{vA_kd+i}, {64*i}, v{vA_kd}")
    A(f"s_lshl_b32 s{sBase}, s{sH}, 19")
    A(f"s_lshl_b32 s{sT}, s{sP}, 16")
    A(f"s_add_u32 s{sBase}, s{sBase}, s{sT}")
    A(f"s_lshl_b32 s{sM0}, s{sW}, 13")
    A(f"s_add_u32 s{sBase}, s{sBase}, s{sM0}")
    A(f"s_add_u32 s{sBase2}, s{sBase}, 4096")
    A(f"s_lshl_b32 s{sKVo}, s{sH}, 16")
    A(f"s_lshl_b32 s{sZo}, s{sH}, 9")
    A(f"s_add_u32 s{sZo}, s{sZo}, {WS_Z}")
    A(f"v_add_u32 v{vA_phi}, {LDS_PHI}, v{vA_lin}")
    A(f"v_mov_b32 v{vA_fl}, {LDS_FLAG}")
    A(f"s_cmp_eq_u32 s{sW}, 8")
    A("s_waitcnt lgkmcnt(0)")
    def srd(d, b, n):
        A(f"s_mov_b32 s{d}, s{b}"); A(f"s_mov_b32 s{d+1}, s{b+1}")
        A(f"s_mov_b32 s{d+2}, {n}"); A(f"s_mov_b32 s{d+3}, 0x20000")
    A("s_cbranch_scc1 L_helper")
    srd(SK, 6, 1 << 24)
    def ldkq(dst, S, t):
        if kqdma:
            A(f"s_add_u32 m0, s{sM0}, {LDS_KQ + t*4096}")
            A("s_nop 0")
            for i in range(4):
                A(f"buffer_load_dwordx4 v{vA_kd+i}, {sr(S,4)}, s{sBase+t} offen offset:{i*1024} {ld} lds")
        else:
            for s in range(4):
                A(f"buffer_load_dwordx4 {vr(dst+16*t+4*s,4)}, v{vA_kq}, {sr(S,4)}, s{sBase+t} offen offset:{64*s} {ld}")
    def rdkq(dst, t):
        if kqdma:
            for s in range(4):
                A(f"ds_read_b128 {vr(dst+16*t+4*s,4)}, v{vA_kr+s} offset:{t*4096}")
    def ldv(hf):
        A(f"s_add_u32 m0, s{sM0}, {LDS_V + hf*4096}")
        A("s_nop 0")
        for i in range(4):
            A(f"buffer_load_dwordx4 v{vA_v0 + (i&1)}, {sr(SV,4)}, s{sBase + hf} offen offset:{i*1024} {ld} lds")
    A(f"s_cmp_ge_u32 s{sW}, 4")
    A("s_cbranch_scc1 L_noom")
    srd(SOM, 10, 4096)
    A(f"s_lshl_b32 s{sT}, s{sW}, 10")
    A(f"s_add_u32 m0, s{sT}, {LDS_OM}")
    A(f"s_lshl_b32 s{sT}, s{sW}, 6")
    A(f"buffer_load_dwordx4 v{vA_kq}, {sr(SOM,4)}, s{sT} offen lds")
    LB("L_noom")
    ldkq(vK, SK, 0)
    ldkq(vK, SK, 1)
    srd(SV, 8, 1 << 24); srd(SQ, 4, 1 << 24); srd(SO, 12, 1 << 24); srd(SWS, 16, WS_BYTES)
    A(f"v_lshlrev_b32 v{vT+5}, 1, v{vg}")
    A(f"v_xor_b32 v{vT+5}, v{vT+5}, v{vc}")
    A(f"v_lshlrev_b32 v{vT+5}, 4, v{vT+5}")
    A(f"v_lshl_add_u32 v{vA_v0}, v{vg}, 8, v{vT+5}")
    A(f"v_xor_b32 v{vA_v1}, 128, v{vA_v0}")
    if kqdma:
        A(f"s_add_u32 s{sT}, s{sM0}, {LDS_KQ}")
        A(f"v_lshl_add_u32 v{vT+4}, v{vc}, 8, v{vT+4}")
        A(f"v_add_u32 v{vA_kr}, s{sT}, v{vT+4}")
        for i in range(1, 4):
            A(f"v_xor_b32 v{vA_kr+i}, {64*i}, v{vA_kr}")
    A(f"s_add_u32 s{sKVo}, s{sKVo}, s{sM0}")
    A(f"s_add_u32 s{sKVo2}, s{sKVo}, 4096")
    sc = f2u(128.0 ** -0.25)
    A(f"s_mov_b32 s{sScale}, {sc:#x}"); A(f"s_mov_b32 s{sScale+1}, {sc:#x}")
    l2e = f2u(1.4426950408889634)
    A(f"s_mov_b32 s{sL2E}, {l2e:#x}"); A(f"s_mov_b32 s{sL2E+1}, {l2e:#x}")
    A(f"s_mov_b32 s{sQuart}, {f2u(0.25):#x}"); A(f"s_mov_b32 s{sQuart+1}, {f2u(0.25):#x}")
    for r in range(4):
        A(f"s_mov_b32 s{sM[r]}, {(1<<r)|(1<<(20+r)):#x}")
        A(f"s_mov_b32 s{sM[r]+1}, {(1<<(8+r))|(1<<(28+r)):#x}")
    A(f"s_mov_b32 s{sHi}, 0xffff0000")
    A(f"s_mov_b32 s{sSpin}, {spin}")
    A(f"s_mov_b32 s{sSpin2}, {spin*16}")
    A(f"v_mov_b32 v{vEps}, {f2u(1e-6):#x}"); A(f"v_mov_b32 v{vEps+1}, {f2u(1e-6):#x}")
    A(f"v_mov_b32 v{vNH}, 0xbf00bf00"); A(f"v_mov_b32 v{vNH+1}, 0xbf00bf00")
    A(f"v_mov_b32 v{vXA+1}, 0")
    A(f"s_lshl_b32 s{sT}, s{sW}, 10")
    A(f"v_add_u32 v{vA_phw}, s{sT}, v{vA_phi}")
    A(f"v_lshrrev_b32 v{vT+4}, 2, v{vc}")
    A(f"v_lshl_add_u32 v{vT+4}, v{vg}, 2, v{vT+4}")
    A(f"v_and_b32 v{vT+5}, 7, v{vT+4}")
    A(f"v_xor_b32 v{vT+5}, s{sW}, v{vT+5}")
    A(f"v_lshlrev_b32 v{vT+5}, 5, v{vT+5}")
    A(f"v_lshl_add_u32 v{vT+5}, v{vT+4}, 8, v{vT+5}")
    A(f"v_and_b32 v{vT+6}, 3, v{vc}")
    A(f"v_lshl_add_u32 v{vA_tr}, v{vT+6}, 3, v{vT+5}")
    A(f"s_lshr_b32 s{sT}, s{sW}, 1")
    A(f"v_bfe_u32 v{vT+4}, v{vc}, 1, 2")
    A(f"v_xor_b32 v{vT+4}, s{sT}, v{vT+4}")
    A(f"v_lshlrev_b32 v{vT+4}, 4, v{vT+4}")
    A(f"v_and_b32 v{vT+5}, 1, v{vc}")
    A(f"v_lshl_add_u32 v{vT+4}, v{vT+5}, 3, v{vT+4}")
    A(f"v_lshrrev_b32 v{vT+5}, 3, v{vc}")
    A(f"v_lshl_add_u32 v{vT+4}, v{vT+5}, 6, v{vT+4}")
    A(f"v_lshl_add_u32 v{vT+4}, v{vg}, 10, v{vT+4}")
    A(f"s_lshl_b32 s{sT}, s{sW}, 7")
    A(f"s_add_u32 s{sT}, s{sT}, {LDS_KVT}")
    A(f"v_add_u32 v{vA_kvw}, s{sT}, v{vT+4}")
    A(f"v_lshrrev_b32 v{vT+4}, 2, v{vc}")
    A(f"v_lshlrev_b32 v{vT+4}, 4, v{vT+4}")
    A(f"v_lshl_add_u32 v{vT+4}, v{vc}, 6, v{vT+4}")
    A(f"v_lshl_add_u32 v{vT+4}, v{vg}, 10, v{vT+4}")
    A(f"v_add_u32 v{vA_kvr}, {LDS_KVT}, v{vT+4}")
    for k in range(1, 4):
        A(f"v_xor_b32 v{vA_kvr+k}, {16*k}, v{vA_kvr}")
    A(f"v_and_b32 v{vT+4}, 7, v{vc}")
    A(f"v_lshl_add_u32 v{vA_z}, v{vT+4}, 6, v{vT+3}")
    A(f"v_lshlrev_b32 v{vT+4}, 4, v{vc}")
    A(f"v_lshl_add_u32 v{vA_o}, v{vg}, 10, v{vT+4}")
    A("s_waitcnt vmcnt(8)")
    A("s_barrier")
    stamp()
    ldv(0)
    if vboth: ldv(1)
    for s in range(4):
        A(f"ds_read_b128 {vr(vOM+4*s,4)}, v{vA_phi} offset:{LDS_OM-LDS_PHI+1024*s}")

    def scale4(base):
        for i in range(4):
            A(f"v_lshlrev_b32 v{vT+2*i}, 16, v{base+i}")
            A(f"v_and_b32 v{vT+2*i+1}, s{sHi}, v{base+i}")
        for i in range(4):
            A(f"v_pk_mul_f32 {vr(vT+2*i,2)}, {vr(vT+2*i,2)}, {sr(sScale,2)}")
        for i in range(4):
            A(f"v_cvt_pk_bf16_f32 v{base+i}, v{vT+2*i}, v{vT+2*i+1}")

    def round4(dst, src, t):
        A(f"v_cvt_pk_bf16_f32 v{t}, v{src}, v{src+1}")
        A(f"v_cvt_pk_bf16_f32 v{t+1}, v{src+2}, v{src+3}")
        A(f"v_lshlrev_b32 v{dst}, 16, v{t}")
        A(f"v_and_b32 v{dst+1}, s{sHi}, v{t}")
        A(f"v_lshlrev_b32 v{dst+2}, 16, v{t+1}")
        A(f"v_and_b32 v{dst+3}, s{sHi}, v{t+1}")

    def phi(base, isq, out):
        for s in range(4):
            if kqdma: A(f"s_waitcnt lgkmcnt({3-s})")
            scale4(base + 4*s)
            if s > 0:
                x = vr(base+4*(s-1), 4); o = vr(vOM+4*(s-1), 4)
                c0 = "0" if s == 1 else vr(vG, 4); c1 = "0" if s == 1 else vr(vP, 4)
                A(f"v_mfma_f32_16x16x32_bf16 {vr(vG,4)}, {x}, {x}, {c0}")
                A(f"v_mfma_f32_16x16x32_bf16 {vr(vP,4)}, {o if isq else x}, {x if isq else o}, {c1}")
        x = vr(base+12, 4); o = vr(vOM+12, 4)
        A("s_nop 1")
        A(f"v_mfma_f32_16x16x32_bf16 {vr(vG,4)}, {x}, {x}, {vr(vG,4)}")
        A(f"v_mfma_f32_16x16x32_bf16 {vr(vP,4)}, {o if isq else x}, {x if isq else o}, {vr(vP,4)}")
        A("s_nop 6")
        A(f"v_cndmask_b32 v{vT}, 0, v{vG}, {sr(sM[0],2)}")
        for r in range(1, 4):
            A(f"v_cndmask_b32 v{vT}, v{vT}, v{vG+r}, {sr(sM[r],2)}")
        A(f"v_cvt_pk_bf16_f32 v{vXA}, v{vT}, v{vXA+1}")
        round4(vT+4, vP, vT+2)
        A("s_nop 1")
        a, b = (vr(vNH,2), vr(vXA,2)) if isq else (vr(vXA,2), vr(vNH,2))
        A(f"v_mfma_f32_16x16x16_bf16 {vr(vP,4)}, {a}, {b}, {vr(vT+4,4)}")
        A("s_nop 7")
        round4(vT+8, vP, vT+2)
        A(f"v_pk_mul_f32 {vr(vT+8,2)}, {vr(vT+8,2)}, {sr(sL2E,2)}")
        A(f"v_pk_mul_f32 {vr(vT+10,2)}, {vr(vT+10,2)}, {sr(sL2E,2)}")
        for i in range(4):
            A(f"v_exp_f32 v{vT+8+i}, v{vT+8+i}")
        A("s_nop 0")
        round4(vT+12, vT+8, vT+2)
        A(f"v_pk_fma_f32 {vr(vT+12,2)}, {vr(vT+12,2)}, {sr(sQuart,2)}, {vr(vEps,2)}")
        A(f"v_pk_fma_f32 {vr(vT+14,2)}, {vr(vT+14,2)}, {sr(sQuart,2)}, {vr(vEps,2)}")
        A(f"v_cvt_pk_bf16_f32 v{out}, v{vT+12}, v{vT+13}")
        A(f"v_cvt_pk_bf16_f32 v{out+1}, v{vT+14}, v{vT+15}")

    A(f"s_waitcnt vmcnt({12 if vboth else 8})")
    rdkq(vK, 0)
    if not kqdma: A("s_waitcnt lgkmcnt(0)")
    phi(vK, False, vK)
    if not vboth: ldv(1)
    A("s_waitcnt vmcnt(8)")
    rdkq(vK, 1)
    stamp()
    phi(vK+16, False, vK+2)
    A(f"ds_write_b128 v{vA_phw}, {vr(vK,4)}")
    def b1():
        A("s_waitcnt lgkmcnt(0)")
        A("s_barrier")
        stamp()
        for b in range(8):
            A(f"ds_read_b128 {vr(vK+4*b,4)}, v{vA_phi} offset:{1024*b}")
    if b1pos == 0: b1()
    A("s_waitcnt vmcnt(4)")
    ldkq(vQ, SQ, 0)
    if b1pos == 1: b1()
    A("s_waitcnt vmcnt(4)")
    A("s_waitcnt lgkmcnt(0)")
    if pprio: A(f"s_setprio {pprio}")
    A("s_barrier")
    stamp()
    for b in range(8):
        A(f"ds_read_b64_tr_b16 {vr(vB+4*b,2)}, v{vA_tr} offset:{8192*b}")
        A(f"ds_read_b64_tr_b16 {vr(vB+4*b+2,2)}, v{vA_tr} offset:{8192*b+4096}")
    for b in range(8):
        A(f"s_waitcnt lgkmcnt({14-2*b})")
        A(f"v_mfma_f32_16x16x32_bf16 {vr(vP,4)}, {vr(vK+4*b,4)}, {vr(vB+4*b,4)}, {'0' if b==0 else vr(vP,4)}")
    A(f"s_lshl_b32 s{sT}, s{sP}, 10")
    A(f"s_add_u32 s{sT}, s{sT}, s{sKVo}")
    A("s_nop 5")
    for i in range(4): A(f"v_min_u32 v{vP+i}, -2, v{vP+i}")
    A(f"buffer_store_dwordx4 {vr(vP,4)}, v{vA_lin}, {sr(SWS,4)}, s{sT} offen sc1")
    if pprio: A("s_setprio 0")
    stamp()
    if not qb_late: ldkq(vQ, SQ, 1)
    vGa = vK
    def flagchk():
        LB("L_fl")
        A(f"ds_read_b32 v{vT}, v{vA_fl}")
        A("s_waitcnt lgkmcnt(0)")
        A(f"v_cmp_eq_u32 vcc, 1, v{vT}")
        A("s_cbranch_vccnz L_flok")
        A(f"s_sub_u32 s{sSpin2}, s{sSpin2}, 1")
        A("s_cbranch_scc0 L_fl")
        LB("L_flok")
    def gather():
        for p in range(8):
            A(f"buffer_load_dwordx4 {vr(vGa+4*p,4)}, v{vA_lin}, {sr(SWS,4)}, s{sKVo + p//4} offen offset:{(p%4)*1024} sc1")
        A(f"buffer_load_dwordx4 {vr(vZg,4)}, v{vA_z}, {sr(SWS,4)}, s{sZo} offen sc1")
    A(f"s_waitcnt vmcnt({1 if qb_late else 5})")
    if gpos == 0:
        flagchk()
        gather()
        if qb_late: ldkq(vQ, SQ, 1)
    elif qb_late == 2:
        ldkq(vQ, SQ, 1)
    rdkq(vQ, 0)
    phi(vQ, True, vPHQ)
    if gpos == 1:
        flagchk()
        gather()
        if qb_late == 1: ldkq(vQ, SQ, 1)
    stamp()
    gw = 4 if (qb_late == 1 or (qb_late and gpos == 0)) else 0
    A(f"s_waitcnt vmcnt({gw})")
    LB("L_gsum")
    vS = vT
    A(f"v_pk_add_f32 {vr(vS,2)}, {vr(vGa,2)}, {vr(vGa+4,2)}")
    A(f"v_pk_add_f32 {vr(vS+2,2)}, {vr(vGa+2,2)}, {vr(vGa+6,2)}")
    for i in range(4):
        A(f"v_add_f32_dpp v{vT+4+i}, v{vZg+i}, v{vZg+i} quad_perm:[1,0,3,2] row_mask:0xf bank_mask:0xf")
    for p in range(2, 5):
        A(f"v_pk_add_f32 {vr(vS,2)}, {vr(vS,2)}, {vr(vGa+4*p,2)}")
        A(f"v_pk_add_f32 {vr(vS+2,2)}, {vr(vS+2,2)}, {vr(vGa+4*p+2,2)}")
    for i in range(4):
        A(f"v_add_f32_dpp v{vT+8+i}, v{vT+4+i}, v{vT+4+i} quad_perm:[2,3,0,1] row_mask:0xf bank_mask:0xf")
    for p in range(5, 8):
        A(f"v_pk_add_f32 {vr(vS,2)}, {vr(vS,2)}, {vr(vGa+4*p,2)}")
        A(f"v_pk_add_f32 {vr(vS+2,2)}, {vr(vS+2,2)}, {vr(vGa+4*p+2,2)}")
    for i in range(4):
        A(f"v_add_f32_dpp v{vT+4+i}, v{vT+8+i}, v{vT+8+i} row_half_mirror row_mask:0xf bank_mask:0xf")
    A(f"v_pk_add_f32 {vr(vT+8,2)}, {vr(vS,2)}, {vr(vS+2,2)}")
    A(f"v_pk_add_f32 {vr(vT+10,2)}, {vr(vT+4,2)}, {vr(vT+6,2)}")
    A(f"v_pk_add_f32 {vr(vT+8,2)}, {vr(vT+8,2)}, {vr(vT+10,2)}")
    A(f"v_cvt_pk_bf16_f32 v{vT+12}, v{vS}, v{vS+1}")
    A(f"v_cmp_u_f32 vcc, v{vT+8}, v{vT+9}")
    A(f"v_cvt_pk_bf16_f32 v{vT+13}, v{vS+2}, v{vS+3}")
    A("s_cbranch_vccnz L_gcheck")
    LB("L_gok")
    A(f"ds_write_b64 v{vA_kvw}, {vr(vT+12,2)}")
    A(f"v_cvt_pk_bf16_f32 v{vZB}, v{vT+4}, v{vT+5}")
    A(f"v_cvt_pk_bf16_f32 v{vZB+1}, v{vT+6}, v{vT+7}")
    stamp()
    def den():
        A(f"v_mfma_f32_16x16x16_bf16 {vr(vD,4)}, {vr(vPHQ,2)}, {vr(vZB,2)}, 0")
    def den2():
        round4(vD, vD, vT)
        A(f"v_pk_add_f32 {vr(vD,2)}, {vr(vD,2)}, {vr(vEps,2)}")
        A(f"v_pk_add_f32 {vr(vD+2,2)}, {vr(vD+2,2)}, {vr(vEps,2)}")
        round4(vD, vD, vT)
        for i in range(4): A(f"v_rcp_f32 v{vD+i}, v{vD+i}")
    A("s_nop 1")
    den()
    A("s_waitcnt lgkmcnt(0)")
    A("s_barrier")
    for k in range(4):
        A(f"ds_read_b128 {vr(vKVB+4*k,4)}, v{vA_kvr+k}")
    A("s_nop 1")
    den2()
    vN = vK
    vO = [vQ, vQ+4, vQ+8, vQ+12]
    def outtile(t):
        for r in range(4):
            o = vO[r]
            for j in range(4):
                A(f"v_cvt_pk_bf16_f32 v{vT+8+j}, v{vN+8*j+r}, v{vN+8*j+4+r}")
            for j in range(4):
                A(f"v_lshlrev_b32 v{vT+2*j}, 16, v{vT+8+j}")
                A(f"v_and_b32 v{vT+2*j+1}, s{sHi}, v{vT+8+j}")
            pr = vD + (r & ~1)
            sel = "op_sel:[0,1] op_sel_hi:[1,1]" if (r & 1) else "op_sel:[0,0] op_sel_hi:[1,0]"
            for j in range(4):
                A(f"v_pk_mul_f32 {vr(vT+2*j,2)}, {vr(vT+2*j,2)}, {vr(pr,2)} {sel}")
            for j in range(4):
                A(f"v_cvt_pk_bf16_f32 v{o+j}, v{vT+2*j}, v{vT+2*j+1}")
            A(f"buffer_store_dwordx4 {vr(o,4)}, v{vA_o}, {sr(SO,4)}, s{sBase+t} offen offset:{256*r} {st}")
    for k in range(4):
        A(f"s_waitcnt lgkmcnt({3-k})")
        for j in range(2):
            dd = 2*k + j
            A(f"v_mfma_f32_16x16x16_bf16 {vr(vN+4*dd,4)}, {vr(vPHQ,2)}, {vr(vKVB+2*dd,2)}, 0")
    if gw == 0: rdkq(vQ, 1)
    A("s_nop 7")
    outtile(0)
    stamp()
    if gw != 0:
        A("s_waitcnt vmcnt(4)")
        rdkq(vQ, 1)
    phi(vQ+16, True, vPHQ)
    A("s_nop 1")
    den()
    for dd in range(8):
        A(f"v_mfma_f32_16x16x16_bf16 {vr(vN+4*dd,4)}, {vr(vPHQ,2)}, {vr(vKVB+2*dd,2)}, 0")
    den2()
    outtile(1)
    LB("L_fin")
    if stamps:
        stamp()
        A("s_waitcnt vmcnt(0)")
        stamp()
        A("s_waitcnt lgkmcnt(0)")
        assert nst[0] <= 11, nst[0]
        for i in range(12):
            A(f"v_mov_b32 v{vK+i}, s{sSt+2*i}" if i < nst[0] else f"v_mov_b32 v{vK+i}, s{sSpin}")
        A(f"s_mul_i32 s{sT}, s2, 9")
        A(f"s_add_u32 s{sT}, s{sT}, s{sW}")
        A(f"s_mul_i32 s{sT}, s{sT}, 48")
        A(f"s_add_u32 s{sT}, s{sT}, {WS_STAMP}")
        A("s_mov_b64 exec, 1")
        for i in range(3):
            A(f"buffer_store_dwordx4 {vr(vK+4*i,4)}, off, {sr(SWS,4)}, s{sT} offset:{16*i}")
    LB("L_end")
    A("s_endpgm")
    LB("L_gcheck")
    A(f"v_max3_u32 v{vT+14}, v{vZg}, v{vZg+1}, v{vZg+2}")
    A(f"v_max_u32 v{vT+14}, v{vT+14}, v{vZg+3}")
    for i in range(16):
        A(f"v_max3_u32 v{vT+14}, v{vT+14}, v{vGa+2*i}, v{vGa+2*i+1}")
    A(f"v_cmp_eq_u32 vcc, -1, v{vT+14}")
    A("s_cbranch_vccz L_gok")
    A(f"s_sub_u32 s{sSpin}, s{sSpin}, 1")
    A("s_cbranch_scc1 L_gok")
    gather()
    A("s_waitcnt vmcnt(0)")
    A("s_branch L_gsum")
    LB("L_helper")
    if hprio: A(f"s_setprio {hprio}")
    srd(SWS, 16, WS_BYTES)
    srd(SDB, 14, 256)
    for i in range(4): A(f"v_mov_b32 v{vT+4+i}, -1")
    A(f"s_lshl_b32 s{sT}, s{sP}, 10")
    A(f"s_add_u32 s{sT}, s{sT}, s{sKVo}")
    for w in range(8):
        A(f"buffer_store_dwordx4 {vr(vT+4,4)}, v{vA_lin}, {sr(SWS,4)}, s{sT} offen sc1")
        if w < 7: A(f"s_add_u32 s{sT}, s{sT}, 8192")
    A(f"s_lshl_b32 s{sT}, s{sP}, 6")
    A(f"s_add_u32 s{sZo}, s{sT}, s{sZo}")
    A("s_mov_b64 exec, 15")
    A(f"buffer_store_dwordx4 {vr(vT+4,4)}, v{vA_lin}, {sr(SWS,4)}, s{sZo} offen sc1")
    A("s_mov_b64 exec, -1")
    A(f"s_lshl_b32 s{sKVo2}, s{sH}, 3")
    A(f"s_add_u32 s{sT}, s{sKVo2}, s{sP}")
    A(f"v_mov_b32 v{vT+8}, 1")
    A(f"v_mov_b32 v{vT+9}, 0")
    A(f"ds_write_b32 v{vA_fl}, v{vT+9}")
    A(f"v_mov_b32 v{vT+12}, 0x3f803f80")
    for i in range(1, 4): A(f"v_mov_b32 v{vT+12+i}, v{vT+12}")
    A(f"s_mov_b32 s{sSpin}, {spin}")
    if stamps:
        A(f"s_memrealtime {sr(sSt+4,2)}")
    A("s_waitcnt lgkmcnt(0)")
    A("s_barrier")
    A("s_mov_b64 exec, 1")
    A("s_waitcnt vmcnt(0)")
    if sig == 'byte':
        A(f"buffer_store_byte v{vT+8}, off, {sr(SDB,4)}, s{sT} sc1")
    else:
        A(f"buffer_atomic_add v{vT+8}, off, {sr(SDB,4)}, s{sKVo2} sc1")
    A("s_mov_b64 exec, -1")
    if stamps:
        A(f"s_memrealtime {sr(sSt+2,2)}")
    A("s_barrier")
    if pollpos == 1: A(f"buffer_load_dwordx2 {vr(vT+10,2)}, off, {sr(SDB,4)}, s{sKVo2} sc1")
    for b in range(8):
        A(f"ds_read_b128 {vr(vK+4*b,4)}, v{vA_phi} offset:{1024*b}")
    for b in range(8):
        A(f"s_waitcnt lgkmcnt({7-b})")
        A(f"v_mfma_f32_16x16x32_bf16 {vr(vP,4)}, {vr(vK+4*b,4)}, {vr(vT+12,4)}, {'0' if b==0 else vr(vP,4)}")
    A("s_nop 7")
    for i in range(4): A(f"v_min_u32 v{vP+i}, -2, v{vP+i}")
    A("s_mov_b32 exec_lo, 0x00010001")
    A("s_mov_b32 exec_hi, 0x00010001")
    A(f"buffer_store_dwordx4 {vr(vP,4)}, v{vT+3}, {sr(SWS,4)}, s{sZo} offen sc1")
    A("s_mov_b64 exec, -1")
    A("s_barrier")
    if pollpos == 1:
        A("s_waitcnt vmcnt(1)")
    else:
        A(f"buffer_load_dwordx2 {vr(vT+10,2)}, off, {sr(SDB,4)}, s{sKVo2} sc1")
        A("s_waitcnt vmcnt(0)")
    LB("L_flagchk")
    if sig == 'byte':
        A(f"v_and_b32 v{vT+10}, v{vT+10}, v{vT+11}")
        A(f"v_cmp_ne_u32 vcc, 0x01010101, v{vT+10}")
    else:
        A(f"v_cmp_ne_u32 vcc, 8, v{vT+10}")
    A("s_cbranch_vccz L_flagok")
    A(f"s_sub_u32 s{sSpin}, s{sSpin}, 1")
    A("s_cbranch_scc1 L_flagok")
    A(f"buffer_load_dwordx2 {vr(vT+10,2)}, off, {sr(SDB,4)}, s{sKVo2} sc1")
    A("s_waitcnt vmcnt(0)")
    A("s_branch L_flagchk")
    LB("L_flagok")
    A(f"ds_write_b32 v{vA_fl}, v{vT+8}")
    if stamps:
        for i in range(3, 9): A(f"s_memrealtime {sr(sSt+2*i,2)}")
        A("s_branch L_fin")
    else:
        A("s_endpgm")
    return HEADER.format(lds=LDS_TOTAL) + "\n".join(L) + FOOTER.format(vgpr=NV, sgpr=102 if stamps else 80, acc=NV)

if __name__ == '__main__':
    out = sys.argv[1]
    kw = {}
    for a in sys.argv[2:]:
        k, v = a.split('=')
        kw[k] = v if k in ('ld', 'st', 'sig') else int(v)
    open(out, 'w').write(gen(**kw))
```

```python
import sys, struct

def f2u(x): return struct.unpack('<I', struct.pack('<f', x))[0]

HEADER = """; Kernarg layout for this problem (56 bytes, ptrs only, base s[0:1]):
;   offset  40: d_debug   256 bytes
;   offset  48: d_ws      268435456 bytes workspace
; @launch grid=(256,1,1) block=(640,1,1) lds={lds}
.amdgcn_target "amdgcn-amd-amdhsa--gfx950"
.text
.globl standalone__linear_kernel_rfa__prompt_kernel
.p2align 8
.type standalone__linear_kernel_rfa__prompt_kernel,@function
standalone__linear_kernel_rfa__prompt_kernel:
"""
FOOTER = """
.section .rodata,"a"
.p2align 6
.amdhsa_kernel standalone__linear_kernel_rfa__prompt_kernel
  .amdhsa_next_free_vgpr {vgpr}
  .amdhsa_next_free_sgpr {sgpr}
  .amdhsa_accum_offset {acc}
  .amdhsa_group_segment_fixed_size 0
  .amdhsa_kernarg_size 56
  .amdhsa_user_sgpr_count 2
  .amdhsa_user_sgpr_kernarg_segment_ptr 1
  .amdhsa_system_sgpr_workgroup_id_x 1
  .amdhsa_float_denorm_mode_32 3
  .amdhsa_float_denorm_mode_16_64 3
.end_amdhsa_kernel
"""

LDS_V, LDS_KQ, LDS_PHI, LDS_KVT, LDS_OM, LDS_FLAG = 0, 65536, 131072, 139264, 143360, 147456
LDS_TOTAL = 147520
WS_Z = 2 << 20
WS_BYTES = 4 << 20
WS_STAMP = 3 << 20
NW = 10

def gen(ld='nt', st='sc1', stamps=False, W=28, gat=0, spin=200000, sig='byte', lw=0, hw=1, lprio=3, hprio=2, slp=1, pre=6, rot=(4,15), gfirst=1, noclear=0, dbgst=0):
    L = []
    def A(s): L.append("    " + s)
    def LB(s): L.append(s + ":")
    def vr(a, n): return f"v[{a}:{a+n-1}]"
    def sr(a, n): return f"s[{a}:{a+n-1}]"
    G = W // 4
    SQ, SK, SV, SO, SOM, SWS, SDB = 24, 28, 32, 36, 40, 44, 48
    sBase, sBase2, sW, sH, sP, sWr = 52, 53, 54, 55, 56, 57
    sScale, sL2E, sQuart = 58, 60, 62
    sM = [64, 66, 68, 70]
    sHi = 72
    sKVo, sKVo2, sZo, sT, sSpin, sM0, sSpin2 = 73, 74, 75, 76, 77, 78, 79
    sSt = 80
    sNeed, sRot = 18, 19
    vLane, vA_kq, vA_v0, vA_v1, vA_lin, vA_tr, vA_phi, vA_kvw = 1, 2, 3, 4, 5, 6, 7, 8
    vA_z, vA_kvr, vA_o, vA_phw = 9, 10, 14, 15
    vA_fl = vLane
    vPHQ = 16
    vEps = 18
    vNH = 20
    vXA = 22
    vOM = 24
    vK = 40
    vX = 72
    vO = 88
    vT = 104
    vP = 120
    vG = 124
    vB = 128
    vKVB, vZg, vZB, vD = 128, 144, 148, 152
    vA_kr = 160
    vA_kd = 40
    NV = 164
    nst = [0]
    def stamp():
        if stamps:
            A(f"s_memrealtime {sr(sSt + 2*nst[0], 2)}")
            nst[0] += 1
    def srd(d, b, n):
        A(f"s_mov_b32 s{d}, s{b}"); A(f"s_mov_b32 s{d+1}, s{b+1}")
        A(f"s_mov_b32 s{d+2}, {n}"); A(f"s_mov_b32 s{d+3}, 0x20000")

    A("s_cmp_ge_u32 s2, 256")
    A("s_cbranch_scc1 L_end")
    stamp()
    A("s_load_dwordx8 s[4:11], s[0:1], 0")
    A("s_load_dwordx4 s[12:15], s[0:1], 32")
    A("s_load_dwordx2 s[16:17], s[0:1], 48")
    A(f"v_lshrrev_b32 v{vT}, 6, v0")
    A(f"v_and_b32 v{vLane}, 63, v0")
    A(f"v_readfirstlane_b32 s{sWr}, v{vT}")
    A(f"s_and_b32 s{sH}, s2, 31")
    A(f"s_lshr_b32 s{sP}, s2, 5")
    vc, vg = vT + 1, vT + 2
    A(f"v_and_b32 v{vc}, 15, v{vLane}")
    A(f"v_lshrrev_b32 v{vg}, 4, v{vLane}")
    A(f"v_lshlrev_b32 v{vA_lin}, 4, v{vLane}")
    A(f"v_lshlrev_b32 v{vT+3}, 4, v{vg}")
    A(f"v_xor_b32 v{vT+4}, v{vc}, v{vg}")
    A(f"v_lshlrev_b32 v{vT+4}, 4, v{vT+4}")
    A(f"s_lshl_b32 s{sBase}, s{sH}, 19")
    A(f"s_lshl_b32 s{sT}, s{sP}, 16")
    A(f"s_add_u32 s{sBase}, s{sBase}, s{sT}")
    A(f"s_lshr_b32 s{sRot}, s2, {rot[0]}")
    A(f"s_and_b32 s{sRot}, s{sRot}, {rot[1]}")
    A(f"s_lshl_b32 s{sRot}, s{sRot}, 12")
    A(f"v_mov_b32 v{vA_fl}, {LDS_FLAG}")
    A(f"s_cmp_eq_u32 s{sWr}, {lw}")
    A("s_cbranch_scc1 L_loader")
    A(f"s_lshl_b32 s{sKVo}, s{sH}, 16")
    A(f"s_lshl_b32 s{sZo}, s{sH}, 9")
    A(f"s_add_u32 s{sZo}, s{sZo}, {WS_Z}")
    A(f"v_add_u32 v{vA_phi}, {LDS_PHI}, v{vA_lin}")
    A(f"s_mov_b32 s{sSpin}, {spin}")
    A(f"s_cmp_eq_u32 s{sWr}, {hw}")
    A("s_cbranch_scc1 L_helper")
    A(f"s_mov_b32 s{sW}, s{sWr}")
    for special in sorted((lw, hw), reverse=True):
        A(f"s_cmp_gt_u32 s{sWr}, {special}")
        A(f"s_subb_u32 s{sW}, s{sW}, 0")
    A(f"s_lshl_b32 s{sM0}, s{sW}, 12")
    A(f"s_add_u32 s{sT}, s{sM0}, s{sRot}")
    A(f"s_and_b32 s{sT}, s{sT}, 0xffff")
    A(f"s_xor_b32 s{sBase2}, s{sT}, 0x8000")
    A(f"s_add_u32 s{sBase2}, s{sBase}, s{sBase2}")
    A(f"s_add_u32 s{sBase}, s{sBase}, s{sT}")
    A(f"s_add_u32 s{sT}, s{sM0}, {LDS_KQ}")
    A(f"s_lshl_b32 s{sM0}, s{sW}, 13")
    A(f"v_lshl_add_u32 v{vT+4}, v{vc}, 8, v{vT+4}")
    A(f"v_add_u32 v{vA_kr}, s{sT}, v{vT+4}")
    for i in range(1, 4):
        A(f"v_xor_b32 v{vA_kr+i}, {64*i}, v{vA_kr}")
    A(f"s_add_u32 s{sKVo}, s{sKVo}, s{sM0}")
    A(f"s_add_u32 s{sKVo2}, s{sKVo}, 4096")
    sc = f2u(128.0 ** -0.25)
    A(f"s_mov_b32 s{sScale}, {sc:#x}"); A(f"s_mov_b32 s{sScale+1}, {sc:#x}")
    l2e = f2u(1.4426950408889634)
    A(f"s_mov_b32 s{sL2E}, {l2e:#x}"); A(f"s_mov_b32 s{sL2E+1}, {l2e:#x}")
    A(f"s_mov_b32 s{sQuart}, {f2u(0.25):#x}"); A(f"s_mov_b32 s{sQuart+1}, {f2u(0.25):#x}")
    for r in range(4):
        A(f"s_mov_b32 s{sM[r]}, {(1<<r)|(1<<(20+r)):#x}")
        A(f"s_mov_b32 s{sM[r]+1}, {(1<<(8+r))|(1<<(28+r)):#x}")
    A(f"s_mov_b32 s{sHi}, 0xffff0000")
    A(f"s_mov_b32 s{sSpin2}, {spin*16}")
    A(f"v_mov_b32 v{vEps}, {f2u(1e-6):#x}"); A(f"v_mov_b32 v{vEps+1}, {f2u(1e-6):#x}")
    A(f"v_mov_b32 v{vNH}, 0xbf00bf00"); A(f"v_mov_b32 v{vNH+1}, 0xbf00bf00")
    A(f"v_mov_b32 v{vXA+1}, 0")
    A(f"s_lshl_b32 s{sT}, s{sW}, 10")
    A(f"v_add_u32 v{vA_phw}, s{sT}, v{vA_phi}")
    A(f"v_lshrrev_b32 v{vT+4}, 2, v{vc}")
    A(f"v_lshl_add_u32 v{vT+4}, v{vg}, 2, v{vT+4}")
    A(f"v_and_b32 v{vT+5}, 7, v{vT+4}")
    A(f"v_xor_b32 v{vT+5}, s{sW}, v{vT+5}")
    A(f"v_lshlrev_b32 v{vT+5}, 5, v{vT+5}")
    A(f"v_lshl_add_u32 v{vT+5}, v{vT+4}, 8, v{vT+5}")
    A(f"v_and_b32 v{vT+6}, 3, v{vc}")
    A(f"v_lshl_add_u32 v{vA_tr}, v{vT+6}, 3, v{vT+5}")
    A(f"s_lshr_b32 s{sT}, s{sW}, 1")
    A(f"v_bfe_u32 v{vT+4}, v{vc}, 1, 2")
    A(f"v_xor_b32 v{vT+4}, s{sT}, v{vT+4}")
    A(f"v_lshlrev_b32 v{vT+4}, 4, v{vT+4}")
    A(f"v_and_b32 v{vT+5}, 1, v{vc}")
    A(f"v_lshl_add_u32 v{vT+4}, v{vT+5}, 3, v{vT+4}")
    A(f"v_lshrrev_b32 v{vT+5}, 3, v{vc}")
    A(f"v_lshl_add_u32 v{vT+4}, v{vT+5}, 6, v{vT+4}")
    A(f"v_lshl_add_u32 v{vT+4}, v{vg}, 10, v{vT+4}")
    A(f"s_lshl_b32 s{sT}, s{sW}, 7")
    A(f"s_add_u32 s{sT}, s{sT}, {LDS_KVT}")
    A(f"v_add_u32 v{vA_kvw}, s{sT}, v{vT+4}")
    A(f"v_lshrrev_b32 v{vT+4}, 2, v{vc}")
    A(f"v_lshlrev_b32 v{vT+4}, 4, v{vT+4}")
    A(f"v_lshl_add_u32 v{vT+4}, v{vc}, 6, v{vT+4}")
    A(f"v_lshl_add_u32 v{vT+4}, v{vg}, 10, v{vT+4}")
    A(f"v_add_u32 v{vA_kvr}, {LDS_KVT}, v{vT+4}")
    for k in range(1, 4):
        A(f"v_xor_b32 v{vA_kvr+k}, {16*k}, v{vA_kvr}")
    A(f"v_and_b32 v{vT+4}, 7, v{vc}")
    A(f"v_lshl_add_u32 v{vA_z}, v{vT+4}, 6, v{vT+3}")
    A(f"v_lshlrev_b32 v{vT+4}, 4, v{vc}")
    A(f"v_lshl_add_u32 v{vA_o}, v{vg}, 10, v{vT+4}")
    A("s_waitcnt lgkmcnt(0)")
    srd(SO, 12, 1 << 24); srd(SWS, 16, WS_BYTES)
    A("s_barrier")

    npoll = [0]
    def waitprog(base, perwave, sleep=True, flag=False):
        n = npoll[0]; npoll[0] += 1
        if perwave: A(f"s_add_u32 s{sNeed}, s{sW}, {base}")
        else: A(f"s_mov_b32 s{sNeed}, {base}")
        LB(f"L_p{n}")
        A(f"ds_read_b64 {vr(vT,2)}, v{vA_fl}")
        A("s_waitcnt lgkmcnt(0)")
        if flag:
            A(f"v_mul_lo_u32 v{vT+1}, v{vT+1}, v{vT}")
        A(f"v_cmp_le_i32 vcc, s{sNeed}, v{vT+1}")
        A(f"s_cbranch_vccnz L_pk{n}")
        if sleep and slp: A(f"s_sleep {slp}")
        A(f"s_sub_u32 s{sSpin2}, s{sSpin2}, 1")
        A(f"s_cbranch_scc0 L_p{n}")
        A(f"s_mov_b32 s{sSpin2}, 0")
        LB(f"L_pk{n}")
    def rdkq(t):
        for s in range(4):
            A(f"ds_read_b128 {vr(vX+4*s,4)}, v{vA_kr+s} offset:{t*32768}")

    def scale4(base):
        for i in range(4):
            A(f"v_lshlrev_b32 v{vT+2*i}, 16, v{base+i}")
            A(f"v_and_b32 v{vT+2*i+1}, s{sHi}, v{base+i}")
        for i in range(4):
            A(f"v_pk_mul_f32 {vr(vT+2*i,2)}, {vr(vT+2*i,2)}, {sr(sScale,2)}")
        for i in range(4):
            A(f"v_cvt_pk_bf16_f32 v{base+i}, v{vT+2*i}, v{vT+2*i+1}")

    def round4(dst, src, t):
        A(f"v_cvt_pk_bf16_f32 v{t}, v{src}, v{src+1}")
        A(f"v_cvt_pk_bf16_f32 v{t+1}, v{src+2}, v{src+3}")
        A(f"v_lshlrev_b32 v{dst}, 16, v{t}")
        A(f"v_and_b32 v{dst+1}, s{sHi}, v{t}")
        A(f"v_lshlrev_b32 v{dst+2}, 16, v{t+1}")
        A(f"v_and_b32 v{dst+3}, s{sHi}, v{t+1}")

    def phi(isq, out):
        base = vX
        for s in range(4):
            A(f"s_waitcnt lgkmcnt({3-s})")
            scale4(base + 4*s)
            if s > 0:
                x = vr(base+4*(s-1), 4); o = vr(vOM+4*(s-1), 4)
                c0 = "0" if s == 1 else vr(vG, 4); c1 = "0" if s == 1 else vr(vP, 4)
                A(f"v_mfma_f32_16x16x32_bf16 {vr(vG,4)}, {x}, {x}, {c0}")
                A(f"v_mfma_f32_16x16x32_bf16 {vr(vP,4)}, {o if isq else x}, {x if isq else o}, {c1}")
        x = vr(base+12, 4); o = vr(vOM+12, 4)
        A("s_nop 1")
        A(f"v_mfma_f32_16x16x32_bf16 {vr(vG,4)}, {x}, {x}, {vr(vG,4)}")
        A(f"v_mfma_f32_16x16x32_bf16 {vr(vP,4)}, {o if isq else x}, {x if isq else o}, {vr(vP,4)}")
        A("s_nop 6")
        A(f"v_cndmask_b32 v{vT}, 0, v{vG}, {sr(sM[0],2)}")
        for r in range(1, 4):
            A(f"v_cndmask_b32 v{vT}, v{vT}, v{vG+r}, {sr(sM[r],2)}")
        A(f"v_cvt_pk_bf16_f32 v{vXA}, v{vT}, v{vXA+1}")
        round4(vT+4, vP, vT+2)
        A("s_nop 1")
        a, b = (vr(vNH,2), vr(vXA,2)) if isq else (vr(vXA,2), vr(vNH,2))
        A(f"v_mfma_f32_16x16x16_bf16 {vr(vP,4)}, {a}, {b}, {vr(vT+4,4)}")
        A("s_nop 7")
        round4(vT+8, vP, vT+2)
        A(f"v_pk_mul_f32 {vr(vT+8,2)}, {vr(vT+8,2)}, {sr(sL2E,2)}")
        A(f"v_pk_mul_f32 {vr(vT+10,2)}, {vr(vT+10,2)}, {sr(sL2E,2)}")
        for i in range(4):
            A(f"v_exp_f32 v{vT+8+i}, v{vT+8+i}")
        A("s_nop 0")
        round4(vT+12, vT+8, vT+2)
        A(f"v_pk_fma_f32 {vr(vT+12,2)}, {vr(vT+12,2)}, {sr(sQuart,2)}, {vr(vEps,2)}")
        A(f"v_pk_fma_f32 {vr(vT+14,2)}, {vr(vT+14,2)}, {sr(sQuart,2)}, {vr(vEps,2)}")
        A(f"v_cvt_pk_bf16_f32 v{out}, v{vT+12}, v{vT+13}")
        A(f"v_cvt_pk_bf16_f32 v{out+1}, v{vT+14}, v{vT+15}")

    waitprog(2, True)
    stamp()
    for s in range(4):
        A(f"ds_read_b128 {vr(vOM+4*s,4)}, v{vA_phi} offset:{LDS_OM-LDS_PHI+1024*s}")
    rdkq(0)
    phi(False, vK)
    waitprog(10, True)
    stamp()
    rdkq(1)
    phi(False, vK+2)
    A(f"ds_write_b128 v{vA_phw}, {vr(vK,4)}")
    A("s_waitcnt lgkmcnt(0)")
    A("s_barrier")
    stamp()
    for b in range(8):
        A(f"ds_read_b128 {vr(vK+4*b,4)}, v{vA_phi} offset:{1024*b}")
    waitprog(33, False, sleep=False)
    stamp()
    for b in range(8):
        A(f"ds_read_b64_tr_b16 {vr(vB+4*b,2)}, v{vA_tr} offset:{4096*b}")
        A(f"ds_read_b64_tr_b16 {vr(vB+4*b+2,2)}, v{vA_tr} offset:{4096*b+32768}")
    for b in range(8):
        A(f"s_waitcnt lgkmcnt({14-2*b})")
        A(f"v_mfma_f32_16x16x32_bf16 {vr(vP,4)}, {vr(vK+4*b,4)}, {vr(vB+4*b,4)}, {'0' if b==0 else vr(vP,4)}")
    A(f"s_lshl_b32 s{sT}, s{sP}, 10")
    A(f"s_add_u32 s{sT}, s{sT}, s{sKVo}")
    A("s_nop 5")
    for i in range(4): A(f"v_min_u32 v{vP+i}, -2, v{vP+i}")
    A(f"buffer_store_dwordx4 {vr(vP,4)}, v{vA_lin}, {sr(SWS,4)}, s{sT} offen sc1")
    stamp()
    vGa = vK
    def gather():
        for p in range(8):
            A(f"buffer_load_dwordx4 {vr(vGa+4*p,4)}, v{vA_lin}, {sr(SWS,4)}, s{sKVo + p//4} offen offset:{(p%4)*1024} sc1")
        A(f"buffer_load_dwordx4 {vr(vZg,4)}, v{vA_z}, {sr(SWS,4)}, s{sZo} offen sc1")
    if gfirst:
        waitprog(gat if gat else 49 - G, False, flag=True)
        gather()
        stamp()
        waitprog(34, True)
        rdkq(0)
        phi(True, vPHQ)
    else:
        waitprog(34, True)
        rdkq(0)
        phi(True, vPHQ)
        waitprog(gat if gat else 49 - G, False, flag=True)
        gather()
        stamp()
    A("s_waitcnt vmcnt(0)")
    LB("L_gsum")
    vS = vT
    A(f"v_pk_add_f32 {vr(vS,2)}, {vr(vGa,2)}, {vr(vGa+4,2)}")
    A(f"v_pk_add_f32 {vr(vS+2,2)}, {vr(vGa+2,2)}, {vr(vGa+6,2)}")
    for i in range(4):
        A(f"v_add_f32_dpp v{vT+4+i}, v{vZg+i}, v{vZg+i} quad_perm:[1,0,3,2] row_mask:0xf bank_mask:0xf")
    for p in range(2, 5):
        A(f"v_pk_add_f32 {vr(vS,2)}, {vr(vS,2)}, {vr(vGa+4*p,2)}")
        A(f"v_pk_add_f32 {vr(vS+2,2)}, {vr(vS+2,2)}, {vr(vGa+4*p+2,2)}")
    for i in range(4):
        A(f"v_add_f32_dpp v{vT+8+i}, v{vT+4+i}, v{vT+4+i} quad_perm:[2,3,0,1] row_mask:0xf bank_mask:0xf")
    for p in range(5, 8):
        A(f"v_pk_add_f32 {vr(vS,2)}, {vr(vS,2)}, {vr(vGa+4*p,2)}")
        A(f"v_pk_add_f32 {vr(vS+2,2)}, {vr(vS+2,2)}, {vr(vGa+4*p+2,2)}")
    for i in range(4):
        A(f"v_add_f32_dpp v{vT+4+i}, v{vT+8+i}, v{vT+8+i} row_half_mirror row_mask:0xf bank_mask:0xf")
    A(f"v_pk_add_f32 {vr(vT+8,2)}, {vr(vS,2)}, {vr(vS+2,2)}")
    A(f"v_pk_add_f32 {vr(vT+10,2)}, {vr(vT+4,2)}, {vr(vT+6,2)}")
    A(f"v_pk_add_f32 {vr(vT+8,2)}, {vr(vT+8,2)}, {vr(vT+10,2)}")
    A(f"v_cvt_pk_bf16_f32 v{vT+12}, v{vS}, v{vS+1}")
    A(f"v_cmp_u_f32 vcc, v{vT+8}, v{vT+9}")
    A(f"v_cvt_pk_bf16_f32 v{vT+13}, v{vS+2}, v{vS+3}")
    A("s_cbranch_vccnz L_gcheck")
    LB("L_gok")
    A(f"ds_write_b64 v{vA_kvw}, {vr(vT+12,2)}")
    A(f"v_cvt_pk_bf16_f32 v{vZB}, v{vT+4}, v{vT+5}")
    A(f"v_cvt_pk_bf16_f32 v{vZB+1}, v{vT+6}, v{vT+7}")
    stamp()
    def den():
        A(f"v_mfma_f32_16x16x16_bf16 {vr(vD,4)}, {vr(vPHQ,2)}, {vr(vZB,2)}, 0")
    def den2():
        round4(vD, vD, vT)
        A(f"v_pk_add_f32 {vr(vD,2)}, {vr(vD,2)}, {vr(vEps,2)}")
        A(f"v_pk_add_f32 {vr(vD+2,2)}, {vr(vD+2,2)}, {vr(vEps,2)}")
        round4(vD, vD, vT)
        for i in range(4): A(f"v_rcp_f32 v{vD+i}, v{vD+i}")
    A("s_nop 1")
    den()
    A("s_waitcnt lgkmcnt(0)")
    A("s_barrier")
    for k in range(4):
        A(f"ds_read_b128 {vr(vKVB+4*k,4)}, v{vA_kvr+k}")
    A("s_nop 1")
    den2()
    vN = vK
    def outtile(t):
        for r in range(4):
            o = vO + 4*r
            for j in range(4):
                A(f"v_cvt_pk_bf16_f32 v{vT+8+j}, v{vN+8*j+r}, v{vN+8*j+4+r}")
            for j in range(4):
                A(f"v_lshlrev_b32 v{vT+2*j}, 16, v{vT+8+j}")
                A(f"v_and_b32 v{vT+2*j+1}, s{sHi}, v{vT+8+j}")
            pr = vD + (r & ~1)
            sel = "op_sel:[0,1] op_sel_hi:[1,1]" if (r & 1) else "op_sel:[0,0] op_sel_hi:[1,0]"
            for j in range(4):
                A(f"v_pk_mul_f32 {vr(vT+2*j,2)}, {vr(vT+2*j,2)}, {vr(pr,2)} {sel}")
            for j in range(4):
                A(f"v_cvt_pk_bf16_f32 v{o+j}, v{vT+2*j}, v{vT+2*j+1}")
            A(f"buffer_store_dwordx4 {vr(o,4)}, v{vA_o}, {sr(SO,4)}, s{sBase+t} offen offset:{256*r} {st}")
    for k in range(4):
        A(f"s_waitcnt lgkmcnt({3-k})")
        for j in range(2):
            dd = 2*k + j
            A(f"v_mfma_f32_16x16x16_bf16 {vr(vN+4*dd,4)}, {vr(vPHQ,2)}, {vr(vKVB+2*dd,2)}, 0")
    A("s_nop 7")
    outtile(0)
    stamp()
    waitprog(42, True)
    rdkq(1)
    phi(True, vPHQ)
    A("s_nop 1")
    den()
    for dd in range(8):
        A(f"v_mfma_f32_16x16x16_bf16 {vr(vN+4*dd,4)}, {vr(vPHQ,2)}, {vr(vKVB+2*dd,2)}, 0")
    den2()
    outtile(1)
    LB("L_fin")
    if stamps:
        stamp()
        A("s_waitcnt vmcnt(0)")
        stamp()
        A("s_waitcnt lgkmcnt(0)")
        assert nst[0] <= 11, nst[0]
        for i in range(12):
            A(f"v_mov_b32 v{vK+i}, s{sSt+2*i}" if i < nst[0] else f"v_mov_b32 v{vK+i}, s{sSpin}")
        if dbgst:
            srd(SDB, 14, 256)
            A("s_mov_b64 exec, 1")
            A(f"v_not_b32 v{vK}, v{vK}")
            for j, i in enumerate((0, 1, 3, 4, 6, 7, 8, 10)):
                A(f"buffer_atomic_umax v{vK+i}, off, {sr(SDB,4)}, 0 offset:{4+8*j} sc1")
            A("s_endpgm")
        A(f"s_mul_i32 s{sT}, s2, {NW}")
        A(f"s_add_u32 s{sT}, s{sT}, s{sWr}")
        A(f"s_mul_i32 s{sT}, s{sT}, 48")
        A(f"s_add_u32 s{sT}, s{sT}, {WS_STAMP}")
        A("s_mov_b64 exec, 1")
        for i in range(3):
            A(f"buffer_store_dwordx4 {vr(vK+4*i,4)}, off, {sr(SWS,4)}, s{sT} offset:{16*i}")
    LB("L_end")
    A("s_endpgm")
    LB("L_gcheck")
    A(f"v_max3_u32 v{vT+14}, v{vZg}, v{vZg+1}, v{vZg+2}")
    A(f"v_max_u32 v{vT+14}, v{vT+14}, v{vZg+3}")
    for i in range(16):
        A(f"v_max3_u32 v{vT+14}, v{vT+14}, v{vGa+2*i}, v{vGa+2*i+1}")
    A(f"v_cmp_eq_u32 vcc, -1, v{vT+14}")
    A("s_cbranch_vccz L_gok")
    A(f"s_sub_u32 s{sSpin}, s{sSpin}, 1")
    A("s_cbranch_scc1 L_gok")
    gather()
    A("s_waitcnt vmcnt(0)")
    A("s_branch L_gsum")

    LB("L_loader")
    if lprio: A(f"s_setprio {lprio}")
    A(f"v_lshl_add_u32 v{vA_kq}, v{vc}, 8, v{vT+3}")
    A(f"v_lshl_add_u32 v{vA_kd}, v{vg}, 8, v{vT+4}")
    for i in range(1, 4):
        A(f"v_xor_b32 v{vA_kd+i}, {64*i}, v{vA_kd}")
    A(f"v_lshlrev_b32 v{vT+5}, 1, v{vg}")
    A(f"v_xor_b32 v{vT+5}, v{vT+5}, v{vc}")
    A(f"v_lshlrev_b32 v{vT+5}, 4, v{vT+5}")
    A(f"v_lshl_add_u32 v{vA_v0}, v{vg}, 8, v{vT+5}")
    A(f"v_xor_b32 v{vA_v1}, 128, v{vA_v0}")
    A(f"v_mov_b32 v{vT+6}, 0")
    A(f"ds_write_b32 v{vA_fl}, v{vT+6} offset:4")
    A("s_waitcnt lgkmcnt(0)")
    srd(SOM, 10, 4096); srd(SK, 6, 1 << 24)
    def tile_off(j): return (j & 7) * 8192 + (j >> 3) * 4096
    ngroups = 49
    def signal(p):
        A(f"v_mov_b32 v{vT+6+(p&1)}, {p}")
        A(f"ds_write_b32 v{vA_fl}, v{vT+6+(p&1)} offset:4")
    for n in range(ngroups):
        if n == 0:
            for s in range(4):
                A(f"s_mov_b32 m0, {LDS_OM + s*1024 - s*64}")
                A("s_nop 0")
                A(f"buffer_load_dwordx4 v{vA_kq}, {sr(SOM,4)}, 0 offen offset:{64*s} lds")
        else:
            if n <= 16: S, off, ldsb, regs = SK, (n-1)*4096, LDS_KQ, [vA_kd+i for i in range(4)]
            elif n <= 32: S, off, ldsb, regs = SV, (n-17)*4096, LDS_V, [vA_v0, vA_v1, vA_v0, vA_v1]
            else: S, off, ldsb, regs = SQ, (n-33)*4096, LDS_KQ, [vA_kd+i for i in range(4)]
            if n == 33:
                if stamps: A(f"s_memrealtime {sr(sSt+4,2)}")
                A("s_barrier")
                if stamps: A(f"s_memrealtime {sr(sSt+6,2)}")
            A(f"s_mov_b32 m0, {ldsb + off}")
            A(f"s_add_u32 s{sT}, s{sRot}, {off}")
            A(f"s_and_b32 s{sT}, s{sT}, 0xffff")
            A(f"s_add_u32 s{sT}, s{sBase}, s{sT}")
            for i in range(4):
                A(f"buffer_load_dwordx4 v{regs[i]}, {sr(S,4)}, s{sT} offen offset:{i*1024} {ld} lds")
        if n == 1: srd(SV, 8, 1 << 24); srd(SQ, 4, 1 << 24)
        if n == pre:
            A("s_barrier")
            if stamps: A(f"s_memrealtime {sr(sSt+2,2)}")
        if n >= G:
            A(f"s_waitcnt vmcnt({W})")
            signal(n + 1 - G)
    if stamps: A(f"s_memrealtime {sr(sSt+8,2)}")
    for k in range(G - 1, -1, -1):
        A(f"s_waitcnt vmcnt({4*k})")
        signal(ngroups - k)
    if stamps:
        for i in range(5, 9): A(f"s_memrealtime {sr(sSt+2*i,2)}")
        srd(SWS, 16, WS_BYTES)
        A(f"s_mov_b32 s{sSpin}, {spin}")
        A("s_branch L_fin")
    else:
        A("s_endpgm")

    LB("L_helper")
    if hprio: A(f"s_setprio {hprio}")
    for i in range(4): A(f"v_mov_b32 v{vT+4+i}, -1")
    A(f"s_lshl_b32 s{sT}, s{sP}, 10")
    A(f"s_add_u32 s{sT}, s{sT}, s{sKVo}")
    A("s_waitcnt lgkmcnt(0)")
    srd(SWS, 16, WS_BYTES)
    for w in range(8):
        A(f"buffer_store_dwordx4 {vr(vT+4,4)}, v{vA_lin}, {sr(SWS,4)}, s{sT} offen sc1")
        if w < 7: A(f"s_add_u32 s{sT}, s{sT}, 8192")
    A(f"s_lshl_b32 s{sT}, s{sP}, 6")
    A(f"s_add_u32 s{sZo}, s{sT}, s{sZo}")
    A("s_mov_b64 exec, 15")
    A(f"buffer_store_dwordx4 {vr(vT+4,4)}, v{vA_lin}, {sr(SWS,4)}, s{sZo} offen sc1")
    A("s_mov_b64 exec, -1")
    srd(SDB, 14, 256)
    A(f"s_lshl_b32 s{sKVo2}, s{sH}, 3")
    A(f"s_add_u32 s{sT}, s{sKVo2}, s{sP}")
    A(f"v_mov_b32 v{vT+8}, 1")
    A(f"v_mov_b32 v{vT+9}, 0")
    A(f"ds_write_b32 v{vA_fl}, v{vT+9}")
    A(f"v_mov_b32 v{vT+12}, 0x3f803f80")
    for i in range(1, 4): A(f"v_mov_b32 v{vT+12+i}, v{vT+12}")
    if stamps:
        A(f"s_memrealtime {sr(sSt+2,2)}")
    A("s_waitcnt lgkmcnt(0)")
    A("s_barrier")
    A("s_mov_b64 exec, 1")
    A("s_waitcnt vmcnt(0)")
    if sig == 'byte':
        A(f"buffer_store_byte v{vT+8}, off, {sr(SDB,4)}, s{sT} sc1")
    else:
        A(f"buffer_atomic_add v{vT+8}, off, {sr(SDB,4)}, s{sKVo2} sc1")
    A("s_mov_b64 exec, -1")
    if stamps:
        A(f"s_memrealtime {sr(sSt+4,2)}")
    A("s_barrier")
    A(f"buffer_load_dwordx2 {vr(vT+10,2)}, off, {sr(SDB,4)}, s{sKVo2} sc1")
    for b in range(8):
        A(f"ds_read_b128 {vr(vK+4*b,4)}, v{vA_phi} offset:{1024*b}")
    for b in range(8):
        A(f"s_waitcnt lgkmcnt({7-b})")
        A(f"v_mfma_f32_16x16x32_bf16 {vr(vP,4)}, {vr(vK+4*b,4)}, {vr(vT+12,4)}, {'0' if b==0 else vr(vP,4)}")
    A("s_nop 7")
    for i in range(4): A(f"v_min_u32 v{vP+i}, -2, v{vP+i}")
    A("s_mov_b32 exec_lo, 0x00010001")
    A("s_mov_b32 exec_hi, 0x00010001")
    A(f"buffer_store_dwordx4 {vr(vP,4)}, v{vT+3}, {sr(SWS,4)}, s{sZo} offen sc1")
    A("s_mov_b64 exec, -1")
    A("s_waitcnt vmcnt(1)")
    LB("L_flagchk")
    if sig == 'byte':
        A(f"v_and_b32 v{vT+10}, v{vT+10}, v{vT+11}")
        A(f"v_cmp_ne_u32 vcc, 0x01010101, v{vT+10}")
    else:
        A(f"v_cmp_ne_u32 vcc, 8, v{vT+10}")
    A("s_cbranch_vccz L_flagok")
    A(f"s_sub_u32 s{sSpin}, s{sSpin}, 1")
    A("s_cbranch_scc1 L_flagok")
    A(f"buffer_load_dwordx2 {vr(vT+10,2)}, off, {sr(SDB,4)}, s{sKVo2} sc1")
    A("s_waitcnt vmcnt(0)")
    A("s_branch L_flagchk")
    LB("L_flagok")
    A(f"ds_write_b32 v{vA_fl}, v{vT+8}")
    if stamps:
        for i in range(3, 9): A(f"s_memrealtime {sr(sSt+2*i,2)}")
        A("s_branch L_fin")
    else:
        A("s_endpgm")
    return HEADER.format(lds=LDS_TOTAL) + "\n".join(L) + FOOTER.format(vgpr=NV, sgpr=102 if stamps else 80, acc=NV)

if __name__ == '__main__':
    out = sys.argv[1]
    kw = {}
    for a in sys.argv[2:]:
        k, v = a.split('=')
        kw[k] = v if k in ('ld', 'st', 'sig') else (tuple(map(int, v.split(','))) if k == 'rot' else int(v))
    open(out, 'w').write(gen(**kw))
```

```python
import sys, struct

def f2u(x): return struct.unpack('<I', struct.pack('<f', x))[0]

HEADER = """; Kernarg layout for this problem (56 bytes, ptrs only, base s[0:1]):
;   offset  40: d_debug   256 bytes
;   offset  48: d_ws      268435456 bytes workspace
; @launch grid=(256,1,1) block=(640,1,1) lds={lds}
.amdgcn_target "amdgcn-amd-amdhsa--gfx950"
.text
.globl standalone__linear_kernel_rfa__prompt_kernel
.p2align 8
.type standalone__linear_kernel_rfa__prompt_kernel,@function
standalone__linear_kernel_rfa__prompt_kernel:
"""
FOOTER = """
.section .rodata,"a"
.p2align 6
.amdhsa_kernel standalone__linear_kernel_rfa__prompt_kernel
  .amdhsa_next_free_vgpr {vgpr}
  .amdhsa_next_free_sgpr {sgpr}
  .amdhsa_accum_offset {acc}
  .amdhsa_group_segment_fixed_size 0
  .amdhsa_kernarg_size 56
  .amdhsa_user_sgpr_count 2
  .amdhsa_user_sgpr_kernarg_segment_ptr 1
  .amdhsa_system_sgpr_workgroup_id_x 1
  .amdhsa_float_denorm_mode_32 3
  .amdhsa_float_denorm_mode_16_64 3
.end_amdhsa_kernel
"""

LDS_V, LDS_KQ, LDS_PHI, LDS_KVT, LDS_OM, LDS_FLAG = 0, 65536, 131072, 139264, 143360, 147456
LDS_TOTAL = 147520
WS_Z = 2 << 20
WS_BYTES = 4 << 20
WS_STAMP = 3 << 20
NW = 10

def gen(ld='nt', st='sc1', stamps=False, W=28, gat=0, spin=200000, sig='byte', lw=0, hw=1, lprio=3, hprio=2, slp=1, pre=6, rot=(4,15), gfirst=1, noclear=0, dbgst=0):
    L = []
    def A(s): L.append("    " + s)
    def LB(s): L.append(s + ":")
    def vr(a, n): return f"v[{a}:{a+n-1}]"
    def sr(a, n): return f"s[{a}:{a+n-1}]"
    G = W // 4
    SQ, SK, SV, SO, SOM, SWS, SDB = 24, 28, 32, 36, 40, 44, 48
    sBase, sBase2, sW, sH, sP, sWr = 52, 53, 54, 55, 56, 57
    sScale, sL2E, sQuart = 58, 60, 62
    sM = [64, 66, 68, 70]
    sHi = 72
    sKVo, sKVo2, sZo, sT, sSpin, sM0, sSpin2 = 73, 74, 75, 76, 77, 78, 79
    sSt = 80
    sNeed, sRot = 18, 19
    vLane, vA_kq, vA_v0, vA_v1, vA_lin, vA_tr, vA_phi, vA_kvw = 1, 2, 3, 4, 5, 6, 7, 8
    vA_z, vA_kvr, vA_o, vA_phw = 9, 10, 14, 15
    vA_fl = vLane
    vPHQ = 16
    vEps = 18
    vNH = 20
    vXA = 22
    vOM = 24
    vK = 40
    vX = 72
    vO = 88
    vT = 104
    vP = 120
    vG = 124
    vB = 128
    vKVB, vZg, vZB, vD = 128, 144, 148, 152
    vA_kr = 160
    vA_kd = 40
    NV = 164
    nst = [0]
    def stamp():
        if stamps:
            A(f"s_memrealtime {sr(sSt + 2*nst[0], 2)}")
            nst[0] += 1
    def srd(d, b, n):
        A(f"s_mov_b32 s{d}, s{b}"); A(f"s_mov_b32 s{d+1}, s{b+1}")
        A(f"s_mov_b32 s{d+2}, {n}"); A(f"s_mov_b32 s{d+3}, 0x20000")

    A("s_cmp_ge_u32 s2, 256")
    A("s_cbranch_scc1 L_end")
    stamp()
    A("s_load_dwordx8 s[4:11], s[0:1], 0")
    A("s_load_dwordx4 s[12:15], s[0:1], 32")
    A("s_load_dwordx2 s[16:17], s[0:1], 48")
    A(f"v_lshrrev_b32 v{vT}, 6, v0")
    A(f"v_and_b32 v{vLane}, 63, v0")
    A(f"v_readfirstlane_b32 s{sWr}, v{vT}")
    A(f"s_and_b32 s{sH}, s2, 31")
    A(f"s_lshr_b32 s{sP}, s2, 5")
    vc, vg = vT + 1, vT + 2
    A(f"v_and_b32 v{vc}, 15, v{vLane}")
    A(f"v_lshrrev_b32 v{vg}, 4, v{vLane}")
    A(f"v_lshlrev_b32 v{vA_lin}, 4, v{vLane}")
    A(f"v_lshlrev_b32 v{vT+3}, 4, v{vg}")
    A(f"v_xor_b32 v{vT+4}, v{vc}, v{vg}")
    A(f"v_lshlrev_b32 v{vT+4}, 4, v{vT+4}")
    A(f"s_lshl_b32 s{sBase}, s{sH}, 19")
    A(f"s_lshl_b32 s{sT}, s{sP}, 16")
    A(f"s_add_u32 s{sBase}, s{sBase}, s{sT}")
    A(f"s_lshr_b32 s{sRot}, s2, {rot[0]}")
    A(f"s_and_b32 s{sRot}, s{sRot}, {rot[1]}")
    A(f"s_lshl_b32 s{sRot}, s{sRot}, 12")
    A(f"v_mov_b32 v{vA_fl}, {LDS_FLAG}")
    A(f"s_cmp_eq_u32 s{sWr}, {lw}")
    A("s_cbranch_scc1 L_loader")
    A(f"s_lshl_b32 s{sKVo}, s{sH}, 16")
    A(f"s_lshl_b32 s{sZo}, s{sH}, 9")
    A(f"s_add_u32 s{sZo}, s{sZo}, {WS_Z}")
    A(f"v_add_u32 v{vA_phi}, {LDS_PHI}, v{vA_lin}")
    A(f"s_mov_b32 s{sSpin}, {spin}")
    A(f"s_cmp_eq_u32 s{sWr}, {hw}")
    A("s_cbranch_scc1 L_helper")
    A(f"s_mov_b32 s{sW}, s{sWr}")
    for special in sorted((lw, hw), reverse=True):
        A(f"s_cmp_gt_u32 s{sWr}, {special}")
        A(f"s_subb_u32 s{sW}, s{sW}, 0")
    A(f"s_lshl_b32 s{sM0}, s{sW}, 12")
    A(f"s_add_u32 s{sT}, s{sM0}, s{sRot}")
    A(f"s_and_b32 s{sT}, s{sT}, 0xffff")
    A(f"s_xor_b32 s{sBase2}, s{sT}, 0x8000")
    A(f"s_add_u32 s{sBase2}, s{sBase}, s{sBase2}")
    A(f"s_add_u32 s{sBase}, s{sBase}, s{sT}")
    A(f"s_add_u32 s{sT}, s{sM0}, {LDS_KQ}")
    A(f"s_lshl_b32 s{sM0}, s{sW}, 13")
    A(f"v_lshl_add_u32 v{vT+4}, v{vc}, 8, v{vT+4}")
    A(f"v_add_u32 v{vA_kr}, s{sT}, v{vT+4}")
    for i in range(1, 4):
        A(f"v_xor_b32 v{vA_kr+i}, {64*i}, v{vA_kr}")
    A(f"s_add_u32 s{sKVo}, s{sKVo}, s{sM0}")
    A(f"s_add_u32 s{sKVo2}, s{sKVo}, 4096")
    sc = f2u(128.0 ** -0.25)
    A(f"s_mov_b32 s{sScale}, {sc:#x}"); A(f"s_mov_b32 s{sScale+1}, {sc:#x}")
    l2e = f2u(1.4426950408889634)
    A(f"s_mov_b32 s{sL2E}, {l2e:#x}"); A(f"s_mov_b32 s{sL2E+1}, {l2e:#x}")
    A(f"s_mov_b32 s{sQuart}, {f2u(0.25):#x}"); A(f"s_mov_b32 s{sQuart+1}, {f2u(0.25):#x}")
    for r in range(4):
        A(f"s_mov_b32 s{sM[r]}, {(1<<r)|(1<<(20+r)):#x}")
        A(f"s_mov_b32 s{sM[r]+1}, {(1<<(8+r))|(1<<(28+r)):#x}")
    A(f"s_mov_b32 s{sHi}, 0xffff0000")
    A(f"s_mov_b32 s{sSpin2}, {spin*16}")
    A(f"v_mov_b32 v{vEps}, {f2u(1e-6):#x}"); A(f"v_mov_b32 v{vEps+1}, {f2u(1e-6):#x}")
    A(f"v_mov_b32 v{vNH}, 0xbf00bf00"); A(f"v_mov_b32 v{vNH+1}, 0xbf00bf00")
    A(f"v_mov_b32 v{vXA+1}, 0")
    A(f"s_lshl_b32 s{sT}, s{sW}, 10")
    A(f"v_add_u32 v{vA_phw}, s{sT}, v{vA_phi}")
    A(f"v_lshrrev_b32 v{vT+4}, 2, v{vc}")
    A(f"v_lshl_add_u32 v{vT+4}, v{vg}, 2, v{vT+4}")
    A(f"v_and_b32 v{vT+5}, 7, v{vT+4}")
    A(f"v_xor_b32 v{vT+5}, s{sW}, v{vT+5}")
    A(f"v_lshlrev_b32 v{vT+5}, 5, v{vT+5}")
    A(f"v_lshl_add_u32 v{vT+5}, v{vT+4}, 8, v{vT+5}")
    A(f"v_and_b32 v{vT+6}, 3, v{vc}")
    A(f"v_lshl_add_u32 v{vA_tr}, v{vT+6}, 3, v{vT+5}")
    A(f"s_lshr_b32 s{sT}, s{sW}, 1")
    A(f"v_bfe_u32 v{vT+4}, v{vc}, 1, 2")
    A(f"v_xor_b32 v{vT+4}, s{sT}, v{vT+4}")
    A(f"v_lshlrev_b32 v{vT+4}, 4, v{vT+4}")
    A(f"v_and_b32 v{vT+5}, 1, v{vc}")
    A(f"v_lshl_add_u32 v{vT+4}, v{vT+5}, 3, v{vT+4}")
    A(f"v_lshrrev_b32 v{vT+5}, 3, v{vc}")
    A(f"v_lshl_add_u32 v{vT+4}, v{vT+5}, 6, v{vT+4}")
    A(f"v_lshl_add_u32 v{vT+4}, v{vg}, 10, v{vT+4}")
    A(f"s_lshl_b32 s{sT}, s{sW}, 7")
    A(f"s_add_u32 s{sT}, s{sT}, {LDS_KVT}")
    A(f"v_add_u32 v{vA_kvw}, s{sT}, v{vT+4}")
    A(f"v_lshrrev_b32 v{vT+4}, 2, v{vc}")
    A(f"v_lshlrev_b32 v{vT+4}, 4, v{vT+4}")
    A(f"v_lshl_add_u32 v{vT+4}, v{vc}, 6, v{vT+4}")
    A(f"v_lshl_add_u32 v{vT+4}, v{vg}, 10, v{vT+4}")
    A(f"v_add_u32 v{vA_kvr}, {LDS_KVT}, v{vT+4}")
    for k in range(1, 4):
        A(f"v_xor_b32 v{vA_kvr+k}, {16*k}, v{vA_kvr}")
    A(f"v_and_b32 v{vT+4}, 7, v{vc}")
    A(f"v_lshl_add_u32 v{vA_z}, v{vT+4}, 6, v{vT+3}")
    A(f"v_lshlrev_b32 v{vT+4}, 4, v{vc}")
    A(f"v_lshl_add_u32 v{vA_o}, v{vg}, 10, v{vT+4}")
    A("s_waitcnt lgkmcnt(0)")
    srd(SO, 12, 1 << 24); srd(SWS, 16, WS_BYTES)
    A("s_barrier")

    npoll = [0]
    def waitprog(base, perwave, sleep=True, flag=False):
        n = npoll[0]; npoll[0] += 1
        if perwave: A(f"s_add_u32 s{sNeed}, s{sW}, {base}")
        else: A(f"s_mov_b32 s{sNeed}, {base}")
        LB(f"L_p{n}")
        A(f"ds_read_b64 {vr(vT,2)}, v{vA_fl}")
        A("s_waitcnt lgkmcnt(0)")
        if flag:
            A(f"v_mul_lo_u32 v{vT+1}, v{vT+1}, v{vT}")
        A(f"v_cmp_le_i32 vcc, s{sNeed}, v{vT+1}")
        A(f"s_cbranch_vccnz L_pk{n}")
        if sleep and slp: A(f"s_sleep {slp}")
        A(f"s_sub_u32 s{sSpin2}, s{sSpin2}, 1")
        A(f"s_cbranch_scc0 L_p{n}")
        A(f"s_mov_b32 s{sSpin2}, 0")
        LB(f"L_pk{n}")
    def rdkq(t):
        for s in range(4):
            A(f"ds_read_b128 {vr(vX+4*s,4)}, v{vA_kr+s} offset:{t*32768}")

    def scale4(base):
        for i in range(4):
            A(f"v_lshlrev_b32 v{vT+2*i}, 16, v{base+i}")
            A(f"v_and_b32 v{vT+2*i+1}, s{sHi}, v{base+i}")
        for i in range(4):
            A(f"v_pk_mul_f32 {vr(vT+2*i,2)}, {vr(vT+2*i,2)}, {sr(sScale,2)}")
        for i in range(4):
            A(f"v_cvt_pk_bf16_f32 v{base+i}, v{vT+2*i}, v{vT+2*i+1}")

    def round4(dst, src, t):
        A(f"v_cvt_pk_bf16_f32 v{t}, v{src}, v{src+1}")
        A(f"v_cvt_pk_bf16_f32 v{t+1}, v{src+2}, v{src+3}")
        A(f"v_lshlrev_b32 v{dst}, 16, v{t}")
        A(f"v_and_b32 v{dst+1}, s{sHi}, v{t}")
        A(f"v_lshlrev_b32 v{dst+2}, 16, v{t+1}")
        A(f"v_and_b32 v{dst+3}, s{sHi}, v{t+1}")

    def phi(isq, out):
        base = vX
        for s in range(4):
            A(f"s_waitcnt lgkmcnt({3-s})")
            scale4(base + 4*s)
            if s > 0:
                x = vr(base+4*(s-1), 4); o = vr(vOM+4*(s-1), 4)
                c0 = "0" if s == 1 else vr(vG, 4); c1 = "0" if s == 1 else vr(vP, 4)
                A(f"v_mfma_f32_16x16x32_bf16 {vr(vG,4)}, {x}, {x}, {c0}")
                A(f"v_mfma_f32_16x16x32_bf16 {vr(vP,4)}, {o if isq else x}, {x if isq else o}, {c1}")
        x = vr(base+12, 4); o = vr(vOM+12, 4)
        A("s_nop 1")
        A(f"v_mfma_f32_16x16x32_bf16 {vr(vG,4)}, {x}, {x}, {vr(vG,4)}")
        A(f"v_mfma_f32_16x16x32_bf16 {vr(vP,4)}, {o if isq else x}, {x if isq else o}, {vr(vP,4)}")
        A("s_nop 6")
        A(f"v_cndmask_b32 v{vT}, 0, v{vG}, {sr(sM[0],2)}")
        for r in range(1, 4):
            A(f"v_cndmask_b32 v{vT}, v{vT}, v{vG+r}, {sr(sM[r],2)}")
        A(f"v_cvt_pk_bf16_f32 v{vXA}, v{vT}, v{vXA+1}")
        round4(vT+4, vP, vT+2)
        A("s_nop 1")
        a, b = (vr(vNH,2), vr(vXA,2)) if isq else (vr(vXA,2), vr(vNH,2))
        A(f"v_mfma_f32_16x16x16_bf16 {vr(vP,4)}, {a}, {b}, {vr(vT+4,4)}")
        A("s_nop 7")
        round4(vT+8, vP, vT+2)
        A(f"v_pk_mul_f32 {vr(vT+8,2)}, {vr(vT+8,2)}, {sr(sL2E,2)}")
        A(f"v_pk_mul_f32 {vr(vT+10,2)}, {vr(vT+10,2)}, {sr(sL2E,2)}")
        for i in range(4):
            A(f"v_exp_f32 v{vT+8+i}, v{vT+8+i}")
        A("s_nop 0")
        round4(vT+12, vT+8, vT+2)
        A(f"v_pk_fma_f32 {vr(vT+12,2)}, {vr(vT+12,2)}, {sr(sQuart,2)}, {vr(vEps,2)}")
        A(f"v_pk_fma_f32 {vr(vT+14,2)}, {vr(vT+14,2)}, {sr(sQuart,2)}, {vr(vEps,2)}")
        A(f"v_cvt_pk_bf16_f32 v{out}, v{vT+12}, v{vT+13}")
        A(f"v_cvt_pk_bf16_f32 v{out+1}, v{vT+14}, v{vT+15}")

    waitprog(2, True)
    stamp()
    for s in range(4):
        A(f"ds_read_b128 {vr(vOM+4*s,4)}, v{vA_phi} offset:{LDS_OM-LDS_PHI+1024*s}")
    rdkq(0)
    phi(False, vK)
    waitprog(10, True)
    stamp()
    rdkq(1)
    phi(False, vK+2)
    A(f"ds_write_b128 v{vA_phw}, {vr(vK,4)}")
    A("s_waitcnt lgkmcnt(0)")
    A("s_barrier")
    stamp()
    for b in range(8):
        A(f"ds_read_b128 {vr(vK+4*b,4)}, v{vA_phi} offset:{1024*b}")
    waitprog(33, False, sleep=False)
    stamp()
    for b in range(8):
        A(f"ds_read_b64_tr_b16 {vr(vB+4*b,2)}, v{vA_tr} offset:{4096*b}")
        A(f"ds_read_b64_tr_b16 {vr(vB+4*b+2,2)}, v{vA_tr} offset:{4096*b+32768}")
    for b in range(8):
        A(f"s_waitcnt lgkmcnt({14-2*b})")
        A(f"v_mfma_f32_16x16x32_bf16 {vr(vP,4)}, {vr(vK+4*b,4)}, {vr(vB+4*b,4)}, {'0' if b==0 else vr(vP,4)}")
    A(f"s_lshl_b32 s{sT}, s{sP}, 10")
    A(f"s_add_u32 s{sT}, s{sT}, s{sKVo}")
    A("s_nop 5")
    for i in range(4): A(f"v_min_u32 v{vP+i}, -2, v{vP+i}")
    A(f"buffer_store_dwordx4 {vr(vP,4)}, v{vA_lin}, {sr(SWS,4)}, s{sT} offen sc1")
    stamp()
    vGa = vK
    def gather():
        for p in range(8):
            A(f"buffer_load_dwordx4 {vr(vGa+4*p,4)}, v{vA_lin}, {sr(SWS,4)}, s{sKVo + p//4} offen offset:{(p%4)*1024} sc1")
        A(f"buffer_load_dwordx4 {vr(vZg,4)}, v{vA_z}, {sr(SWS,4)}, s{sZo} offen sc1")
    if gfirst:
        waitprog(gat if gat else 49 - G, False, flag=True)
        gather()
        stamp()
        waitprog(34, True)
        rdkq(0)
        phi(True, vPHQ)
    else:
        waitprog(34, True)
        rdkq(0)
        phi(True, vPHQ)
        waitprog(gat if gat else 49 - G, False, flag=True)
        gather()
        stamp()
    A("s_waitcnt vmcnt(0)")
    LB("L_gsum")
    vS = vT
    A(f"v_pk_add_f32 {vr(vS,2)}, {vr(vGa,2)}, {vr(vGa+4,2)}")
    A(f"v_pk_add_f32 {vr(vS+2,2)}, {vr(vGa+2,2)}, {vr(vGa+6,2)}")
    for i in range(4):
        A(f"v_add_f32_dpp v{vT+4+i}, v{vZg+i}, v{vZg+i} quad_perm:[1,0,3,2] row_mask:0xf bank_mask:0xf")
    for p in range(2, 5):
        A(f"v_pk_add_f32 {vr(vS,2)}, {vr(vS,2)}, {vr(vGa+4*p,2)}")
        A(f"v_pk_add_f32 {vr(vS+2,2)}, {vr(vS+2,2)}, {vr(vGa+4*p+2,2)}")
    for i in range(4):
        A(f"v_add_f32_dpp v{vT+8+i}, v{vT+4+i}, v{vT+4+i} quad_perm:[2,3,0,1] row_mask:0xf bank_mask:0xf")
    for p in range(5, 8):
        A(f"v_pk_add_f32 {vr(vS,2)}, {vr(vS,2)}, {vr(vGa+4*p,2)}")
        A(f"v_pk_add_f32 {vr(vS+2,2)}, {vr(vS+2,2)}, {vr(vGa+4*p+2,2)}")
    for i in range(4):
        A(f"v_add_f32_dpp v{vT+4+i}, v{vT+8+i}, v{vT+8+i} row_half_mirror row_mask:0xf bank_mask:0xf")
    A(f"v_pk_add_f32 {vr(vT+8,2)}, {vr(vS,2)}, {vr(vS+2,2)}")
    A(f"v_pk_add_f32 {vr(vT+10,2)}, {vr(vT+4,2)}, {vr(vT+6,2)}")
    A(f"v_pk_add_f32 {vr(vT+8,2)}, {vr(vT+8,2)}, {vr(vT+10,2)}")
    A(f"v_cvt_pk_bf16_f32 v{vT+12}, v{vS}, v{vS+1}")
    A(f"v_cmp_u_f32 vcc, v{vT+8}, v{vT+9}")
    A(f"v_cvt_pk_bf16_f32 v{vT+13}, v{vS+2}, v{vS+3}")
    A("s_cbranch_vccnz L_gcheck")
    LB("L_gok")
    A(f"ds_write_b64 v{vA_kvw}, {vr(vT+12,2)}")
    A(f"v_cvt_pk_bf16_f32 v{vZB}, v{vT+4}, v{vT+5}")
    A(f"v_cvt_pk_bf16_f32 v{vZB+1}, v{vT+6}, v{vT+7}")
    stamp()
    def den():
        A(f"v_mfma_f32_16x16x16_bf16 {vr(vD,4)}, {vr(vPHQ,2)}, {vr(vZB,2)}, 0")
    def den2():
        round4(vD, vD, vT)
        A(f"v_pk_add_f32 {vr(vD,2)}, {vr(vD,2)}, {vr(vEps,2)}")
        A(f"v_pk_add_f32 {vr(vD+2,2)}, {vr(vD+2,2)}, {vr(vEps,2)}")
        round4(vD, vD, vT)
        for i in range(4): A(f"v_rcp_f32 v{vD+i}, v{vD+i}")
    A("s_nop 1")
    den()
    A("s_waitcnt lgkmcnt(0)")
    A("s_barrier")
    for k in range(4):
        A(f"ds_read_b128 {vr(vKVB+4*k,4)}, v{vA_kvr+k}")
    A("s_nop 1")
    den2()
    vN = vK
    def outtile(t):
        for r in range(4):
            o = vO + 4*r
            for j in range(4):
                A(f"v_cvt_pk_bf16_f32 v{vT+8+j}, v{vN+8*j+r}, v{vN+8*j+4+r}")
            for j in range(4):
                A(f"v_lshlrev_b32 v{vT+2*j}, 16, v{vT+8+j}")
                A(f"v_and_b32 v{vT+2*j+1}, s{sHi}, v{vT+8+j}")
            pr = vD + (r & ~1)
            sel = "op_sel:[0,1] op_sel_hi:[1,1]" if (r & 1) else "op_sel:[0,0] op_sel_hi:[1,0]"
            for j in range(4):
                A(f"v_pk_mul_f32 {vr(vT+2*j,2)}, {vr(vT+2*j,2)}, {vr(pr,2)} {sel}")
            for j in range(4):
                A(f"v_cvt_pk_bf16_f32 v{o+j}, v{vT+2*j}, v{vT+2*j+1}")
            A(f"buffer_store_dwordx4 {vr(o,4)}, v{vA_o}, {sr(SO,4)}, s{sBase+t} offen offset:{256*r} {st}")
    for k in range(4):
        A(f"s_waitcnt lgkmcnt({3-k})")
        for j in range(2):
            dd = 2*k + j
            A(f"v_mfma_f32_16x16x16_bf16 {vr(vN+4*dd,4)}, {vr(vPHQ,2)}, {vr(vKVB+2*dd,2)}, 0")
    A("s_nop 7")
    outtile(0)
    stamp()
    waitprog(42, True)
    rdkq(1)
    phi(True, vPHQ)
    A("s_nop 1")
    den()
    for dd in range(8):
        A(f"v_mfma_f32_16x16x16_bf16 {vr(vN+4*dd,4)}, {vr(vPHQ,2)}, {vr(vKVB+2*dd,2)}, 0")
    den2()
    outtile(1)
    LB("L_fin")
    if stamps:
        stamp()
        A("s_waitcnt vmcnt(0)")
        stamp()
        A("s_waitcnt lgkmcnt(0)")
        assert nst[0] <= 11, nst[0]
        for i in range(12):
            A(f"v_mov_b32 v{vK+i}, s{sSt+2*i}" if i < nst[0] else f"v_mov_b32 v{vK+i}, s{sSpin}")
        if dbgst:
            A(f"s_cmp_lg_u32 s{sWr}, 9")
            A("s_cbranch_scc1 L_end")
            srd(SDB, 14, 256)
            A("s_mov_b64 exec, 1")
            A(f"v_mov_b32 v{vK+11}, v{vK}")
            A(f"v_not_b32 v{vK}, v{vK}")
            for j, i in enumerate((0, 11, 4, 10)):
                A(f"buffer_atomic_umax v{vK+i}, off, {sr(SDB,4)}, 0 offset:{4+8*j} sc1")
            A("s_endpgm")
        A(f"s_mul_i32 s{sT}, s2, {NW}")
        A(f"s_add_u32 s{sT}, s{sT}, s{sWr}")
        A(f"s_mul_i32 s{sT}, s{sT}, 48")
        A(f"s_add_u32 s{sT}, s{sT}, {WS_STAMP}")
        A("s_mov_b64 exec, 1")
        for i in range(3):
            A(f"buffer_store_dwordx4 {vr(vK+4*i,4)}, off, {sr(SWS,4)}, s{sT} offset:{16*i}")
    LB("L_end")
    A("s_endpgm")
    LB("L_gcheck")
    A(f"v_max3_u32 v{vT+14}, v{vZg}, v{vZg+1}, v{vZg+2}")
    A(f"v_max_u32 v{vT+14}, v{vT+14}, v{vZg+3}")
    for i in range(16):
        A(f"v_max3_u32 v{vT+14}, v{vT+14}, v{vGa+2*i}, v{vGa+2*i+1}")
    A(f"v_cmp_eq_u32 vcc, -1, v{vT+14}")
    A("s_cbranch_vccz L_gok")
    A(f"s_sub_u32 s{sSpin}, s{sSpin}, 1")
    A("s_cbranch_scc1 L_gok")
    gather()
    A("s_waitcnt vmcnt(0)")
    A("s_branch L_gsum")

    LB("L_loader")
    if lprio: A(f"s_setprio {lprio}")
    A(f"v_lshl_add_u32 v{vA_kq}, v{vc}, 8, v{vT+3}")
    A(f"v_lshl_add_u32 v{vA_kd}, v{vg}, 8, v{vT+4}")
    for i in range(1, 4):
        A(f"v_xor_b32 v{vA_kd+i}, {64*i}, v{vA_kd}")
    A(f"v_lshlrev_b32 v{vT+5}, 1, v{vg}")
    A(f"v_xor_b32 v{vT+5}, v{vT+5}, v{vc}")
    A(f"v_lshlrev_b32 v{vT+5}, 4, v{vT+5}")
    A(f"v_lshl_add_u32 v{vA_v0}, v{vg}, 8, v{vT+5}")
    A(f"v_xor_b32 v{vA_v1}, 128, v{vA_v0}")
    A(f"v_mov_b32 v{vT+6}, 0")
    A(f"ds_write_b32 v{vA_fl}, v{vT+6} offset:4")
    A("s_waitcnt lgkmcnt(0)")
    srd(SOM, 10, 4096); srd(SK, 6, 1 << 24)
    def tile_off(j): return (j & 7) * 8192 + (j >> 3) * 4096
    ngroups = 49
    def signal(p):
        A(f"v_mov_b32 v{vT+6+(p&1)}, {p}")
        A(f"ds_write_b32 v{vA_fl}, v{vT+6+(p&1)} offset:4")
    for n in range(ngroups):
        if n == 0:
            for s in range(4):
                A(f"s_mov_b32 m0, {LDS_OM + s*1024 - s*64}")
                A("s_nop 0")
                A(f"buffer_load_dwordx4 v{vA_kq}, {sr(SOM,4)}, 0 offen offset:{64*s} lds")
        else:
            if n <= 16: S, off, ldsb, regs = SK, (n-1)*4096, LDS_KQ, [vA_kd+i for i in range(4)]
            elif n <= 32: S, off, ldsb, regs = SV, (n-17)*4096, LDS_V, [vA_v0, vA_v1, vA_v0, vA_v1]
            else: S, off, ldsb, regs = SQ, (n-33)*4096, LDS_KQ, [vA_kd+i for i in range(4)]
            if n == 33:
                if stamps: A(f"s_memrealtime {sr(sSt+4,2)}")
                A("s_barrier")
                if stamps: A(f"s_memrealtime {sr(sSt+6,2)}")
            A(f"s_mov_b32 m0, {ldsb + off}")
            A(f"s_add_u32 s{sT}, s{sRot}, {off}")
            A(f"s_and_b32 s{sT}, s{sT}, 0xffff")
            A(f"s_add_u32 s{sT}, s{sBase}, s{sT}")
            for i in range(4):
                A(f"buffer_load_dwordx4 v{regs[i]}, {sr(S,4)}, s{sT} offen offset:{i*1024} {ld} lds")
        if n == 1: srd(SV, 8, 1 << 24); srd(SQ, 4, 1 << 24)
        if n == pre:
            A("s_barrier")
            if stamps: A(f"s_memrealtime {sr(sSt+2,2)}")
        if n >= G:
            A(f"s_waitcnt vmcnt({W})")
            signal(n + 1 - G)
    if stamps: A(f"s_memrealtime {sr(sSt+8,2)}")
    for k in range(G - 1, -1, -1):
        A(f"s_waitcnt vmcnt({4*k})")
        signal(ngroups - k)
    if stamps:
        for i in range(5, 9): A(f"s_memrealtime {sr(sSt+2*i,2)}")
        srd(SWS, 16, WS_BYTES)
        A(f"s_mov_b32 s{sSpin}, {spin}")
        A("s_branch L_fin")
    else:
        A("s_endpgm")

    LB("L_helper")
    if hprio: A(f"s_setprio {hprio}")
    for i in range(4): A(f"v_mov_b32 v{vT+4+i}, -1")
    A(f"s_lshl_b32 s{sT}, s{sP}, 10")
    A(f"s_add_u32 s{sT}, s{sT}, s{sKVo}")
    A("s_waitcnt lgkmcnt(0)")
    srd(SWS, 16, WS_BYTES)
    for w in range(8):
        A(f"buffer_store_dwordx4 {vr(vT+4,4)}, v{vA_lin}, {sr(SWS,4)}, s{sT} offen sc1")
        if w < 7: A(f"s_add_u32 s{sT}, s{sT}, 8192")
    A(f"s_lshl_b32 s{sT}, s{sP}, 6")
    A(f"s_add_u32 s{sZo}, s{sT}, s{sZo}")
    A("s_mov_b64 exec, 15")
    A(f"buffer_store_dwordx4 {vr(vT+4,4)}, v{vA_lin}, {sr(SWS,4)}, s{sZo} offen sc1")
    A("s_mov_b64 exec, -1")
    srd(SDB, 14, 256)
    A(f"s_lshl_b32 s{sKVo2}, s{sH}, 3")
    A(f"s_add_u32 s{sT}, s{sKVo2}, s{sP}")
    A(f"v_mov_b32 v{vT+8}, 1")
    A(f"v_mov_b32 v{vT+9}, 0")
    A(f"ds_write_b32 v{vA_fl}, v{vT+9}")
    A(f"v_mov_b32 v{vT+12}, 0x3f803f80")
    for i in range(1, 4): A(f"v_mov_b32 v{vT+12+i}, v{vT+12}")
    if stamps:
        A(f"s_memrealtime {sr(sSt+2,2)}")
    A("s_waitcnt lgkmcnt(0)")
    A("s_barrier")
    A("s_mov_b64 exec, 1")
    A("s_waitcnt vmcnt(0)")
    if sig == 'byte':
        A(f"buffer_store_byte v{vT+8}, off, {sr(SDB,4)}, s{sT} sc1")
    else:
        A(f"buffer_atomic_add v{vT+8}, off, {sr(SDB,4)}, s{sKVo2} sc1")
    A("s_mov_b64 exec, -1")
    if stamps:
        A(f"s_memrealtime {sr(sSt+4,2)}")
    A("s_barrier")
    A(f"buffer_load_dwordx2 {vr(vT+10,2)}, off, {sr(SDB,4)}, s{sKVo2} sc1")
    for b in range(8):
        A(f"ds_read_b128 {vr(vK+4*b,4)}, v{vA_phi} offset:{1024*b}")
    for b in range(8):
        A(f"s_waitcnt lgkmcnt({7-b})")
        A(f"v_mfma_f32_16x16x32_bf16 {vr(vP,4)}, {vr(vK+4*b,4)}, {vr(vT+12,4)}, {'0' if b==0 else vr(vP,4)}")
    A("s_nop 7")
    for i in range(4): A(f"v_min_u32 v{vP+i}, -2, v{vP+i}")
    A("s_mov_b32 exec_lo, 0x00010001")
    A("s_mov_b32 exec_hi, 0x00010001")
    A(f"buffer_store_dwordx4 {vr(vP,4)}, v{vT+3}, {sr(SWS,4)}, s{sZo} offen sc1")
    A("s_mov_b64 exec, -1")
    A("s_waitcnt vmcnt(1)")
    LB("L_flagchk")
    if sig == 'byte':
        A(f"v_and_b32 v{vT+10}, v{vT+10}, v{vT+11}")
        A(f"v_cmp_ne_u32 vcc, 0x01010101, v{vT+10}")
    else:
        A(f"v_cmp_gt_u32 vcc, 8, v{vT+10}")
    A("s_cbranch_vccz L_flagok")
    A(f"s_sub_u32 s{sSpin}, s{sSpin}, 1")
    A("s_cbranch_scc1 L_flagok")
    A(f"buffer_load_dwordx2 {vr(vT+10,2)}, off, {sr(SDB,4)}, s{sKVo2} sc1")
    A("s_waitcnt vmcnt(0)")
    A("s_branch L_flagchk")
    LB("L_flagok")
    A(f"ds_write_b32 v{vA_fl}, v{vT+8}")
    if stamps:
        for i in range(3, 9): A(f"s_memrealtime {sr(sSt+2*i,2)}")
        A("s_branch L_fin")
    else:
        A("s_endpgm")
    return HEADER.format(lds=LDS_TOTAL) + "\n".join(L) + FOOTER.format(vgpr=NV, sgpr=102 if stamps else 80, acc=NV)

if __name__ == '__main__':
    out = sys.argv[1]
    kw = {}
    for a in sys.argv[2:]:
        k, v = a.split('=')
        kw[k] = v if k in ('ld', 'st', 'sig') else (tuple(map(int, v.split(','))) if k == 'rot' else int(v))
    open(out, 'w').write(gen(**kw))
```

```python
import sys, struct

def f2u(x): return struct.unpack('<I', struct.pack('<f', x))[0]

HEADER = """; Kernarg layout for this problem (56 bytes, ptrs only, base s[0:1]):
;   offset  40: d_debug   256 bytes
;   offset  48: d_ws      268435456 bytes workspace
; @launch grid=(256,1,1) block=(640,1,1) lds={lds}
.amdgcn_target "amdgcn-amd-amdhsa--gfx950"
.text
.globl standalone__linear_kernel_rfa__prompt_kernel
.p2align 8
.type standalone__linear_kernel_rfa__prompt_kernel,@function
standalone__linear_kernel_rfa__prompt_kernel:
"""
FOOTER = """
.section .rodata,"a"
.p2align 6
.amdhsa_kernel standalone__linear_kernel_rfa__prompt_kernel
  .amdhsa_next_free_vgpr {vgpr}
  .amdhsa_next_free_sgpr {sgpr}
  .amdhsa_accum_offset {acc}
  .amdhsa_group_segment_fixed_size 0
  .amdhsa_kernarg_size 56
  .amdhsa_user_sgpr_count 2
  .amdhsa_user_sgpr_kernarg_segment_ptr 1
  .amdhsa_system_sgpr_workgroup_id_x 1
  .amdhsa_float_denorm_mode_32 3
  .amdhsa_float_denorm_mode_16_64 3
.end_amdhsa_kernel
"""

LDS_V, LDS_KQ, LDS_PHI, LDS_KVT, LDS_OM, LDS_FLAG = 0, 65536, 131072, 139264, 143360, 147456
LDS_TOTAL = 147520
WS_Z = 2 << 20
WS_BYTES = 4 << 20
WS_STAMP = 3 << 20
NW = 10

def gen(ld='nt', st='sc1', stamps=False, W=28, gat=0, spin=200000, sig='byte', lw=0, hw=1, lprio=3, hprio=2, slp=1, pre=6, rot=(4,15), gfirst=1, noclear=0, dbgst=0):
    L = []
    def A(s): L.append("    " + s)
    def LB(s): L.append(s + ":")
    def vr(a, n): return f"v[{a}:{a+n-1}]"
    def sr(a, n): return f"s[{a}:{a+n-1}]"
    G = W // 4
    SQ, SK, SV, SO, SOM, SWS, SDB = 24, 28, 32, 36, 40, 44, 48
    sBase, sBase2, sW, sH, sP, sWr = 52, 53, 54, 55, 56, 57
    sScale, sL2E, sQuart = 58, 60, 62
    sM = [64, 66, 68, 70]
    sHi = 72
    sKVo, sKVo2, sZo, sT, sSpin, sM0, sSpin2 = 73, 74, 75, 76, 77, 78, 79
    sSt = 80
    sNeed, sRot = 18, 19
    vLane, vA_kq, vA_v0, vA_v1, vA_lin, vA_tr, vA_phi, vA_kvw = 1, 2, 3, 4, 5, 6, 7, 8
    vA_z, vA_kvr, vA_o, vA_phw = 9, 10, 14, 15
    vA_fl = vLane
    vPHQ = 16
    vEps = 18
    vNH = 20
    vXA = 22
    vOM = 24
    vK = 40
    vX = 72
    vO = 88
    vT = 104
    vP = 120
    vG = 124
    vB = 128
    vKVB, vZg, vZB, vD = 128, 144, 148, 152
    vA_kr = 160
    vA_kd = 40
    NV = 164
    nst = [0]
    def stamp():
        if stamps:
            A(f"s_memrealtime {sr(sSt + 2*nst[0], 2)}")
            nst[0] += 1
    def srd(d, b, n):
        A(f"s_mov_b32 s{d}, s{b}"); A(f"s_mov_b32 s{d+1}, s{b+1}")
        A(f"s_mov_b32 s{d+2}, {n}"); A(f"s_mov_b32 s{d+3}, 0x20000")

    A("s_cmp_ge_u32 s2, 256")
    A("s_cbranch_scc1 L_end")
    stamp()
    A("s_load_dwordx8 s[4:11], s[0:1], 0")
    A("s_load_dwordx4 s[12:15], s[0:1], 32")
    A("s_load_dwordx2 s[16:17], s[0:1], 48")
    A(f"v_lshrrev_b32 v{vT}, 6, v0")
    A(f"v_and_b32 v{vLane}, 63, v0")
    A(f"v_readfirstlane_b32 s{sWr}, v{vT}")
    A(f"s_and_b32 s{sH}, s2, 31")
    A(f"s_lshr_b32 s{sP}, s2, 5")
    vc, vg = vT + 1, vT + 2
    A(f"v_and_b32 v{vc}, 15, v{vLane}")
    A(f"v_lshrrev_b32 v{vg}, 4, v{vLane}")
    A(f"v_lshlrev_b32 v{vA_lin}, 4, v{vLane}")
    A(f"v_lshlrev_b32 v{vT+3}, 4, v{vg}")
    A(f"v_xor_b32 v{vT+4}, v{vc}, v{vg}")
    A(f"v_lshlrev_b32 v{vT+4}, 4, v{vT+4}")
    A(f"s_lshl_b32 s{sBase}, s{sH}, 19")
    A(f"s_lshl_b32 s{sT}, s{sP}, 16")
    A(f"s_add_u32 s{sBase}, s{sBase}, s{sT}")
    A(f"s_lshr_b32 s{sRot}, s2, {rot[0]}")
    A(f"s_and_b32 s{sRot}, s{sRot}, {rot[1]}")
    A(f"s_lshl_b32 s{sRot}, s{sRot}, 12")
    A(f"v_mov_b32 v{vA_fl}, {LDS_FLAG}")
    A(f"s_cmp_eq_u32 s{sWr}, {lw}")
    A("s_cbranch_scc1 L_loader")
    A(f"s_lshl_b32 s{sKVo}, s{sH}, 16")
    A(f"s_lshl_b32 s{sZo}, s{sH}, 9")
    A(f"s_add_u32 s{sZo}, s{sZo}, {WS_Z}")
    A(f"v_add_u32 v{vA_phi}, {LDS_PHI}, v{vA_lin}")
    A(f"s_mov_b32 s{sSpin}, {spin}")
    A(f"s_cmp_eq_u32 s{sWr}, {hw}")
    A("s_cbranch_scc1 L_helper")
    A(f"s_mov_b32 s{sW}, s{sWr}")
    for special in sorted((lw, hw), reverse=True):
        A(f"s_cmp_gt_u32 s{sWr}, {special}")
        A(f"s_subb_u32 s{sW}, s{sW}, 0")
    A(f"s_lshl_b32 s{sM0}, s{sW}, 12")
    A(f"s_add_u32 s{sT}, s{sM0}, s{sRot}")
    A(f"s_and_b32 s{sT}, s{sT}, 0xffff")
    A(f"s_xor_b32 s{sBase2}, s{sT}, 0x8000")
    A(f"s_add_u32 s{sBase2}, s{sBase}, s{sBase2}")
    A(f"s_add_u32 s{sBase}, s{sBase}, s{sT}")
    A(f"s_add_u32 s{sT}, s{sM0}, {LDS_KQ}")
    A(f"s_lshl_b32 s{sM0}, s{sW}, 13")
    A(f"v_lshl_add_u32 v{vT+4}, v{vc}, 8, v{vT+4}")
    A(f"v_add_u32 v{vA_kr}, s{sT}, v{vT+4}")
    for i in range(1, 4):
        A(f"v_xor_b32 v{vA_kr+i}, {64*i}, v{vA_kr}")
    A(f"s_add_u32 s{sKVo}, s{sKVo}, s{sM0}")
    A(f"s_add_u32 s{sKVo2}, s{sKVo}, 4096")
    sc = f2u(128.0 ** -0.25)
    A(f"s_mov_b32 s{sScale}, {sc:#x}"); A(f"s_mov_b32 s{sScale+1}, {sc:#x}")
    l2e = f2u(1.4426950408889634)
    A(f"s_mov_b32 s{sL2E}, {l2e:#x}"); A(f"s_mov_b32 s{sL2E+1}, {l2e:#x}")
    A(f"s_mov_b32 s{sQuart}, {f2u(0.25):#x}"); A(f"s_mov_b32 s{sQuart+1}, {f2u(0.25):#x}")
    for r in range(4):
        A(f"s_mov_b32 s{sM[r]}, {(1<<r)|(1<<(20+r)):#x}")
        A(f"s_mov_b32 s{sM[r]+1}, {(1<<(8+r))|(1<<(28+r)):#x}")
    A(f"s_mov_b32 s{sHi}, 0xffff0000")
    A(f"s_mov_b32 s{sSpin2}, {spin*16}")
    A(f"v_mov_b32 v{vEps}, {f2u(1e-6):#x}"); A(f"v_mov_b32 v{vEps+1}, {f2u(1e-6):#x}")
    A(f"v_mov_b32 v{vNH}, 0xbf00bf00"); A(f"v_mov_b32 v{vNH+1}, 0xbf00bf00")
    A(f"v_mov_b32 v{vXA+1}, 0")
    A(f"s_lshl_b32 s{sT}, s{sW}, 10")
    A(f"v_add_u32 v{vA_phw}, s{sT}, v{vA_phi}")
    A(f"v_lshrrev_b32 v{vT+4}, 2, v{vc}")
    A(f"v_lshl_add_u32 v{vT+4}, v{vg}, 2, v{vT+4}")
    A(f"v_and_b32 v{vT+5}, 7, v{vT+4}")
    A(f"v_xor_b32 v{vT+5}, s{sW}, v{vT+5}")
    A(f"v_lshlrev_b32 v{vT+5}, 5, v{vT+5}")
    A(f"v_lshl_add_u32 v{vT+5}, v{vT+4}, 8, v{vT+5}")
    A(f"v_and_b32 v{vT+6}, 3, v{vc}")
    A(f"v_lshl_add_u32 v{vA_tr}, v{vT+6}, 3, v{vT+5}")
    A(f"s_lshr_b32 s{sT}, s{sW}, 1")
    A(f"v_bfe_u32 v{vT+4}, v{vc}, 1, 2")
    A(f"v_xor_b32 v{vT+4}, s{sT}, v{vT+4}")
    A(f"v_lshlrev_b32 v{vT+4}, 4, v{vT+4}")
    A(f"v_and_b32 v{vT+5}, 1, v{vc}")
    A(f"v_lshl_add_u32 v{vT+4}, v{vT+5}, 3, v{vT+4}")
    A(f"v_lshrrev_b32 v{vT+5}, 3, v{vc}")
    A(f"v_lshl_add_u32 v{vT+4}, v{vT+5}, 6, v{vT+4}")
    A(f"v_lshl_add_u32 v{vT+4}, v{vg}, 10, v{vT+4}")
    A(f"s_lshl_b32 s{sT}, s{sW}, 7")
    A(f"s_add_u32 s{sT}, s{sT}, {LDS_KVT}")
    A(f"v_add_u32 v{vA_kvw}, s{sT}, v{vT+4}")
    A(f"v_lshrrev_b32 v{vT+4}, 2, v{vc}")
    A(f"v_lshlrev_b32 v{vT+4}, 4, v{vT+4}")
    A(f"v_lshl_add_u32 v{vT+4}, v{vc}, 6, v{vT+4}")
    A(f"v_lshl_add_u32 v{vT+4}, v{vg}, 10, v{vT+4}")
    A(f"v_add_u32 v{vA_kvr}, {LDS_KVT}, v{vT+4}")
    for k in range(1, 4):
        A(f"v_xor_b32 v{vA_kvr+k}, {16*k}, v{vA_kvr}")
    A(f"v_and_b32 v{vT+4}, 7, v{vc}")
    A(f"v_lshl_add_u32 v{vA_z}, v{vT+4}, 6, v{vT+3}")
    A(f"v_lshlrev_b32 v{vT+4}, 4, v{vc}")
    A(f"v_lshl_add_u32 v{vA_o}, v{vg}, 10, v{vT+4}")
    A("s_waitcnt lgkmcnt(0)")
    srd(SO, 12, 1 << 24); srd(SWS, 16, WS_BYTES)
    A("s_barrier")

    npoll = [0]
    def waitprog(base, perwave, sleep=True, flag=False):
        n = npoll[0]; npoll[0] += 1
        if perwave: A(f"s_add_u32 s{sNeed}, s{sW}, {base}")
        else: A(f"s_mov_b32 s{sNeed}, {base}")
        LB(f"L_p{n}")
        A(f"ds_read_b64 {vr(vT,2)}, v{vA_fl}")
        A("s_waitcnt lgkmcnt(0)")
        if flag:
            A(f"v_mul_lo_u32 v{vT+1}, v{vT+1}, v{vT}")
        A(f"v_cmp_le_i32 vcc, s{sNeed}, v{vT+1}")
        A(f"s_cbranch_vccnz L_pk{n}")
        if sleep and slp: A(f"s_sleep {slp}")
        A(f"s_sub_u32 s{sSpin2}, s{sSpin2}, 1")
        A(f"s_cbranch_scc0 L_p{n}")
        A(f"s_mov_b32 s{sSpin2}, 0")
        LB(f"L_pk{n}")
    def rdkq(t):
        for s in range(4):
            A(f"ds_read_b128 {vr(vX+4*s,4)}, v{vA_kr+s} offset:{t*32768}")

    def scale4(base):
        for i in range(4):
            A(f"v_lshlrev_b32 v{vT+2*i}, 16, v{base+i}")
            A(f"v_and_b32 v{vT+2*i+1}, s{sHi}, v{base+i}")
        for i in range(4):
            A(f"v_pk_mul_f32 {vr(vT+2*i,2)}, {vr(vT+2*i,2)}, {sr(sScale,2)}")
        for i in range(4):
            A(f"v_cvt_pk_bf16_f32 v{base+i}, v{vT+2*i}, v{vT+2*i+1}")

    def round4(dst, src, t):
        A(f"v_cvt_pk_bf16_f32 v{t}, v{src}, v{src+1}")
        A(f"v_cvt_pk_bf16_f32 v{t+1}, v{src+2}, v{src+3}")
        A(f"v_lshlrev_b32 v{dst}, 16, v{t}")
        A(f"v_and_b32 v{dst+1}, s{sHi}, v{t}")
        A(f"v_lshlrev_b32 v{dst+2}, 16, v{t+1}")
        A(f"v_and_b32 v{dst+3}, s{sHi}, v{t+1}")

    def phi(isq, out):
        base = vX
        for s in range(4):
            A(f"s_waitcnt lgkmcnt({3-s})")
            scale4(base + 4*s)
            if s > 0:
                x = vr(base+4*(s-1), 4); o = vr(vOM+4*(s-1), 4)
                c0 = "0" if s == 1 else vr(vG, 4); c1 = "0" if s == 1 else vr(vP, 4)
                A(f"v_mfma_f32_16x16x32_bf16 {vr(vG,4)}, {x}, {x}, {c0}")
                A(f"v_mfma_f32_16x16x32_bf16 {vr(vP,4)}, {o if isq else x}, {x if isq else o}, {c1}")
        x = vr(base+12, 4); o = vr(vOM+12, 4)
        A("s_nop 1")
        A(f"v_mfma_f32_16x16x32_bf16 {vr(vG,4)}, {x}, {x}, {vr(vG,4)}")
        A(f"v_mfma_f32_16x16x32_bf16 {vr(vP,4)}, {o if isq else x}, {x if isq else o}, {vr(vP,4)}")
        A("s_nop 6")
        A(f"v_cndmask_b32 v{vT}, 0, v{vG}, {sr(sM[0],2)}")
        for r in range(1, 4):
            A(f"v_cndmask_b32 v{vT}, v{vT}, v{vG+r}, {sr(sM[r],2)}")
        A(f"v_cvt_pk_bf16_f32 v{vXA}, v{vT}, v{vXA+1}")
        round4(vT+4, vP, vT+2)
        A("s_nop 1")
        a, b = (vr(vNH,2), vr(vXA,2)) if isq else (vr(vXA,2), vr(vNH,2))
        A(f"v_mfma_f32_16x16x16_bf16 {vr(vP,4)}, {a}, {b}, {vr(vT+4,4)}")
        A("s_nop 7")
        round4(vT+8, vP, vT+2)
        A(f"v_pk_mul_f32 {vr(vT+8,2)}, {vr(vT+8,2)}, {sr(sL2E,2)}")
        A(f"v_pk_mul_f32 {vr(vT+10,2)}, {vr(vT+10,2)}, {sr(sL2E,2)}")
        for i in range(4):
            A(f"v_exp_f32 v{vT+8+i}, v{vT+8+i}")
        A("s_nop 0")
        round4(vT+12, vT+8, vT+2)
        A(f"v_pk_fma_f32 {vr(vT+12,2)}, {vr(vT+12,2)}, {sr(sQuart,2)}, {vr(vEps,2)}")
        A(f"v_pk_fma_f32 {vr(vT+14,2)}, {vr(vT+14,2)}, {sr(sQuart,2)}, {vr(vEps,2)}")
        A(f"v_cvt_pk_bf16_f32 v{out}, v{vT+12}, v{vT+13}")
        A(f"v_cvt_pk_bf16_f32 v{out+1}, v{vT+14}, v{vT+15}")

    waitprog(2, True)
    stamp()
    for s in range(4):
        A(f"ds_read_b128 {vr(vOM+4*s,4)}, v{vA_phi} offset:{LDS_OM-LDS_PHI+1024*s}")
    rdkq(0)
    phi(False, vK)
    waitprog(10, True)
    stamp()
    rdkq(1)
    phi(False, vK+2)
    A(f"ds_write_b128 v{vA_phw}, {vr(vK,4)}")
    A("s_waitcnt lgkmcnt(0)")
    A("s_barrier")
    stamp()
    for b in range(8):
        A(f"ds_read_b128 {vr(vK+4*b,4)}, v{vA_phi} offset:{1024*b}")
    waitprog(33, False, sleep=False)
    stamp()
    for b in range(8):
        A(f"ds_read_b64_tr_b16 {vr(vB+4*b,2)}, v{vA_tr} offset:{4096*b}")
        A(f"ds_read_b64_tr_b16 {vr(vB+4*b+2,2)}, v{vA_tr} offset:{4096*b+32768}")
    for b in range(8):
        A(f"s_waitcnt lgkmcnt({14-2*b})")
        A(f"v_mfma_f32_16x16x32_bf16 {vr(vP,4)}, {vr(vK+4*b,4)}, {vr(vB+4*b,4)}, {'0' if b==0 else vr(vP,4)}")
    A(f"s_lshl_b32 s{sT}, s{sP}, 10")
    A(f"s_add_u32 s{sT}, s{sT}, s{sKVo}")
    A("s_nop 5")
    for i in range(4): A(f"v_min_u32 v{vP+i}, -2, v{vP+i}")
    A(f"buffer_store_dwordx4 {vr(vP,4)}, v{vA_lin}, {sr(SWS,4)}, s{sT} offen sc1")
    stamp()
    vGa = vK
    def gather():
        for p in range(8):
            A(f"buffer_load_dwordx4 {vr(vGa+4*p,4)}, v{vA_lin}, {sr(SWS,4)}, s{sKVo + p//4} offen offset:{(p%4)*1024} sc1")
        A(f"buffer_load_dwordx4 {vr(vZg,4)}, v{vA_z}, {sr(SWS,4)}, s{sZo} offen sc1")
    if gfirst:
        waitprog(gat if gat else 49 - G, False, flag=True)
        gather()
        stamp()
        waitprog(34, True)
        rdkq(0)
        phi(True, vPHQ)
    else:
        waitprog(34, True)
        rdkq(0)
        phi(True, vPHQ)
        waitprog(gat if gat else 49 - G, False, flag=True)
        gather()
        stamp()
    A("s_waitcnt vmcnt(0)")
    LB("L_gsum")
    vS = vT
    A(f"v_pk_add_f32 {vr(vS,2)}, {vr(vGa,2)}, {vr(vGa+4,2)}")
    A(f"v_pk_add_f32 {vr(vS+2,2)}, {vr(vGa+2,2)}, {vr(vGa+6,2)}")
    for i in range(4):
        A(f"v_add_f32_dpp v{vT+4+i}, v{vZg+i}, v{vZg+i} quad_perm:[1,0,3,2] row_mask:0xf bank_mask:0xf")
    for p in range(2, 5):
        A(f"v_pk_add_f32 {vr(vS,2)}, {vr(vS,2)}, {vr(vGa+4*p,2)}")
        A(f"v_pk_add_f32 {vr(vS+2,2)}, {vr(vS+2,2)}, {vr(vGa+4*p+2,2)}")
    for i in range(4):
        A(f"v_add_f32_dpp v{vT+8+i}, v{vT+4+i}, v{vT+4+i} quad_perm:[2,3,0,1] row_mask:0xf bank_mask:0xf")
    for p in range(5, 8):
        A(f"v_pk_add_f32 {vr(vS,2)}, {vr(vS,2)}, {vr(vGa+4*p,2)}")
        A(f"v_pk_add_f32 {vr(vS+2,2)}, {vr(vS+2,2)}, {vr(vGa+4*p+2,2)}")
    for i in range(4):
        A(f"v_add_f32_dpp v{vT+4+i}, v{vT+8+i}, v{vT+8+i} row_half_mirror row_mask:0xf bank_mask:0xf")
    A(f"v_pk_add_f32 {vr(vT+8,2)}, {vr(vS,2)}, {vr(vS+2,2)}")
    A(f"v_pk_add_f32 {vr(vT+10,2)}, {vr(vT+4,2)}, {vr(vT+6,2)}")
    A(f"v_pk_add_f32 {vr(vT+8,2)}, {vr(vT+8,2)}, {vr(vT+10,2)}")
    A(f"v_cvt_pk_bf16_f32 v{vT+12}, v{vS}, v{vS+1}")
    A(f"v_cmp_u_f32 vcc, v{vT+8}, v{vT+9}")
    A(f"v_cvt_pk_bf16_f32 v{vT+13}, v{vS+2}, v{vS+3}")
    A("s_cbranch_vccnz L_gcheck")
    LB("L_gok")
    A(f"ds_write_b64 v{vA_kvw}, {vr(vT+12,2)}")
    A(f"v_cvt_pk_bf16_f32 v{vZB}, v{vT+4}, v{vT+5}")
    A(f"v_cvt_pk_bf16_f32 v{vZB+1}, v{vT+6}, v{vT+7}")
    stamp()
    def den():
        A(f"v_mfma_f32_16x16x16_bf16 {vr(vD,4)}, {vr(vPHQ,2)}, {vr(vZB,2)}, 0")
    def den2():
        round4(vD, vD, vT)
        A(f"v_pk_add_f32 {vr(vD,2)}, {vr(vD,2)}, {vr(vEps,2)}")
        A(f"v_pk_add_f32 {vr(vD+2,2)}, {vr(vD+2,2)}, {vr(vEps,2)}")
        round4(vD, vD, vT)
        for i in range(4): A(f"v_rcp_f32 v{vD+i}, v{vD+i}")
    A("s_nop 1")
    den()
    A("s_waitcnt lgkmcnt(0)")
    A("s_barrier")
    for k in range(4):
        A(f"ds_read_b128 {vr(vKVB+4*k,4)}, v{vA_kvr+k}")
    A("s_nop 1")
    den2()
    vN = vK
    def outtile(t):
        for r in range(4):
            o = vO + 4*r
            for j in range(4):
                A(f"v_cvt_pk_bf16_f32 v{vT+8+j}, v{vN+8*j+r}, v{vN+8*j+4+r}")
            for j in range(4):
                A(f"v_lshlrev_b32 v{vT+2*j}, 16, v{vT+8+j}")
                A(f"v_and_b32 v{vT+2*j+1}, s{sHi}, v{vT+8+j}")
            pr = vD + (r & ~1)
            sel = "op_sel:[0,1] op_sel_hi:[1,1]" if (r & 1) else "op_sel:[0,0] op_sel_hi:[1,0]"
            for j in range(4):
                A(f"v_pk_mul_f32 {vr(vT+2*j,2)}, {vr(vT+2*j,2)}, {vr(pr,2)} {sel}")
            for j in range(4):
                A(f"v_cvt_pk_bf16_f32 v{o+j}, v{vT+2*j}, v{vT+2*j+1}")
            A(f"buffer_store_dwordx4 {vr(o,4)}, v{vA_o}, {sr(SO,4)}, s{sBase+t} offen offset:{256*r} {st}")
    for k in range(4):
        A(f"s_waitcnt lgkmcnt({3-k})")
        for j in range(2):
            dd = 2*k + j
            A(f"v_mfma_f32_16x16x16_bf16 {vr(vN+4*dd,4)}, {vr(vPHQ,2)}, {vr(vKVB+2*dd,2)}, 0")
    A("s_nop 7")
    outtile(0)
    stamp()
    waitprog(42, True)
    rdkq(1)
    phi(True, vPHQ)
    A("s_nop 1")
    den()
    for dd in range(8):
        A(f"v_mfma_f32_16x16x16_bf16 {vr(vN+4*dd,4)}, {vr(vPHQ,2)}, {vr(vKVB+2*dd,2)}, 0")
    den2()
    outtile(1)
    LB("L_fin")
    if stamps:
        stamp()
        A("s_waitcnt vmcnt(0)")
        stamp()
        A("s_waitcnt lgkmcnt(0)")
        assert nst[0] <= 11, nst[0]
        for i in range(12):
            A(f"v_mov_b32 v{vK+i}, s{sSt+2*i}" if i < nst[0] else f"v_mov_b32 v{vK+i}, s{sSpin}")
        if dbgst:
            srd(SDB, 14, 256)
            A("s_mov_b64 exec, 1")
            A(f"s_cmp_lg_u32 s{sWr}, 9")
            A("s_cbranch_scc1 L_d1")
            A(f"v_not_b32 v{vK+11}, v{vK}")
            A(f"buffer_atomic_umax v{vK+11}, off, {sr(SDB,4)}, 0 offset:56 sc1")
            A(f"buffer_atomic_umax v{vK+10}, off, {sr(SDB,4)}, 0 offset:60 sc1")
            LB("L_d1")
            A(f"s_cmp_lg_u32 s2, {dbgst}")
            A("s_cbranch_scc1 L_end")
            A(f"s_cmp_lg_u32 s{sWr}, 9")
            A("s_cbranch_scc1 L_d2")
            for i in range(11):
                A(f"buffer_store_dword v{vK+i}, off, {sr(SDB,4)}, 0 offset:{4*i} sc1")
            A("s_endpgm")
            LB("L_d2")
            A(f"s_cmp_lg_u32 s{sWr}, {lw}")
            A("s_cbranch_scc1 L_d3")
            A(f"buffer_store_dword v{vK+5}, off, {sr(SDB,4)}, 0 offset:44 sc1")
            A(f"buffer_store_dword v{vK+4}, off, {sr(SDB,4)}, 0 offset:48 sc1")
            A("s_endpgm")
            LB("L_d3")
            A(f"s_cmp_lg_u32 s{sWr}, {hw}")
            A("s_cbranch_scc1 L_end")
            A(f"buffer_store_dword v{vK+3}, off, {sr(SDB,4)}, 0 offset:52 sc1")
            A("s_endpgm")
        A(f"s_mul_i32 s{sT}, s2, {NW}")
        A(f"s_add_u32 s{sT}, s{sT}, s{sWr}")
        A(f"s_mul_i32 s{sT}, s{sT}, 48")
        A(f"s_add_u32 s{sT}, s{sT}, {WS_STAMP}")
        A("s_mov_b64 exec, 1")
        for i in range(3):
            A(f"buffer_store_dwordx4 {vr(vK+4*i,4)}, off, {sr(SWS,4)}, s{sT} offset:{16*i}")
    LB("L_end")
    A("s_endpgm")
    LB("L_gcheck")
    A(f"v_max3_u32 v{vT+14}, v{vZg}, v{vZg+1}, v{vZg+2}")
    A(f"v_max_u32 v{vT+14}, v{vT+14}, v{vZg+3}")
    for i in range(16):
        A(f"v_max3_u32 v{vT+14}, v{vT+14}, v{vGa+2*i}, v{vGa+2*i+1}")
    A(f"v_cmp_eq_u32 vcc, -1, v{vT+14}")
    A("s_cbranch_vccz L_gok")
    A(f"s_sub_u32 s{sSpin}, s{sSpin}, 1")
    A("s_cbranch_scc1 L_gok")
    gather()
    A("s_waitcnt vmcnt(0)")
    A("s_branch L_gsum")

    LB("L_loader")
    if lprio: A(f"s_setprio {lprio}")
    A(f"v_lshl_add_u32 v{vA_kq}, v{vc}, 8, v{vT+3}")
    A(f"v_lshl_add_u32 v{vA_kd}, v{vg}, 8, v{vT+4}")
    for i in range(1, 4):
        A(f"v_xor_b32 v{vA_kd+i}, {64*i}, v{vA_kd}")
    A(f"v_lshlrev_b32 v{vT+5}, 1, v{vg}")
    A(f"v_xor_b32 v{vT+5}, v{vT+5}, v{vc}")
    A(f"v_lshlrev_b32 v{vT+5}, 4, v{vT+5}")
    A(f"v_lshl_add_u32 v{vA_v0}, v{vg}, 8, v{vT+5}")
    A(f"v_xor_b32 v{vA_v1}, 128, v{vA_v0}")
    A(f"v_mov_b32 v{vT+6}, 0")
    A(f"ds_write_b32 v{vA_fl}, v{vT+6} offset:4")
    A("s_waitcnt lgkmcnt(0)")
    srd(SOM, 10, 4096); srd(SK, 6, 1 << 24)
    def tile_off(j): return (j & 7) * 8192 + (j >> 3) * 4096
    ngroups = 49
    def signal(p):
        A(f"v_mov_b32 v{vT+6+(p&1)}, {p}")
        A(f"ds_write_b32 v{vA_fl}, v{vT+6+(p&1)} offset:4")
    for n in range(ngroups):
        if n == 0:
            for s in range(4):
                A(f"s_mov_b32 m0, {LDS_OM + s*1024 - s*64}")
                A("s_nop 0")
                A(f"buffer_load_dwordx4 v{vA_kq}, {sr(SOM,4)}, 0 offen offset:{64*s} lds")
        else:
            if n <= 16: S, off, ldsb, regs = SK, (n-1)*4096, LDS_KQ, [vA_kd+i for i in range(4)]
            elif n <= 32: S, off, ldsb, regs = SV, (n-17)*4096, LDS_V, [vA_v0, vA_v1, vA_v0, vA_v1]
            else: S, off, ldsb, regs = SQ, (n-33)*4096, LDS_KQ, [vA_kd+i for i in range(4)]
            if n == 33:
                if stamps: A(f"s_memrealtime {sr(sSt+4,2)}")
                A("s_barrier")
                if stamps: A(f"s_memrealtime {sr(sSt+6,2)}")
            A(f"s_mov_b32 m0, {ldsb + off}")
            A(f"s_add_u32 s{sT}, s{sRot}, {off}")
            A(f"s_and_b32 s{sT}, s{sT}, 0xffff")
            A(f"s_add_u32 s{sT}, s{sBase}, s{sT}")
            for i in range(4):
                A(f"buffer_load_dwordx4 v{regs[i]}, {sr(S,4)}, s{sT} offen offset:{i*1024} {ld} lds")
        if n == 1: srd(SV, 8, 1 << 24); srd(SQ, 4, 1 << 24)
        if n == pre:
            A("s_barrier")
            if stamps: A(f"s_memrealtime {sr(sSt+2,2)}")
        if n >= G:
            A(f"s_waitcnt vmcnt({W})")
            signal(n + 1 - G)
    if stamps: A(f"s_memrealtime {sr(sSt+8,2)}")
    for k in range(G - 1, -1, -1):
        A(f"s_waitcnt vmcnt({4*k})")
        signal(ngroups - k)
    if stamps:
        for i in range(5, 9): A(f"s_memrealtime {sr(sSt+2*i,2)}")
        srd(SWS, 16, WS_BYTES)
        A(f"s_mov_b32 s{sSpin}, {spin}")
        A("s_branch L_fin")
    else:
        A("s_endpgm")

    LB("L_helper")
    if hprio: A(f"s_setprio {hprio}")
    for i in range(4): A(f"v_mov_b32 v{vT+4+i}, -1")
    A(f"s_lshl_b32 s{sT}, s{sP}, 10")
    A(f"s_add_u32 s{sT}, s{sT}, s{sKVo}")
    A("s_waitcnt lgkmcnt(0)")
    srd(SWS, 16, WS_BYTES)
    for w in range(8):
        A(f"buffer_store_dwordx4 {vr(vT+4,4)}, v{vA_lin}, {sr(SWS,4)}, s{sT} offen sc1")
        if w < 7: A(f"s_add_u32 s{sT}, s{sT}, 8192")
    A(f"s_lshl_b32 s{sT}, s{sP}, 6")
    A(f"s_add_u32 s{sZo}, s{sT}, s{sZo}")
    A("s_mov_b64 exec, 15")
    A(f"buffer_store_dwordx4 {vr(vT+4,4)}, v{vA_lin}, {sr(SWS,4)}, s{sZo} offen sc1")
    A("s_mov_b64 exec, -1")
    srd(SDB, 14, 256)
    if sig == 'byte':
        A(f"s_lshl_b32 s{sKVo2}, s{sH}, 3")
    else:
        A(f"s_lshl_b32 s{sKVo2}, s{sH}, 2")
        A(f"s_add_u32 s{sKVo2}, s{sKVo2}, 128")
    A(f"s_add_u32 s{sT}, s{sKVo2}, s{sP}")
    A(f"v_mov_b32 v{vT+8}, 1")
    A(f"v_mov_b32 v{vT+9}, 0")
    A(f"ds_write_b32 v{vA_fl}, v{vT+9}")
    A(f"v_mov_b32 v{vT+12}, 0x3f803f80")
    for i in range(1, 4): A(f"v_mov_b32 v{vT+12+i}, v{vT+12}")
    if stamps:
        A(f"s_memrealtime {sr(sSt+2,2)}")
    A("s_waitcnt lgkmcnt(0)")
    A("s_barrier")
    A("s_mov_b64 exec, 1")
    A("s_waitcnt vmcnt(0)")
    if sig == 'byte':
        A(f"buffer_store_byte v{vT+8}, off, {sr(SDB,4)}, s{sT} sc1")
    else:
        A(f"buffer_atomic_add v{vT+8}, off, {sr(SDB,4)}, s{sKVo2} sc1")
    A("s_mov_b64 exec, -1")
    if stamps:
        A(f"s_memrealtime {sr(sSt+4,2)}")
    A("s_barrier")
    A(f"buffer_load_dwordx2 {vr(vT+10,2)}, off, {sr(SDB,4)}, s{sKVo2} sc1" if sig == 'byte' else f"buffer_load_dword v{vT+10}, off, {sr(SDB,4)}, s{sKVo2} sc1")
    for b in range(8):
        A(f"ds_read_b128 {vr(vK+4*b,4)}, v{vA_phi} offset:{1024*b}")
    for b in range(8):
        A(f"s_waitcnt lgkmcnt({7-b})")
        A(f"v_mfma_f32_16x16x32_bf16 {vr(vP,4)}, {vr(vK+4*b,4)}, {vr(vT+12,4)}, {'0' if b==0 else vr(vP,4)}")
    A("s_nop 7")
    for i in range(4): A(f"v_min_u32 v{vP+i}, -2, v{vP+i}")
    A("s_mov_b32 exec_lo, 0x00010001")
    A("s_mov_b32 exec_hi, 0x00010001")
    A(f"buffer_store_dwordx4 {vr(vP,4)}, v{vT+3}, {sr(SWS,4)}, s{sZo} offen sc1")
    A("s_mov_b64 exec, -1")
    A("s_waitcnt vmcnt(1)")
    LB("L_flagchk")
    if sig == 'byte':
        A(f"v_and_b32 v{vT+10}, v{vT+10}, v{vT+11}")
        A(f"v_cmp_ne_u32 vcc, 0x01010101, v{vT+10}")
    else:
        A(f"v_cmp_gt_u32 vcc, 8, v{vT+10}")
    A("s_cbranch_vccz L_flagok")
    A(f"s_sub_u32 s{sSpin}, s{sSpin}, 1")
    A("s_cbranch_scc1 L_flagok")
    A(f"buffer_load_dwordx2 {vr(vT+10,2)}, off, {sr(SDB,4)}, s{sKVo2} sc1" if sig == 'byte' else f"buffer_load_dword v{vT+10}, off, {sr(SDB,4)}, s{sKVo2} sc1")
    A("s_waitcnt vmcnt(0)")
    A("s_branch L_flagchk")
    LB("L_flagok")
    A(f"ds_write_b32 v{vA_fl}, v{vT+8}")
    if stamps:
        for i in range(3, 9): A(f"s_memrealtime {sr(sSt+2*i,2)}")
        A("s_branch L_fin")
    else:
        A("s_endpgm")
    return HEADER.format(lds=LDS_TOTAL) + "\n".join(L) + FOOTER.format(vgpr=NV, sgpr=102 if stamps else 80, acc=NV)

if __name__ == '__main__':
    out = sys.argv[1]
    kw = {}
    for a in sys.argv[2:]:
        k, v = a.split('=')
        kw[k] = v if k in ('ld', 'st', 'sig') else (tuple(map(int, v.split(','))) if k == 'rot' else int(v))
    open(out, 'w').write(gen(**kw))
```

```python
import sys, struct

def f2u(x): return struct.unpack('<I', struct.pack('<f', x))[0]

HEADER = """; Kernarg layout for this problem (56 bytes, ptrs only, base s[0:1]):
;   offset  40: d_debug   256 bytes
;   offset  48: d_ws      268435456 bytes workspace
; @launch grid=(256,1,1) block=(640,1,1) lds={lds}
.amdgcn_target "amdgcn-amd-amdhsa--gfx950"
.text
.globl standalone__linear_kernel_rfa__prompt_kernel
.p2align 8
.type standalone__linear_kernel_rfa__prompt_kernel,@function
standalone__linear_kernel_rfa__prompt_kernel:
"""
FOOTER = """
.section .rodata,"a"
.p2align 6
.amdhsa_kernel standalone__linear_kernel_rfa__prompt_kernel
  .amdhsa_next_free_vgpr {vgpr}
  .amdhsa_next_free_sgpr {sgpr}
  .amdhsa_accum_offset {acc}
  .amdhsa_group_segment_fixed_size 0
  .amdhsa_kernarg_size 56
  .amdhsa_user_sgpr_count 2
  .amdhsa_user_sgpr_kernarg_segment_ptr 1
  .amdhsa_system_sgpr_workgroup_id_x 1
  .amdhsa_float_denorm_mode_32 3
  .amdhsa_float_denorm_mode_16_64 3
.end_amdhsa_kernel
"""

LDS_V, LDS_KQ, LDS_PHI, LDS_KVT, LDS_OM, LDS_FLAG = 0, 65536, 131072, 139264, 143360, 147456
LDS_TOTAL = 147520
WS_Z = 2 << 20
WS_BYTES = 4 << 20
WS_STAMP = 3 << 20
NW = 10

def gen(ld='nt', st='sc1', stamps=False, W=28, gat=0, spin=200000, sig='byte', lw=0, hw=1, lprio=3, hprio=2, slp=1, pre=6, rot=(4,15), gfirst=1, noclear=0):
    L = []
    def A(s): L.append("    " + s)
    def LB(s): L.append(s + ":")
    def vr(a, n): return f"v[{a}:{a+n-1}]"
    def sr(a, n): return f"s[{a}:{a+n-1}]"
    G = W // 4
    SQ, SK, SV, SO, SOM, SWS, SDB = 24, 28, 32, 36, 40, 44, 48
    sBase, sBase2, sW, sH, sP, sWr = 52, 53, 54, 55, 56, 57
    sScale, sL2E, sQuart = 58, 60, 62
    sM = [64, 66, 68, 70]
    sHi = 72
    sKVo, sKVo2, sZo, sT, sSpin, sM0, sSpin2 = 73, 74, 75, 76, 77, 78, 79
    sSt = 80
    sNeed, sRot = 18, 19
    vLane, vA_kq, vA_v0, vA_v1, vA_lin, vA_tr, vA_phi, vA_kvw = 1, 2, 3, 4, 5, 6, 7, 8
    vA_z, vA_kvr, vA_o, vA_phw = 9, 10, 14, 15
    vA_fl = vLane
    vPHQ = 16
    vEps = 18
    vNH = 20
    vXA = 22
    vOM = 24
    vK = 40
    vX = 72
    vO = 88
    vT = 104
    vP = 120
    vG = 124
    vB = 128
    vKVB, vZg, vZB, vD = 128, 144, 148, 152
    vA_kr = 160
    vA_kd = 40
    NV = 164
    nst = [0]
    def stamp():
        if stamps:
            A(f"s_memrealtime {sr(sSt + 2*nst[0], 2)}")
            nst[0] += 1
    def srd(d, b, n):
        A(f"s_mov_b32 s{d}, s{b}"); A(f"s_mov_b32 s{d+1}, s{b+1}")
        A(f"s_mov_b32 s{d+2}, {n}"); A(f"s_mov_b32 s{d+3}, 0x20000")

    A("s_cmp_ge_u32 s2, 256")
    A("s_cbranch_scc1 L_end")
    stamp()
    A("s_load_dwordx8 s[4:11], s[0:1], 0")
    A("s_load_dwordx4 s[12:15], s[0:1], 32")
    A("s_load_dwordx2 s[16:17], s[0:1], 48")
    A(f"v_lshrrev_b32 v{vT}, 6, v0")
    A(f"v_and_b32 v{vLane}, 63, v0")
    A(f"v_readfirstlane_b32 s{sWr}, v{vT}")
    A(f"s_and_b32 s{sH}, s2, 31")
    A(f"s_lshr_b32 s{sP}, s2, 5")
    vc, vg = vT + 1, vT + 2
    A(f"v_and_b32 v{vc}, 15, v{vLane}")
    A(f"v_lshrrev_b32 v{vg}, 4, v{vLane}")
    A(f"v_lshlrev_b32 v{vA_lin}, 4, v{vLane}")
    A(f"v_lshlrev_b32 v{vT+3}, 4, v{vg}")
    A(f"v_xor_b32 v{vT+4}, v{vc}, v{vg}")
    A(f"v_lshlrev_b32 v{vT+4}, 4, v{vT+4}")
    A(f"s_lshl_b32 s{sBase}, s{sH}, 19")
    A(f"s_lshl_b32 s{sT}, s{sP}, 16")
    A(f"s_add_u32 s{sBase}, s{sBase}, s{sT}")
    A(f"s_lshr_b32 s{sRot}, s2, {rot[0]}")
    A(f"s_and_b32 s{sRot}, s{sRot}, {rot[1]}")
    A(f"s_lshl_b32 s{sRot}, s{sRot}, 12")
    A(f"v_mov_b32 v{vA_fl}, {LDS_FLAG}")
    A(f"s_cmp_eq_u32 s{sWr}, {lw}")
    A("s_cbranch_scc1 L_loader")
    A(f"s_lshl_b32 s{sKVo}, s{sH}, 16")
    A(f"s_lshl_b32 s{sZo}, s{sH}, 9")
    A(f"s_add_u32 s{sZo}, s{sZo}, {WS_Z}")
    A(f"v_add_u32 v{vA_phi}, {LDS_PHI}, v{vA_lin}")
    A(f"s_mov_b32 s{sSpin}, {spin}")
    A(f"s_cmp_eq_u32 s{sWr}, {hw}")
    A("s_cbranch_scc1 L_helper")
    A(f"s_mov_b32 s{sW}, s{sWr}")
    for special in sorted((lw, hw), reverse=True):
        A(f"s_cmp_gt_u32 s{sWr}, {special}")
        A(f"s_subb_u32 s{sW}, s{sW}, 0")
    A(f"s_lshl_b32 s{sM0}, s{sW}, 12")
    A(f"s_add_u32 s{sT}, s{sM0}, s{sRot}")
    A(f"s_and_b32 s{sT}, s{sT}, 0xffff")
    A(f"s_xor_b32 s{sBase2}, s{sT}, 0x8000")
    A(f"s_add_u32 s{sBase2}, s{sBase}, s{sBase2}")
    A(f"s_add_u32 s{sBase}, s{sBase}, s{sT}")
    A(f"s_add_u32 s{sT}, s{sM0}, {LDS_KQ}")
    A(f"s_lshl_b32 s{sM0}, s{sW}, 13")
    A(f"v_lshl_add_u32 v{vT+4}, v{vc}, 8, v{vT+4}")
    A(f"v_add_u32 v{vA_kr}, s{sT}, v{vT+4}")
    for i in range(1, 4):
        A(f"v_xor_b32 v{vA_kr+i}, {64*i}, v{vA_kr}")
    A(f"s_add_u32 s{sKVo}, s{sKVo}, s{sM0}")
    A(f"s_add_u32 s{sKVo2}, s{sKVo}, 4096")
    sc = f2u(128.0 ** -0.25)
    A(f"s_mov_b32 s{sScale}, {sc:#x}"); A(f"s_mov_b32 s{sScale+1}, {sc:#x}")
    l2e = f2u(1.4426950408889634)
    A(f"s_mov_b32 s{sL2E}, {l2e:#x}"); A(f"s_mov_b32 s{sL2E+1}, {l2e:#x}")
    A(f"s_mov_b32 s{sQuart}, {f2u(0.25):#x}"); A(f"s_mov_b32 s{sQuart+1}, {f2u(0.25):#x}")
    for r in range(4):
        A(f"s_mov_b32 s{sM[r]}, {(1<<r)|(1<<(20+r)):#x}")
        A(f"s_mov_b32 s{sM[r]+1}, {(1<<(8+r))|(1<<(28+r)):#x}")
    A(f"s_mov_b32 s{sHi}, 0xffff0000")
    A(f"s_mov_b32 s{sSpin2}, {spin*16}")
    A(f"v_mov_b32 v{vEps}, {f2u(1e-6):#x}"); A(f"v_mov_b32 v{vEps+1}, {f2u(1e-6):#x}")
    A(f"v_mov_b32 v{vNH}, 0xbf00bf00"); A(f"v_mov_b32 v{vNH+1}, 0xbf00bf00")
    A(f"v_mov_b32 v{vXA+1}, 0")
    A(f"s_lshl_b32 s{sT}, s{sW}, 10")
    A(f"v_add_u32 v{vA_phw}, s{sT}, v{vA_phi}")
    A(f"v_lshrrev_b32 v{vT+4}, 2, v{vc}")
    A(f"v_lshl_add_u32 v{vT+4}, v{vg}, 2, v{vT+4}")
    A(f"v_and_b32 v{vT+5}, 7, v{vT+4}")
    A(f"v_xor_b32 v{vT+5}, s{sW}, v{vT+5}")
    A(f"v_lshlrev_b32 v{vT+5}, 5, v{vT+5}")
    A(f"v_lshl_add_u32 v{vT+5}, v{vT+4}, 8, v{vT+5}")
    A(f"v_and_b32 v{vT+6}, 3, v{vc}")
    A(f"v_lshl_add_u32 v{vA_tr}, v{vT+6}, 3, v{vT+5}")
    A(f"s_lshr_b32 s{sT}, s{sW}, 1")
    A(f"v_bfe_u32 v{vT+4}, v{vc}, 1, 2")
    A(f"v_xor_b32 v{vT+4}, s{sT}, v{vT+4}")
    A(f"v_lshlrev_b32 v{vT+4}, 4, v{vT+4}")
    A(f"v_and_b32 v{vT+5}, 1, v{vc}")
    A(f"v_lshl_add_u32 v{vT+4}, v{vT+5}, 3, v{vT+4}")
    A(f"v_lshrrev_b32 v{vT+5}, 3, v{vc}")
    A(f"v_lshl_add_u32 v{vT+4}, v{vT+5}, 6, v{vT+4}")
    A(f"v_lshl_add_u32 v{vT+4}, v{vg}, 10, v{vT+4}")
    A(f"s_lshl_b32 s{sT}, s{sW}, 7")
    A(f"s_add_u32 s{sT}, s{sT}, {LDS_KVT}")
    A(f"v_add_u32 v{vA_kvw}, s{sT}, v{vT+4}")
    A(f"v_lshrrev_b32 v{vT+4}, 2, v{vc}")
    A(f"v_lshlrev_b32 v{vT+4}, 4, v{vT+4}")
    A(f"v_lshl_add_u32 v{vT+4}, v{vc}, 6, v{vT+4}")
    A(f"v_lshl_add_u32 v{vT+4}, v{vg}, 10, v{vT+4}")
    A(f"v_add_u32 v{vA_kvr}, {LDS_KVT}, v{vT+4}")
    for k in range(1, 4):
        A(f"v_xor_b32 v{vA_kvr+k}, {16*k}, v{vA_kvr}")
    A(f"v_and_b32 v{vT+4}, 7, v{vc}")
    A(f"v_lshl_add_u32 v{vA_z}, v{vT+4}, 6, v{vT+3}")
    A(f"v_lshlrev_b32 v{vT+4}, 4, v{vc}")
    A(f"v_lshl_add_u32 v{vA_o}, v{vg}, 10, v{vT+4}")
    A("s_waitcnt lgkmcnt(0)")
    srd(SO, 12, 1 << 24); srd(SWS, 16, WS_BYTES)
    A("s_barrier")

    npoll = [0]
    def waitprog(base, perwave, sleep=True, flag=False):
        n = npoll[0]; npoll[0] += 1
        if perwave: A(f"s_add_u32 s{sNeed}, s{sW}, {base}")
        else: A(f"s_mov_b32 s{sNeed}, {base}")
        LB(f"L_p{n}")
        A(f"ds_read_b64 {vr(vT,2)}, v{vA_fl}")
        A("s_waitcnt lgkmcnt(0)")
        if flag:
            A(f"v_mul_lo_u32 v{vT+1}, v{vT+1}, v{vT}")
        A(f"v_cmp_le_i32 vcc, s{sNeed}, v{vT+1}")
        A(f"s_cbranch_vccnz L_pk{n}")
        if sleep and slp: A(f"s_sleep {slp}")
        A(f"s_sub_u32 s{sSpin2}, s{sSpin2}, 1")
        A(f"s_cbranch_scc0 L_p{n}")
        A(f"s_mov_b32 s{sSpin2}, 0")
        LB(f"L_pk{n}")
    def rdkq(t):
        for s in range(4):
            A(f"ds_read_b128 {vr(vX+4*s,4)}, v{vA_kr+s} offset:{t*32768}")

    def scale4(base):
        for i in range(4):
            A(f"v_lshlrev_b32 v{vT+2*i}, 16, v{base+i}")
            A(f"v_and_b32 v{vT+2*i+1}, s{sHi}, v{base+i}")
        for i in range(4):
            A(f"v_pk_mul_f32 {vr(vT+2*i,2)}, {vr(vT+2*i,2)}, {sr(sScale,2)}")
        for i in range(4):
            A(f"v_cvt_pk_bf16_f32 v{base+i}, v{vT+2*i}, v{vT+2*i+1}")

    def round4(dst, src, t):
        A(f"v_cvt_pk_bf16_f32 v{t}, v{src}, v{src+1}")
        A(f"v_cvt_pk_bf16_f32 v{t+1}, v{src+2}, v{src+3}")
        A(f"v_lshlrev_b32 v{dst}, 16, v{t}")
        A(f"v_and_b32 v{dst+1}, s{sHi}, v{t}")
        A(f"v_lshlrev_b32 v{dst+2}, 16, v{t+1}")
        A(f"v_and_b32 v{dst+3}, s{sHi}, v{t+1}")

    def phi(isq, out):
        base = vX
        for s in range(4):
            A(f"s_waitcnt lgkmcnt({3-s})")
            scale4(base + 4*s)
            if s > 0:
                x = vr(base+4*(s-1), 4); o = vr(vOM+4*(s-1), 4)
                c0 = "0" if s == 1 else vr(vG, 4); c1 = "0" if s == 1 else vr(vP, 4)
                A(f"v_mfma_f32_16x16x32_bf16 {vr(vG,4)}, {x}, {x}, {c0}")
                A(f"v_mfma_f32_16x16x32_bf16 {vr(vP,4)}, {o if isq else x}, {x if isq else o}, {c1}")
        x = vr(base+12, 4); o = vr(vOM+12, 4)
        A("s_nop 1")
        A(f"v_mfma_f32_16x16x32_bf16 {vr(vG,4)}, {x}, {x}, {vr(vG,4)}")
        A(f"v_mfma_f32_16x16x32_bf16 {vr(vP,4)}, {o if isq else x}, {x if isq else o}, {vr(vP,4)}")
        A("s_nop 6")
        A(f"v_cndmask_b32 v{vT}, 0, v{vG}, {sr(sM[0],2)}")
        for r in range(1, 4):
            A(f"v_cndmask_b32 v{vT}, v{vT}, v{vG+r}, {sr(sM[r],2)}")
        A(f"v_cvt_pk_bf16_f32 v{vXA}, v{vT}, v{vXA+1}")
        round4(vT+4, vP, vT+2)
        A("s_nop 1")
        a, b = (vr(vNH,2), vr(vXA,2)) if isq else (vr(vXA,2), vr(vNH,2))
        A(f"v_mfma_f32_16x16x16_bf16 {vr(vP,4)}, {a}, {b}, {vr(vT+4,4)}")
        A("s_nop 7")
        round4(vT+8, vP, vT+2)
        A(f"v_pk_mul_f32 {vr(vT+8,2)}, {vr(vT+8,2)}, {sr(sL2E,2)}")
        A(f"v_pk_mul_f32 {vr(vT+10,2)}, {vr(vT+10,2)}, {sr(sL2E,2)}")
        for i in range(4):
            A(f"v_exp_f32 v{vT+8+i}, v{vT+8+i}")
        A("s_nop 0")
        round4(vT+12, vT+8, vT+2)
        A(f"v_pk_fma_f32 {vr(vT+12,2)}, {vr(vT+12,2)}, {sr(sQuart,2)}, {vr(vEps,2)}")
        A(f"v_pk_fma_f32 {vr(vT+14,2)}, {vr(vT+14,2)}, {sr(sQuart,2)}, {vr(vEps,2)}")
        A(f"v_cvt_pk_bf16_f32 v{out}, v{vT+12}, v{vT+13}")
        A(f"v_cvt_pk_bf16_f32 v{out+1}, v{vT+14}, v{vT+15}")

    waitprog(2, True)
    stamp()
    for s in range(4):
        A(f"ds_read_b128 {vr(vOM+4*s,4)}, v{vA_phi} offset:{LDS_OM-LDS_PHI+1024*s}")
    rdkq(0)
    phi(False, vK)
    waitprog(10, True)
    stamp()
    rdkq(1)
    phi(False, vK+2)
    A(f"ds_write_b128 v{vA_phw}, {vr(vK,4)}")
    A("s_waitcnt lgkmcnt(0)")
    A("s_barrier")
    stamp()
    for b in range(8):
        A(f"ds_read_b128 {vr(vK+4*b,4)}, v{vA_phi} offset:{1024*b}")
    waitprog(33, False, sleep=False)
    stamp()
    for b in range(8):
        A(f"ds_read_b64_tr_b16 {vr(vB+4*b,2)}, v{vA_tr} offset:{4096*b}")
        A(f"ds_read_b64_tr_b16 {vr(vB+4*b+2,2)}, v{vA_tr} offset:{4096*b+32768}")
    for b in range(8):
        A(f"s_waitcnt lgkmcnt({14-2*b})")
        A(f"v_mfma_f32_16x16x32_bf16 {vr(vP,4)}, {vr(vK+4*b,4)}, {vr(vB+4*b,4)}, {'0' if b==0 else vr(vP,4)}")
    A(f"s_lshl_b32 s{sT}, s{sP}, 10")
    A(f"s_add_u32 s{sT}, s{sT}, s{sKVo}")
    A("s_nop 5")
    for i in range(4): A(f"v_min_u32 v{vP+i}, -2, v{vP+i}")
    A(f"buffer_store_dwordx4 {vr(vP,4)}, v{vA_lin}, {sr(SWS,4)}, s{sT} offen sc1")
    stamp()
    vGa = vK
    def gather():
        for p in range(8):
            A(f"buffer_load_dwordx4 {vr(vGa+4*p,4)}, v{vA_lin}, {sr(SWS,4)}, s{sKVo + p//4} offen offset:{(p%4)*1024} sc1")
        A(f"buffer_load_dwordx4 {vr(vZg,4)}, v{vA_z}, {sr(SWS,4)}, s{sZo} offen sc1")
    if gfirst:
        waitprog(gat if gat else 49 - G, False, flag=True)
        gather()
        stamp()
        waitprog(34, True)
        rdkq(0)
        phi(True, vPHQ)
    else:
        waitprog(34, True)
        rdkq(0)
        phi(True, vPHQ)
        waitprog(gat if gat else 49 - G, False, flag=True)
        gather()
        stamp()
    A("s_waitcnt vmcnt(0)")
    LB("L_gsum")
    vS = vT
    A(f"v_pk_add_f32 {vr(vS,2)}, {vr(vGa,2)}, {vr(vGa+4,2)}")
    A(f"v_pk_add_f32 {vr(vS+2,2)}, {vr(vGa+2,2)}, {vr(vGa+6,2)}")
    for i in range(4):
        A(f"v_add_f32_dpp v{vT+4+i}, v{vZg+i}, v{vZg+i} quad_perm:[1,0,3,2] row_mask:0xf bank_mask:0xf")
    for p in range(2, 5):
        A(f"v_pk_add_f32 {vr(vS,2)}, {vr(vS,2)}, {vr(vGa+4*p,2)}")
        A(f"v_pk_add_f32 {vr(vS+2,2)}, {vr(vS+2,2)}, {vr(vGa+4*p+2,2)}")
    for i in range(4):
        A(f"v_add_f32_dpp v{vT+8+i}, v{vT+4+i}, v{vT+4+i} quad_perm:[2,3,0,1] row_mask:0xf bank_mask:0xf")
    for p in range(5, 8):
        A(f"v_pk_add_f32 {vr(vS,2)}, {vr(vS,2)}, {vr(vGa+4*p,2)}")
        A(f"v_pk_add_f32 {vr(vS+2,2)}, {vr(vS+2,2)}, {vr(vGa+4*p+2,2)}")
    for i in range(4):
        A(f"v_add_f32_dpp v{vT+4+i}, v{vT+8+i}, v{vT+8+i} row_half_mirror row_mask:0xf bank_mask:0xf")
    A(f"v_pk_add_f32 {vr(vT+8,2)}, {vr(vS,2)}, {vr(vS+2,2)}")
    A(f"v_pk_add_f32 {vr(vT+10,2)}, {vr(vT+4,2)}, {vr(vT+6,2)}")
    A(f"v_pk_add_f32 {vr(vT+8,2)}, {vr(vT+8,2)}, {vr(vT+10,2)}")
    A(f"v_cvt_pk_bf16_f32 v{vT+12}, v{vS}, v{vS+1}")
    A(f"v_cmp_u_f32 vcc, v{vT+8}, v{vT+9}")
    A(f"v_cvt_pk_bf16_f32 v{vT+13}, v{vS+2}, v{vS+3}")
    A("s_cbranch_vccnz L_gcheck")
    LB("L_gok")
    A(f"ds_write_b64 v{vA_kvw}, {vr(vT+12,2)}")
    A(f"v_cvt_pk_bf16_f32 v{vZB}, v{vT+4}, v{vT+5}")
    A(f"v_cvt_pk_bf16_f32 v{vZB+1}, v{vT+6}, v{vT+7}")
    stamp()
    def den():
        A(f"v_mfma_f32_16x16x16_bf16 {vr(vD,4)}, {vr(vPHQ,2)}, {vr(vZB,2)}, 0")
    def den2():
        round4(vD, vD, vT)
        A(f"v_pk_add_f32 {vr(vD,2)}, {vr(vD,2)}, {vr(vEps,2)}")
        A(f"v_pk_add_f32 {vr(vD+2,2)}, {vr(vD+2,2)}, {vr(vEps,2)}")
        round4(vD, vD, vT)
        for i in range(4): A(f"v_rcp_f32 v{vD+i}, v{vD+i}")
    A("s_nop 1")
    den()
    A("s_waitcnt lgkmcnt(0)")
    A("s_barrier")
    for k in range(4):
        A(f"ds_read_b128 {vr(vKVB+4*k,4)}, v{vA_kvr+k}")
    A("s_nop 1")
    den2()
    vN = vK
    def outtile(t):
        for r in range(4):
            o = vO + 4*r
            for j in range(4):
                A(f"v_cvt_pk_bf16_f32 v{vT+8+j}, v{vN+8*j+r}, v{vN+8*j+4+r}")
            for j in range(4):
                A(f"v_lshlrev_b32 v{vT+2*j}, 16, v{vT+8+j}")
                A(f"v_and_b32 v{vT+2*j+1}, s{sHi}, v{vT+8+j}")
            pr = vD + (r & ~1)
            sel = "op_sel:[0,1] op_sel_hi:[1,1]" if (r & 1) else "op_sel:[0,0] op_sel_hi:[1,0]"
            for j in range(4):
                A(f"v_pk_mul_f32 {vr(vT+2*j,2)}, {vr(vT+2*j,2)}, {vr(pr,2)} {sel}")
            for j in range(4):
                A(f"v_cvt_pk_bf16_f32 v{o+j}, v{vT+2*j}, v{vT+2*j+1}")
            A(f"buffer_store_dwordx4 {vr(o,4)}, v{vA_o}, {sr(SO,4)}, s{sBase+t} offen offset:{256*r} {st}")
    for k in range(4):
        A(f"s_waitcnt lgkmcnt({3-k})")
        for j in range(2):
            dd = 2*k + j
            A(f"v_mfma_f32_16x16x16_bf16 {vr(vN+4*dd,4)}, {vr(vPHQ,2)}, {vr(vKVB+2*dd,2)}, 0")
    A("s_nop 7")
    outtile(0)
    stamp()
    waitprog(42, True)
    rdkq(1)
    phi(True, vPHQ)
    A("s_nop 1")
    den()
    for dd in range(8):
        A(f"v_mfma_f32_16x16x16_bf16 {vr(vN+4*dd,4)}, {vr(vPHQ,2)}, {vr(vKVB+2*dd,2)}, 0")
    den2()
    outtile(1)
    LB("L_fin")
    if stamps:
        stamp()
        A("s_waitcnt vmcnt(0)")
        stamp()
        A("s_waitcnt lgkmcnt(0)")
        assert nst[0] <= 11, nst[0]
        for i in range(12):
            A(f"v_mov_b32 v{vK+i}, s{sSt+2*i}" if i < nst[0] else f"v_mov_b32 v{vK+i}, s{sSpin}")
        A(f"s_mul_i32 s{sT}, s2, {NW}")
        A(f"s_add_u32 s{sT}, s{sT}, s{sWr}")
        A(f"s_mul_i32 s{sT}, s{sT}, 48")
        A(f"s_add_u32 s{sT}, s{sT}, {WS_STAMP}")
        A("s_mov_b64 exec, 1")
        for i in range(3):
            A(f"buffer_store_dwordx4 {vr(vK+4*i,4)}, off, {sr(SWS,4)}, s{sT} offset:{16*i}")
    LB("L_end")
    A("s_endpgm")
    LB("L_gcheck")
    A(f"v_max3_u32 v{vT+14}, v{vZg}, v{vZg+1}, v{vZg+2}")
    A(f"v_max_u32 v{vT+14}, v{vT+14}, v{vZg+3}")
    for i in range(16):
        A(f"v_max3_u32 v{vT+14}, v{vT+14}, v{vGa+2*i}, v{vGa+2*i+1}")
    A(f"v_cmp_eq_u32 vcc, -1, v{vT+14}")
    A("s_cbranch_vccz L_gok")
    A(f"s_sub_u32 s{sSpin}, s{sSpin}, 1")
    A("s_cbranch_scc1 L_gok")
    gather()
    A("s_waitcnt vmcnt(0)")
    A("s_branch L_gsum")

    LB("L_loader")
    if lprio: A(f"s_setprio {lprio}")
    A(f"v_lshl_add_u32 v{vA_kq}, v{vc}, 8, v{vT+3}")
    A(f"v_lshl_add_u32 v{vA_kd}, v{vg}, 8, v{vT+4}")
    for i in range(1, 4):
        A(f"v_xor_b32 v{vA_kd+i}, {64*i}, v{vA_kd}")
    A(f"v_lshlrev_b32 v{vT+5}, 1, v{vg}")
    A(f"v_xor_b32 v{vT+5}, v{vT+5}, v{vc}")
    A(f"v_lshlrev_b32 v{vT+5}, 4, v{vT+5}")
    A(f"v_lshl_add_u32 v{vA_v0}, v{vg}, 8, v{vT+5}")
    A(f"v_xor_b32 v{vA_v1}, 128, v{vA_v0}")
    A(f"v_mov_b32 v{vT+6}, 0")
    A(f"ds_write_b32 v{vA_fl}, v{vT+6} offset:4")
    A("s_waitcnt lgkmcnt(0)")
    srd(SOM, 10, 4096); srd(SK, 6, 1 << 24)
    def tile_off(j): return (j & 7) * 8192 + (j >> 3) * 4096
    ngroups = 49
    def signal(p):
        A(f"v_mov_b32 v{vT+6+(p&1)}, {p}")
        A(f"ds_write_b32 v{vA_fl}, v{vT+6+(p&1)} offset:4")
    for n in range(ngroups):
        if n == 0:
            for s in range(4):
                A(f"s_mov_b32 m0, {LDS_OM + s*1024 - s*64}")
                A("s_nop 0")
                A(f"buffer_load_dwordx4 v{vA_kq}, {sr(SOM,4)}, 0 offen offset:{64*s} lds")
        else:
            if n <= 16: S, off, ldsb, regs = SK, (n-1)*4096, LDS_KQ, [vA_kd+i for i in range(4)]
            elif n <= 32: S, off, ldsb, regs = SV, (n-17)*4096, LDS_V, [vA_v0, vA_v1, vA_v0, vA_v1]
            else: S, off, ldsb, regs = SQ, (n-33)*4096, LDS_KQ, [vA_kd+i for i in range(4)]
            if n == 33:
                if stamps: A(f"s_memrealtime {sr(sSt+4,2)}")
                A("s_barrier")
                if stamps: A(f"s_memrealtime {sr(sSt+6,2)}")
            A(f"s_mov_b32 m0, {ldsb + off}")
            A(f"s_add_u32 s{sT}, s{sRot}, {off}")
            A(f"s_and_b32 s{sT}, s{sT}, 0xffff")
            A(f"s_add_u32 s{sT}, s{sBase}, s{sT}")
            for i in range(4):
                A(f"buffer_load_dwordx4 v{regs[i]}, {sr(S,4)}, s{sT} offen offset:{i*1024} {ld} lds")
        if n == 1: srd(SV, 8, 1 << 24); srd(SQ, 4, 1 << 24)
        if n == pre:
            A("s_barrier")
            if stamps: A(f"s_memrealtime {sr(sSt+2,2)}")
        if n >= G:
            A(f"s_waitcnt vmcnt({W})")
            signal(n + 1 - G)
    if stamps: A(f"s_memrealtime {sr(sSt+8,2)}")
    for k in range(G - 1, -1, -1):
        A(f"s_waitcnt vmcnt({4*k})")
        signal(ngroups - k)
    if stamps:
        for i in range(5, 9): A(f"s_memrealtime {sr(sSt+2*i,2)}")
        srd(SWS, 16, WS_BYTES)
        A(f"s_mov_b32 s{sSpin}, {spin}")
        A("s_branch L_fin")
    else:
        A("s_endpgm")

    LB("L_helper")
    if hprio: A(f"s_setprio {hprio}")
    for i in range(4): A(f"v_mov_b32 v{vT+4+i}, -1")
    A(f"s_lshl_b32 s{sT}, s{sP}, 10")
    A(f"s_add_u32 s{sT}, s{sT}, s{sKVo}")
    A("s_waitcnt lgkmcnt(0)")
    srd(SWS, 16, WS_BYTES)
    for w in range(8):
        A(f"buffer_store_dwordx4 {vr(vT+4,4)}, v{vA_lin}, {sr(SWS,4)}, s{sT} offen sc1")
        if w < 7: A(f"s_add_u32 s{sT}, s{sT}, 8192")
    A(f"s_lshl_b32 s{sT}, s{sP}, 6")
    A(f"s_add_u32 s{sZo}, s{sT}, s{sZo}")
    A("s_mov_b64 exec, 15")
    A(f"buffer_store_dwordx4 {vr(vT+4,4)}, v{vA_lin}, {sr(SWS,4)}, s{sZo} offen sc1")
    A("s_mov_b64 exec, -1")
    srd(SDB, 14, 256)
    A(f"s_lshl_b32 s{sKVo2}, s{sH}, 3")
    A(f"s_add_u32 s{sT}, s{sKVo2}, s{sP}")
    A(f"v_mov_b32 v{vT+8}, 1")
    A(f"v_mov_b32 v{vT+9}, 0")
    A(f"ds_write_b32 v{vA_fl}, v{vT+9}")
    A(f"v_mov_b32 v{vT+12}, 0x3f803f80")
    for i in range(1, 4): A(f"v_mov_b32 v{vT+12+i}, v{vT+12}")
    if stamps:
        A(f"s_memrealtime {sr(sSt+2,2)}")
    A("s_waitcnt lgkmcnt(0)")
    A("s_barrier")
    A("s_mov_b64 exec, 1")
    A("s_waitcnt vmcnt(0)")
    if sig == 'byte':
        A(f"buffer_store_byte v{vT+8}, off, {sr(SDB,4)}, s{sT} sc1")
    else:
        A(f"buffer_atomic_add v{vT+8}, off, {sr(SDB,4)}, s{sKVo2} sc1")
    A("s_mov_b64 exec, -1")
    if stamps:
        A(f"s_memrealtime {sr(sSt+4,2)}")
    A("s_barrier")
    A(f"buffer_load_dwordx2 {vr(vT+10,2)}, off, {sr(SDB,4)}, s{sKVo2} sc1")
    for b in range(8):
        A(f"ds_read_b128 {vr(vK+4*b,4)}, v{vA_phi} offset:{1024*b}")
    for b in range(8):
        A(f"s_waitcnt lgkmcnt({7-b})")
        A(f"v_mfma_f32_16x16x32_bf16 {vr(vP,4)}, {vr(vK+4*b,4)}, {vr(vT+12,4)}, {'0' if b==0 else vr(vP,4)}")
    A("s_nop 7")
    for i in range(4): A(f"v_min_u32 v{vP+i}, -2, v{vP+i}")
    A("s_mov_b32 exec_lo, 0x00010001")
    A("s_mov_b32 exec_hi, 0x00010001")
    A(f"buffer_store_dwordx4 {vr(vP,4)}, v{vT+3}, {sr(SWS,4)}, s{sZo} offen sc1")
    A("s_mov_b64 exec, -1")
    A("s_waitcnt vmcnt(1)")
    LB("L_flagchk")
    if sig == 'byte':
        A(f"v_and_b32 v{vT+10}, v{vT+10}, v{vT+11}")
        A(f"v_cmp_ne_u32 vcc, 0x01010101, v{vT+10}")
    else:
        A(f"v_cmp_ne_u32 vcc, 8, v{vT+10}")
    A("s_cbranch_vccz L_flagok")
    A(f"s_sub_u32 s{sSpin}, s{sSpin}, 1")
    A("s_cbranch_scc1 L_flagok")
    A(f"buffer_load_dwordx2 {vr(vT+10,2)}, off, {sr(SDB,4)}, s{sKVo2} sc1")
    A("s_waitcnt vmcnt(0)")
    A("s_branch L_flagchk")
    LB("L_flagok")
    A(f"ds_write_b32 v{vA_fl}, v{vT+8}")
    if stamps:
        for i in range(3, 9): A(f"s_memrealtime {sr(sSt+2*i,2)}")
        A("s_branch L_fin")
    else:
        A("s_endpgm")
    return HEADER.format(lds=LDS_TOTAL) + "\n".join(L) + FOOTER.format(vgpr=NV, sgpr=102 if stamps else 80, acc=NV)

if __name__ == '__main__':
    out = sys.argv[1]
    kw = {}
    for a in sys.argv[2:]:
        k, v = a.split('=')
        kw[k] = v if k in ('ld', 'st', 'sig') else (tuple(map(int, v.split(','))) if k == 'rot' else int(v))
    open(out, 'w').write(gen(**kw))
```

```python
import sys, struct

def f2u(x): return struct.unpack('<I', struct.pack('<f', x))[0]

HEADER = """; Kernarg layout for this problem (56 bytes, ptrs only, base s[0:1]):
;   offset  40: d_debug   256 bytes
;   offset  48: d_ws      268435456 bytes workspace
; @launch grid=(256,1,1) block=(640,1,1) lds={lds}
.amdgcn_target "amdgcn-amd-amdhsa--gfx950"
.text
.globl standalone__linear_kernel_rfa__prompt_kernel
.p2align 8
.type standalone__linear_kernel_rfa__prompt_kernel,@function
standalone__linear_kernel_rfa__prompt_kernel:
"""
FOOTER = """
.section .rodata,"a"
.p2align 6
.amdhsa_kernel standalone__linear_kernel_rfa__prompt_kernel
  .amdhsa_next_free_vgpr {vgpr}
  .amdhsa_next_free_sgpr {sgpr}
  .amdhsa_accum_offset {acc}
  .amdhsa_group_segment_fixed_size 0
  .amdhsa_kernarg_size 56
  .amdhsa_user_sgpr_count 2
  .amdhsa_user_sgpr_kernarg_segment_ptr 1
  .amdhsa_system_sgpr_workgroup_id_x 1
  .amdhsa_float_denorm_mode_32 3
  .amdhsa_float_denorm_mode_16_64 3
.end_amdhsa_kernel
"""

LDS_V, LDS_KQ, LDS_PHI, LDS_KVT, LDS_OM, LDS_FLAG = 0, 65536, 131072, 139264, 143360, 147456
LDS_TOTAL = 147520
WS_Z = 2 << 20
WS_BYTES = 4 << 20
WS_STAMP = 3 << 20
NW = 10

def gen(ld='nt', st='sc1', stamps=False, W=28, gat=0, spin=200000, sig='byte', lw=0, hw=1, lprio=3, hprio=2, slp=1, pre=6, rot=(4,15), gfirst=1, noclear=0, dbgst=0, tfix=0, tmin=0):
    L = []
    def A(s): L.append("    " + s)
    def LB(s): L.append(s + ":")
    def vr(a, n): return f"v[{a}:{a+n-1}]"
    def sr(a, n): return f"s[{a}:{a+n-1}]"
    G = W // 4
    SQ, SK, SV, SO, SOM, SWS, SDB = 24, 28, 32, 36, 40, 44, 48
    sBase, sBase2, sW, sH, sP, sWr = 52, 53, 54, 55, 56, 57
    sScale, sL2E, sQuart = 58, 60, 62
    sM = [64, 66, 68, 70]
    sHi = 72
    sKVo, sKVo2, sZo, sT, sSpin, sM0, sSpin2 = 73, 74, 75, 76, 77, 78, 79
    sSt = 80
    sNeed, sRot = 18, 19
    vLane, vA_kq, vA_v0, vA_v1, vA_lin, vA_tr, vA_phi, vA_kvw = 1, 2, 3, 4, 5, 6, 7, 8
    vA_z, vA_kvr, vA_o, vA_phw = 9, 10, 14, 15
    vA_fl = vLane
    vPHQ = 16
    vEps = 18
    vNH = 20
    vXA = 22
    vOM = 24
    vK = 40
    vX = 72
    vO = 88
    vT = 104
    vP = 120
    vG = 124
    vB = 128
    vKVB, vZg, vZB, vD = 128, 144, 148, 152
    vA_kr = 160
    vA_kd = 40
    NV = 164
    nst = [0]
    def stamp():
        if stamps:
            A(f"s_memrealtime {sr(sSt + 2*nst[0], 2)}")
            nst[0] += 1
    def srd(d, b, n):
        A(f"s_mov_b32 s{d}, s{b}"); A(f"s_mov_b32 s{d+1}, s{b+1}")
        A(f"s_mov_b32 s{d+2}, {n}"); A(f"s_mov_b32 s{d+3}, 0x20000")

    A("s_cmp_ge_u32 s2, 256")
    A("s_cbranch_scc1 L_end")
    stamp()
    if tfix: A("s_memrealtime s[20:21]")
    A("s_load_dwordx8 s[4:11], s[0:1], 0")
    A("s_load_dwordx4 s[12:15], s[0:1], 32")
    A("s_load_dwordx2 s[16:17], s[0:1], 48")
    A(f"v_lshrrev_b32 v{vT}, 6, v0")
    A(f"v_and_b32 v{vLane}, 63, v0")
    A(f"v_readfirstlane_b32 s{sWr}, v{vT}")
    A(f"s_and_b32 s{sH}, s2, 31")
    A(f"s_lshr_b32 s{sP}, s2, 5")
    vc, vg = vT + 1, vT + 2
    A(f"v_and_b32 v{vc}, 15, v{vLane}")
    A(f"v_lshrrev_b32 v{vg}, 4, v{vLane}")
    A(f"v_lshlrev_b32 v{vA_lin}, 4, v{vLane}")
    A(f"v_lshlrev_b32 v{vT+3}, 4, v{vg}")
    A(f"v_xor_b32 v{vT+4}, v{vc}, v{vg}")
    A(f"v_lshlrev_b32 v{vT+4}, 4, v{vT+4}")
    A(f"s_lshl_b32 s{sBase}, s{sH}, 19")
    A(f"s_lshl_b32 s{sT}, s{sP}, 16")
    A(f"s_add_u32 s{sBase}, s{sBase}, s{sT}")
    A(f"s_lshr_b32 s{sRot}, s2, {rot[0]}")
    A(f"s_and_b32 s{sRot}, s{sRot}, {rot[1]}")
    A(f"s_lshl_b32 s{sRot}, s{sRot}, 12")
    A(f"v_mov_b32 v{vA_fl}, {LDS_FLAG}")
    A(f"s_cmp_eq_u32 s{sWr}, {lw}")
    A("s_cbranch_scc1 L_loader")
    A(f"s_lshl_b32 s{sKVo}, s{sH}, 16")
    A(f"s_lshl_b32 s{sZo}, s{sH}, 9")
    A(f"s_add_u32 s{sZo}, s{sZo}, {WS_Z}")
    A(f"v_add_u32 v{vA_phi}, {LDS_PHI}, v{vA_lin}")
    A(f"s_mov_b32 s{sSpin}, {spin}")
    A(f"s_cmp_eq_u32 s{sWr}, {hw}")
    A("s_cbranch_scc1 L_helper")
    A(f"s_mov_b32 s{sW}, s{sWr}")
    for special in sorted((lw, hw), reverse=True):
        A(f"s_cmp_gt_u32 s{sWr}, {special}")
        A(f"s_subb_u32 s{sW}, s{sW}, 0")
    A(f"s_lshl_b32 s{sM0}, s{sW}, 12")
    A(f"s_add_u32 s{sT}, s{sM0}, s{sRot}")
    A(f"s_and_b32 s{sT}, s{sT}, 0xffff")
    A(f"s_xor_b32 s{sBase2}, s{sT}, 0x8000")
    A(f"s_add_u32 s{sBase2}, s{sBase}, s{sBase2}")
    A(f"s_add_u32 s{sBase}, s{sBase}, s{sT}")
    A(f"s_add_u32 s{sT}, s{sM0}, {LDS_KQ}")
    A(f"s_lshl_b32 s{sM0}, s{sW}, 13")
    A(f"v_lshl_add_u32 v{vT+4}, v{vc}, 8, v{vT+4}")
    A(f"v_add_u32 v{vA_kr}, s{sT}, v{vT+4}")
    for i in range(1, 4):
        A(f"v_xor_b32 v{vA_kr+i}, {64*i}, v{vA_kr}")
    A(f"s_add_u32 s{sKVo}, s{sKVo}, s{sM0}")
    A(f"s_add_u32 s{sKVo2}, s{sKVo}, 4096")
    sc = f2u(128.0 ** -0.25)
    A(f"s_mov_b32 s{sScale}, {sc:#x}"); A(f"s_mov_b32 s{sScale+1}, {sc:#x}")
    l2e = f2u(1.4426950408889634)
    A(f"s_mov_b32 s{sL2E}, {l2e:#x}"); A(f"s_mov_b32 s{sL2E+1}, {l2e:#x}")
    A(f"s_mov_b32 s{sQuart}, {f2u(0.25):#x}"); A(f"s_mov_b32 s{sQuart+1}, {f2u(0.25):#x}")
    for r in range(4):
        A(f"s_mov_b32 s{sM[r]}, {(1<<r)|(1<<(20+r)):#x}")
        A(f"s_mov_b32 s{sM[r]+1}, {(1<<(8+r))|(1<<(28+r)):#x}")
    A(f"s_mov_b32 s{sHi}, 0xffff0000")
    A(f"s_mov_b32 s{sSpin2}, {spin*16}")
    A(f"v_mov_b32 v{vEps}, {f2u(1e-6):#x}"); A(f"v_mov_b32 v{vEps+1}, {f2u(1e-6):#x}")
    A(f"v_mov_b32 v{vNH}, 0xbf00bf00"); A(f"v_mov_b32 v{vNH+1}, 0xbf00bf00")
    A(f"v_mov_b32 v{vXA+1}, 0")
    A(f"s_lshl_b32 s{sT}, s{sW}, 10")
    A(f"v_add_u32 v{vA_phw}, s{sT}, v{vA_phi}")
    A(f"v_lshrrev_b32 v{vT+4}, 2, v{vc}")
    A(f"v_lshl_add_u32 v{vT+4}, v{vg}, 2, v{vT+4}")
    A(f"v_and_b32 v{vT+5}, 7, v{vT+4}")
    A(f"v_xor_b32 v{vT+5}, s{sW}, v{vT+5}")
    A(f"v_lshlrev_b32 v{vT+5}, 5, v{vT+5}")
    A(f"v_lshl_add_u32 v{vT+5}, v{vT+4}, 8, v{vT+5}")
    A(f"v_and_b32 v{vT+6}, 3, v{vc}")
    A(f"v_lshl_add_u32 v{vA_tr}, v{vT+6}, 3, v{vT+5}")
    A(f"s_lshr_b32 s{sT}, s{sW}, 1")
    A(f"v_bfe_u32 v{vT+4}, v{vc}, 1, 2")
    A(f"v_xor_b32 v{vT+4}, s{sT}, v{vT+4}")
    A(f"v_lshlrev_b32 v{vT+4}, 4, v{vT+4}")
    A(f"v_and_b32 v{vT+5}, 1, v{vc}")
    A(f"v_lshl_add_u32 v{vT+4}, v{vT+5}, 3, v{vT+4}")
    A(f"v_lshrrev_b32 v{vT+5}, 3, v{vc}")
    A(f"v_lshl_add_u32 v{vT+4}, v{vT+5}, 6, v{vT+4}")
    A(f"v_lshl_add_u32 v{vT+4}, v{vg}, 10, v{vT+4}")
    A(f"s_lshl_b32 s{sT}, s{sW}, 7")
    A(f"s_add_u32 s{sT}, s{sT}, {LDS_KVT}")
    A(f"v_add_u32 v{vA_kvw}, s{sT}, v{vT+4}")
    A(f"v_lshrrev_b32 v{vT+4}, 2, v{vc}")
    A(f"v_lshlrev_b32 v{vT+4}, 4, v{vT+4}")
    A(f"v_lshl_add_u32 v{vT+4}, v{vc}, 6, v{vT+4}")
    A(f"v_lshl_add_u32 v{vT+4}, v{vg}, 10, v{vT+4}")
    A(f"v_add_u32 v{vA_kvr}, {LDS_KVT}, v{vT+4}")
    for k in range(1, 4):
        A(f"v_xor_b32 v{vA_kvr+k}, {16*k}, v{vA_kvr}")
    A(f"v_and_b32 v{vT+4}, 7, v{vc}")
    A(f"v_lshl_add_u32 v{vA_z}, v{vT+4}, 6, v{vT+3}")
    A(f"v_lshlrev_b32 v{vT+4}, 4, v{vc}")
    A(f"v_lshl_add_u32 v{vA_o}, v{vg}, 10, v{vT+4}")
    A("s_waitcnt lgkmcnt(0)")
    srd(SO, 12, 1 << 24); srd(SWS, 16, WS_BYTES)
    if tmin:
        srd(SDB, 14, 256)
        A(f"s_cmp_lg_u32 s{sWr}, 9")
        A("s_cbranch_scc1 L_tm0")
        A("s_not_b32 s22, s20")
        A(f"v_mov_b32 v{vT}, s22")
        A("s_mov_b64 exec, 1")
        A(f"buffer_atomic_umax v{vT}, off, {sr(SDB,4)}, 0 sc1")
        A("s_mov_b64 exec, -1")
        LB("L_tm0")
    A("s_barrier")

    npoll = [0]
    def waitprog(base, perwave, sleep=True, flag=False):
        n = npoll[0]; npoll[0] += 1
        if perwave: A(f"s_add_u32 s{sNeed}, s{sW}, {base}")
        else: A(f"s_mov_b32 s{sNeed}, {base}")
        LB(f"L_p{n}")
        A(f"ds_read_b64 {vr(vT,2)}, v{vA_fl}")
        A("s_waitcnt lgkmcnt(0)")
        if flag:
            A(f"v_mul_lo_u32 v{vT+1}, v{vT+1}, v{vT}")
        A(f"v_cmp_le_i32 vcc, s{sNeed}, v{vT+1}")
        A(f"s_cbranch_vccnz L_pk{n}")
        if sleep and slp: A(f"s_sleep {slp}")
        A(f"s_sub_u32 s{sSpin2}, s{sSpin2}, 1")
        A(f"s_cbranch_scc0 L_p{n}")
        A(f"s_mov_b32 s{sSpin2}, 0")
        LB(f"L_pk{n}")
    def rdkq(t):
        for s in range(4):
            A(f"ds_read_b128 {vr(vX+4*s,4)}, v{vA_kr+s} offset:{t*32768}")

    def scale4(base):
        for i in range(4):
            A(f"v_lshlrev_b32 v{vT+2*i}, 16, v{base+i}")
            A(f"v_and_b32 v{vT+2*i+1}, s{sHi}, v{base+i}")
        for i in range(4):
            A(f"v_pk_mul_f32 {vr(vT+2*i,2)}, {vr(vT+2*i,2)}, {sr(sScale,2)}")
        for i in range(4):
            A(f"v_cvt_pk_bf16_f32 v{base+i}, v{vT+2*i}, v{vT+2*i+1}")

    def round4(dst, src, t):
        A(f"v_cvt_pk_bf16_f32 v{t}, v{src}, v{src+1}")
        A(f"v_cvt_pk_bf16_f32 v{t+1}, v{src+2}, v{src+3}")
        A(f"v_lshlrev_b32 v{dst}, 16, v{t}")
        A(f"v_and_b32 v{dst+1}, s{sHi}, v{t}")
        A(f"v_lshlrev_b32 v{dst+2}, 16, v{t+1}")
        A(f"v_and_b32 v{dst+3}, s{sHi}, v{t+1}")

    def phi(isq, out):
        base = vX
        for s in range(4):
            A(f"s_waitcnt lgkmcnt({3-s})")
            scale4(base + 4*s)
            if s > 0:
                x = vr(base+4*(s-1), 4); o = vr(vOM+4*(s-1), 4)
                c0 = "0" if s == 1 else vr(vG, 4); c1 = "0" if s == 1 else vr(vP, 4)
                A(f"v_mfma_f32_16x16x32_bf16 {vr(vG,4)}, {x}, {x}, {c0}")
                A(f"v_mfma_f32_16x16x32_bf16 {vr(vP,4)}, {o if isq else x}, {x if isq else o}, {c1}")
        x = vr(base+12, 4); o = vr(vOM+12, 4)
        A("s_nop 1")
        A(f"v_mfma_f32_16x16x32_bf16 {vr(vG,4)}, {x}, {x}, {vr(vG,4)}")
        A(f"v_mfma_f32_16x16x32_bf16 {vr(vP,4)}, {o if isq else x}, {x if isq else o}, {vr(vP,4)}")
        A("s_nop 6")
        A(f"v_cndmask_b32 v{vT}, 0, v{vG}, {sr(sM[0],2)}")
        for r in range(1, 4):
            A(f"v_cndmask_b32 v{vT}, v{vT}, v{vG+r}, {sr(sM[r],2)}")
        A(f"v_cvt_pk_bf16_f32 v{vXA}, v{vT}, v{vXA+1}")
        round4(vT+4, vP, vT+2)
        A("s_nop 1")
        a, b = (vr(vNH,2), vr(vXA,2)) if isq else (vr(vXA,2), vr(vNH,2))
        A(f"v_mfma_f32_16x16x16_bf16 {vr(vP,4)}, {a}, {b}, {vr(vT+4,4)}")
        A("s_nop 7")
        round4(vT+8, vP, vT+2)
        A(f"v_pk_mul_f32 {vr(vT+8,2)}, {vr(vT+8,2)}, {sr(sL2E,2)}")
        A(f"v_pk_mul_f32 {vr(vT+10,2)}, {vr(vT+10,2)}, {sr(sL2E,2)}")
        for i in range(4):
            A(f"v_exp_f32 v{vT+8+i}, v{vT+8+i}")
        A("s_nop 0")
        round4(vT+12, vT+8, vT+2)
        A(f"v_pk_fma_f32 {vr(vT+12,2)}, {vr(vT+12,2)}, {sr(sQuart,2)}, {vr(vEps,2)}")
        A(f"v_pk_fma_f32 {vr(vT+14,2)}, {vr(vT+14,2)}, {sr(sQuart,2)}, {vr(vEps,2)}")
        A(f"v_cvt_pk_bf16_f32 v{out}, v{vT+12}, v{vT+13}")
        A(f"v_cvt_pk_bf16_f32 v{out+1}, v{vT+14}, v{vT+15}")

    waitprog(2, True)
    stamp()
    for s in range(4):
        A(f"ds_read_b128 {vr(vOM+4*s,4)}, v{vA_phi} offset:{LDS_OM-LDS_PHI+1024*s}")
    rdkq(0)
    phi(False, vK)
    waitprog(10, True)
    stamp()
    rdkq(1)
    phi(False, vK+2)
    A(f"ds_write_b128 v{vA_phw}, {vr(vK,4)}")
    A("s_waitcnt lgkmcnt(0)")
    A("s_barrier")
    stamp()
    for b in range(8):
        A(f"ds_read_b128 {vr(vK+4*b,4)}, v{vA_phi} offset:{1024*b}")
    waitprog(33, False, sleep=False)
    stamp()
    for b in range(8):
        A(f"ds_read_b64_tr_b16 {vr(vB+4*b,2)}, v{vA_tr} offset:{4096*b}")
        A(f"ds_read_b64_tr_b16 {vr(vB+4*b+2,2)}, v{vA_tr} offset:{4096*b+32768}")
    for b in range(8):
        A(f"s_waitcnt lgkmcnt({14-2*b})")
        A(f"v_mfma_f32_16x16x32_bf16 {vr(vP,4)}, {vr(vK+4*b,4)}, {vr(vB+4*b,4)}, {'0' if b==0 else vr(vP,4)}")
    A(f"s_lshl_b32 s{sT}, s{sP}, 10")
    A(f"s_add_u32 s{sT}, s{sT}, s{sKVo}")
    A("s_nop 5")
    for i in range(4): A(f"v_min_u32 v{vP+i}, -2, v{vP+i}")
    A(f"buffer_store_dwordx4 {vr(vP,4)}, v{vA_lin}, {sr(SWS,4)}, s{sT} offen sc1")
    stamp()
    vGa = vK
    def gather():
        for p in range(8):
            A(f"buffer_load_dwordx4 {vr(vGa+4*p,4)}, v{vA_lin}, {sr(SWS,4)}, s{sKVo + p//4} offen offset:{(p%4)*1024} sc1")
        A(f"buffer_load_dwordx4 {vr(vZg,4)}, v{vA_z}, {sr(SWS,4)}, s{sZo} offen sc1")
    if gfirst:
        waitprog(gat if gat else 49 - G, False, flag=True)
        gather()
        stamp()
        waitprog(34, True)
        rdkq(0)
        phi(True, vPHQ)
    else:
        waitprog(34, True)
        rdkq(0)
        phi(True, vPHQ)
        waitprog(gat if gat else 49 - G, False, flag=True)
        gather()
        stamp()
    A("s_waitcnt vmcnt(0)")
    LB("L_gsum")
    vS = vT
    A(f"v_pk_add_f32 {vr(vS,2)}, {vr(vGa,2)}, {vr(vGa+4,2)}")
    A(f"v_pk_add_f32 {vr(vS+2,2)}, {vr(vGa+2,2)}, {vr(vGa+6,2)}")
    for i in range(4):
        A(f"v_add_f32_dpp v{vT+4+i}, v{vZg+i}, v{vZg+i} quad_perm:[1,0,3,2] row_mask:0xf bank_mask:0xf")
    for p in range(2, 5):
        A(f"v_pk_add_f32 {vr(vS,2)}, {vr(vS,2)}, {vr(vGa+4*p,2)}")
        A(f"v_pk_add_f32 {vr(vS+2,2)}, {vr(vS+2,2)}, {vr(vGa+4*p+2,2)}")
    for i in range(4):
        A(f"v_add_f32_dpp v{vT+8+i}, v{vT+4+i}, v{vT+4+i} quad_perm:[2,3,0,1] row_mask:0xf bank_mask:0xf")
    for p in range(5, 8):
        A(f"v_pk_add_f32 {vr(vS,2)}, {vr(vS,2)}, {vr(vGa+4*p,2)}")
        A(f"v_pk_add_f32 {vr(vS+2,2)}, {vr(vS+2,2)}, {vr(vGa+4*p+2,2)}")
    for i in range(4):
        A(f"v_add_f32_dpp v{vT+4+i}, v{vT+8+i}, v{vT+8+i} row_half_mirror row_mask:0xf bank_mask:0xf")
    A(f"v_pk_add_f32 {vr(vT+8,2)}, {vr(vS,2)}, {vr(vS+2,2)}")
    A(f"v_pk_add_f32 {vr(vT+10,2)}, {vr(vT+4,2)}, {vr(vT+6,2)}")
    A(f"v_pk_add_f32 {vr(vT+8,2)}, {vr(vT+8,2)}, {vr(vT+10,2)}")
    A(f"v_cvt_pk_bf16_f32 v{vT+12}, v{vS}, v{vS+1}")
    A(f"v_cmp_u_f32 vcc, v{vT+8}, v{vT+9}")
    A(f"v_cvt_pk_bf16_f32 v{vT+13}, v{vS+2}, v{vS+3}")
    A("s_cbranch_vccnz L_gcheck")
    LB("L_gok")
    A(f"ds_write_b64 v{vA_kvw}, {vr(vT+12,2)}")
    A(f"v_cvt_pk_bf16_f32 v{vZB}, v{vT+4}, v{vT+5}")
    A(f"v_cvt_pk_bf16_f32 v{vZB+1}, v{vT+6}, v{vT+7}")
    stamp()
    def den():
        A(f"v_mfma_f32_16x16x16_bf16 {vr(vD,4)}, {vr(vPHQ,2)}, {vr(vZB,2)}, 0")
    def den2():
        round4(vD, vD, vT)
        A(f"v_pk_add_f32 {vr(vD,2)}, {vr(vD,2)}, {vr(vEps,2)}")
        A(f"v_pk_add_f32 {vr(vD+2,2)}, {vr(vD+2,2)}, {vr(vEps,2)}")
        round4(vD, vD, vT)
        for i in range(4): A(f"v_rcp_f32 v{vD+i}, v{vD+i}")
    A("s_nop 1")
    den()
    A("s_waitcnt lgkmcnt(0)")
    A("s_barrier")
    for k in range(4):
        A(f"ds_read_b128 {vr(vKVB+4*k,4)}, v{vA_kvr+k}")
    A("s_nop 1")
    den2()
    vN = vK
    def outtile(t):
        for r in range(4):
            o = vO + 4*r
            for j in range(4):
                A(f"v_cvt_pk_bf16_f32 v{vT+8+j}, v{vN+8*j+r}, v{vN+8*j+4+r}")
            for j in range(4):
                A(f"v_lshlrev_b32 v{vT+2*j}, 16, v{vT+8+j}")
                A(f"v_and_b32 v{vT+2*j+1}, s{sHi}, v{vT+8+j}")
            pr = vD + (r & ~1)
            sel = "op_sel:[0,1] op_sel_hi:[1,1]" if (r & 1) else "op_sel:[0,0] op_sel_hi:[1,0]"
            for j in range(4):
                A(f"v_pk_mul_f32 {vr(vT+2*j,2)}, {vr(vT+2*j,2)}, {vr(pr,2)} {sel}")
            for j in range(4):
                A(f"v_cvt_pk_bf16_f32 v{o+j}, v{vT+2*j}, v{vT+2*j+1}")
            A(f"buffer_store_dwordx4 {vr(o,4)}, v{vA_o}, {sr(SO,4)}, s{sBase+t} offen offset:{256*r} {st}")
    for k in range(4):
        A(f"s_waitcnt lgkmcnt({3-k})")
        for j in range(2):
            dd = 2*k + j
            A(f"v_mfma_f32_16x16x16_bf16 {vr(vN+4*dd,4)}, {vr(vPHQ,2)}, {vr(vKVB+2*dd,2)}, 0")
    A("s_nop 7")
    outtile(0)
    stamp()
    waitprog(42, True)
    rdkq(1)
    phi(True, vPHQ)
    A("s_nop 1")
    den()
    for dd in range(8):
        A(f"v_mfma_f32_16x16x16_bf16 {vr(vN+4*dd,4)}, {vr(vPHQ,2)}, {vr(vKVB+2*dd,2)}, 0")
    den2()
    outtile(1)
    LB("L_fin")
    if tfix:
        LB("L_tf")
        A("s_memrealtime s[22:23]")
        A("s_waitcnt lgkmcnt(0)")
        A("s_sub_u32 s22, s22, s20")
        A(f"s_cmp_lt_u32 s22, {tfix}")
        A("s_cbranch_scc1 L_tf")
        if tmin:
            A(f"buffer_load_dword v{vT}, off, {sr(SDB,4)}, 0 sc1")
            A("s_waitcnt vmcnt(0)")
            A(f"v_readfirstlane_b32 s20, v{vT}")
            A("s_not_b32 s20, s20")
            LB("L_tf2")
            A("s_memrealtime s[22:23]")
            A("s_waitcnt lgkmcnt(0)")
            A("s_sub_u32 s22, s22, s20")
            A(f"s_cmp_lt_u32 s22, {tmin}")
            A("s_cbranch_scc1 L_tf2")
    if stamps:
        stamp()
        A("s_waitcnt vmcnt(0)")
        stamp()
        A("s_waitcnt lgkmcnt(0)")
        assert nst[0] <= 11, nst[0]
        for i in range(12):
            A(f"v_mov_b32 v{vK+i}, s{sSt+2*i}" if i < nst[0] else f"v_mov_b32 v{vK+i}, s{sSpin}")
        if dbgst:
            srd(SDB, 14, 256)
            A("s_mov_b64 exec, 1")
            A(f"s_cmp_lg_u32 s{sWr}, 9")
            A("s_cbranch_scc1 L_d1")
            A(f"v_not_b32 v{vK+11}, v{vK}")
            A(f"buffer_atomic_umax v{vK+11}, off, {sr(SDB,4)}, 0 offset:56 sc1")
            A(f"buffer_atomic_umax v{vK+10}, off, {sr(SDB,4)}, 0 offset:60 sc1")
            LB("L_d1")
            A(f"s_cmp_lg_u32 s2, {dbgst}")
            A("s_cbranch_scc1 L_end")
            A(f"s_cmp_lg_u32 s{sWr}, 9")
            A("s_cbranch_scc1 L_d2")
            for i in range(11):
                A(f"buffer_store_dword v{vK+i}, off, {sr(SDB,4)}, 0 offset:{4*i} sc1")
            A("s_endpgm")
            LB("L_d2")
            A(f"s_cmp_lg_u32 s{sWr}, {lw}")
            A("s_cbranch_scc1 L_d3")
            A(f"buffer_store_dword v{vK+5}, off, {sr(SDB,4)}, 0 offset:44 sc1")
            A(f"buffer_store_dword v{vK+4}, off, {sr(SDB,4)}, 0 offset:48 sc1")
            A("s_endpgm")
            LB("L_d3")
            A(f"s_cmp_lg_u32 s{sWr}, {hw}")
            A("s_cbranch_scc1 L_end")
            A(f"buffer_store_dword v{vK+3}, off, {sr(SDB,4)}, 0 offset:52 sc1")
            A("s_endpgm")
        A(f"s_mul_i32 s{sT}, s2, {NW}")
        A(f"s_add_u32 s{sT}, s{sT}, s{sWr}")
        A(f"s_mul_i32 s{sT}, s{sT}, 48")
        A(f"s_add_u32 s{sT}, s{sT}, {WS_STAMP}")
        A("s_mov_b64 exec, 1")
        for i in range(3):
            A(f"buffer_store_dwordx4 {vr(vK+4*i,4)}, off, {sr(SWS,4)}, s{sT} offset:{16*i}")
    LB("L_end")
    A("s_endpgm")
    LB("L_gcheck")
    A(f"v_max3_u32 v{vT+14}, v{vZg}, v{vZg+1}, v{vZg+2}")
    A(f"v_max_u32 v{vT+14}, v{vT+14}, v{vZg+3}")
    for i in range(16):
        A(f"v_max3_u32 v{vT+14}, v{vT+14}, v{vGa+2*i}, v{vGa+2*i+1}")
    A(f"v_cmp_eq_u32 vcc, -1, v{vT+14}")
    A("s_cbranch_vccz L_gok")
    A(f"s_sub_u32 s{sSpin}, s{sSpin}, 1")
    A("s_cbranch_scc1 L_gok")
    gather()
    A("s_waitcnt vmcnt(0)")
    A("s_branch L_gsum")

    LB("L_loader")
    if lprio: A(f"s_setprio {lprio}")
    A(f"v_lshl_add_u32 v{vA_kq}, v{vc}, 8, v{vT+3}")
    A(f"v_lshl_add_u32 v{vA_kd}, v{vg}, 8, v{vT+4}")
    for i in range(1, 4):
        A(f"v_xor_b32 v{vA_kd+i}, {64*i}, v{vA_kd}")
    A(f"v_lshlrev_b32 v{vT+5}, 1, v{vg}")
    A(f"v_xor_b32 v{vT+5}, v{vT+5}, v{vc}")
    A(f"v_lshlrev_b32 v{vT+5}, 4, v{vT+5}")
    A(f"v_lshl_add_u32 v{vA_v0}, v{vg}, 8, v{vT+5}")
    A(f"v_xor_b32 v{vA_v1}, 128, v{vA_v0}")
    A(f"v_mov_b32 v{vT+6}, 0")
    A(f"ds_write_b32 v{vA_fl}, v{vT+6} offset:4")
    A("s_waitcnt lgkmcnt(0)")
    srd(SOM, 10, 4096); srd(SK, 6, 1 << 24)
    def tile_off(j): return (j & 7) * 8192 + (j >> 3) * 4096
    ngroups = 49
    def signal(p):
        A(f"v_mov_b32 v{vT+6+(p&1)}, {p}")
        A(f"ds_write_b32 v{vA_fl}, v{vT+6+(p&1)} offset:4")
    for n in range(ngroups):
        if n == 0:
            for s in range(4):
                A(f"s_mov_b32 m0, {LDS_OM + s*1024 - s*64}")
                A("s_nop 0")
                A(f"buffer_load_dwordx4 v{vA_kq}, {sr(SOM,4)}, 0 offen offset:{64*s} lds")
        else:
            if n <= 16: S, off, ldsb, regs = SK, (n-1)*4096, LDS_KQ, [vA_kd+i for i in range(4)]
            elif n <= 32: S, off, ldsb, regs = SV, (n-17)*4096, LDS_V, [vA_v0, vA_v1, vA_v0, vA_v1]
            else: S, off, ldsb, regs = SQ, (n-33)*4096, LDS_KQ, [vA_kd+i for i in range(4)]
            if n == 33:
                if stamps: A(f"s_memrealtime {sr(sSt+4,2)}")
                A("s_barrier")
                if stamps: A(f"s_memrealtime {sr(sSt+6,2)}")
            A(f"s_mov_b32 m0, {ldsb + off}")
            A(f"s_add_u32 s{sT}, s{sRot}, {off}")
            A(f"s_and_b32 s{sT}, s{sT}, 0xffff")
            A(f"s_add_u32 s{sT}, s{sBase}, s{sT}")
            for i in range(4):
                A(f"buffer_load_dwordx4 v{regs[i]}, {sr(S,4)}, s{sT} offen offset:{i*1024} {ld} lds")
        if n == 1: srd(SV, 8, 1 << 24); srd(SQ, 4, 1 << 24)
        if n == pre:
            A("s_barrier")
            if stamps: A(f"s_memrealtime {sr(sSt+2,2)}")
        if n >= G:
            A(f"s_waitcnt vmcnt({W})")
            signal(n + 1 - G)
    if stamps: A(f"s_memrealtime {sr(sSt+8,2)}")
    for k in range(G - 1, -1, -1):
        A(f"s_waitcnt vmcnt({4*k})")
        signal(ngroups - k)
    if stamps:
        for i in range(5, 9): A(f"s_memrealtime {sr(sSt+2*i,2)}")
        srd(SWS, 16, WS_BYTES)
        A(f"s_mov_b32 s{sSpin}, {spin}")
        A("s_branch L_fin")
    else:
        A("s_endpgm")

    LB("L_helper")
    if hprio: A(f"s_setprio {hprio}")
    for i in range(4): A(f"v_mov_b32 v{vT+4+i}, -1")
    A(f"s_lshl_b32 s{sT}, s{sP}, 10")
    A(f"s_add_u32 s{sT}, s{sT}, s{sKVo}")
    A("s_waitcnt lgkmcnt(0)")
    srd(SWS, 16, WS_BYTES)
    for w in range(8):
        A(f"buffer_store_dwordx4 {vr(vT+4,4)}, v{vA_lin}, {sr(SWS,4)}, s{sT} offen sc1")
        if w < 7: A(f"s_add_u32 s{sT}, s{sT}, 8192")
    A(f"s_lshl_b32 s{sT}, s{sP}, 6")
    A(f"s_add_u32 s{sZo}, s{sT}, s{sZo}")
    A("s_mov_b64 exec, 15")
    A(f"buffer_store_dwordx4 {vr(vT+4,4)}, v{vA_lin}, {sr(SWS,4)}, s{sZo} offen sc1")
    A("s_mov_b64 exec, -1")
    srd(SDB, 14, 256)
    if sig == 'byte':
        A(f"s_lshl_b32 s{sKVo2}, s{sH}, 3")
    else:
        A(f"s_lshl_b32 s{sKVo2}, s{sH}, 2")
        A(f"s_add_u32 s{sKVo2}, s{sKVo2}, 128")
    A(f"s_add_u32 s{sT}, s{sKVo2}, s{sP}")
    A(f"v_mov_b32 v{vT+8}, 1")
    A(f"v_mov_b32 v{vT+9}, 0")
    A(f"ds_write_b32 v{vA_fl}, v{vT+9}")
    A(f"v_mov_b32 v{vT+12}, 0x3f803f80")
    for i in range(1, 4): A(f"v_mov_b32 v{vT+12+i}, v{vT+12}")
    if stamps:
        A(f"s_memrealtime {sr(sSt+2,2)}")
    A("s_waitcnt lgkmcnt(0)")
    A("s_barrier")
    A("s_mov_b64 exec, 1")
    A("s_waitcnt vmcnt(0)")
    if sig == 'byte':
        A(f"buffer_store_byte v{vT+8}, off, {sr(SDB,4)}, s{sT} sc1")
    else:
        A(f"buffer_atomic_add v{vT+8}, off, {sr(SDB,4)}, s{sKVo2} sc1")
    A("s_mov_b64 exec, -1")
    if stamps:
        A(f"s_memrealtime {sr(sSt+4,2)}")
    A("s_barrier")
    A(f"buffer_load_dwordx2 {vr(vT+10,2)}, off, {sr(SDB,4)}, s{sKVo2} sc1" if sig == 'byte' else f"buffer_load_dword v{vT+10}, off, {sr(SDB,4)}, s{sKVo2} sc1")
    for b in range(8):
        A(f"ds_read_b128 {vr(vK+4*b,4)}, v{vA_phi} offset:{1024*b}")
    for b in range(8):
        A(f"s_waitcnt lgkmcnt({7-b})")
        A(f"v_mfma_f32_16x16x32_bf16 {vr(vP,4)}, {vr(vK+4*b,4)}, {vr(vT+12,4)}, {'0' if b==0 else vr(vP,4)}")
    A("s_nop 7")
    for i in range(4): A(f"v_min_u32 v{vP+i}, -2, v{vP+i}")
    A("s_mov_b32 exec_lo, 0x00010001")
    A("s_mov_b32 exec_hi, 0x00010001")
    A(f"buffer_store_dwordx4 {vr(vP,4)}, v{vT+3}, {sr(SWS,4)}, s{sZo} offen sc1")
    A("s_mov_b64 exec, -1")
    A("s_waitcnt vmcnt(1)")
    LB("L_flagchk")
    if sig == 'byte':
        A(f"v_and_b32 v{vT+10}, v{vT+10}, v{vT+11}")
        A(f"v_cmp_ne_u32 vcc, 0x01010101, v{vT+10}")
    else:
        A(f"v_cmp_gt_u32 vcc, 8, v{vT+10}")
    A("s_cbranch_vccz L_flagok")
    A(f"s_sub_u32 s{sSpin}, s{sSpin}, 1")
    A("s_cbranch_scc1 L_flagok")
    A(f"buffer_load_dwordx2 {vr(vT+10,2)}, off, {sr(SDB,4)}, s{sKVo2} sc1" if sig == 'byte' else f"buffer_load_dword v{vT+10}, off, {sr(SDB,4)}, s{sKVo2} sc1")
    A("s_waitcnt vmcnt(0)")
    A("s_branch L_flagchk")
    LB("L_flagok")
    A(f"ds_write_b32 v{vA_fl}, v{vT+8}")
    if stamps:
        for i in range(3, 9): A(f"s_memrealtime {sr(sSt+2*i,2)}")
        A("s_branch L_fin")
    else:
        A("s_endpgm")
    return HEADER.format(lds=LDS_TOTAL) + "\n".join(L) + FOOTER.format(vgpr=NV, sgpr=102 if stamps else 80, acc=NV)

if __name__ == '__main__':
    out = sys.argv[1]
    kw = {}
    for a in sys.argv[2:]:
        k, v = a.split('=')
        kw[k] = v if k in ('ld', 'st', 'sig') else (tuple(map(int, v.split(','))) if k == 'rot' else int(v))
    open(out, 'w').write(gen(**kw))
```

```python
import sys, struct

def f2u(x): return struct.unpack('<I', struct.pack('<f', x))[0]

HEADER = """; Kernarg layout for this problem (56 bytes, ptrs only, base s[0:1]):
; @launch grid=(256,1,1) block=(640,1,1) lds={lds}
.amdgcn_target "amdgcn-amd-amdhsa--gfx950"
.text
.globl standalone__linear_kernel_rfa__prompt_kernel
.p2align 8
.type standalone__linear_kernel_rfa__prompt_kernel,@function
standalone__linear_kernel_rfa__prompt_kernel:
"""
FOOTER = """
.section .rodata,"a"
.p2align 6
.amdhsa_kernel standalone__linear_kernel_rfa__prompt_kernel
  .amdhsa_next_free_vgpr {vgpr}
  .amdhsa_next_free_sgpr {sgpr}
  .amdhsa_accum_offset {acc}
  .amdhsa_group_segment_fixed_size 0
  .amdhsa_kernarg_size 56
  .amdhsa_user_sgpr_count 2
  .amdhsa_user_sgpr_kernarg_segment_ptr 1
  .amdhsa_system_sgpr_workgroup_id_x 1
  .amdhsa_float_denorm_mode_32 3
  .amdhsa_float_denorm_mode_16_64 3
.end_amdhsa_kernel
"""

LDS_V, LDS_KQ, LDS_PHI, LDS_KVT, LDS_FLAG, LDS_OM = 0, 65536, 131072, 139264, 143360, 143616
LDS_CHK = LDS_OM
LDS_TOTAL = LDS_CHK + 16384
HSTRIDE = 83968
WS_CHK, WS_ZS = 65536, 81920
WS_BYTES = 4 << 20
WS_STAMP = 3 << 20
NW = 10

def gen(ld='nt', st='sc1', gfl='', stamps=False, W=28, W2=28, WG=40, spin=200000, lw=0, hw=1, lprio=3, hprio=2,
        slp=1, pre=6, rot=(4,15), hmap=0, tfix=0, gq=1, nat=10, zat=0, nroot=8):
    L = []
    def A(s): L.append("    " + s)
    def LB(s): L.append(s + ":")
    def vr(a, n): return f"v[{a}:{a+n-1}]"
    def sr(a, n): return f"s[{a}:{a+n-1}]"
    SQ, SK, SV, SO, SOM, SWS, SDB = 24, 28, 32, 36, 40, 44, 48
    sBase, sBase2, sW, sH, sP, sWr = 52, 53, 54, 55, 56, 57
    sScale, sL2E, sQuart = 58, 60, 62
    sM = [64, 66, 68, 70]
    sHi = 72
    sKVo, sCKo, sGo, sT, sSpin, sM0, sSpin2 = 73, 74, 75, 76, 77, 78, 79
    sSt = 80
    sNeed, sRot = 18, 19
    vLane, vA_kq, vA_v0, vA_v1, vA_lin, vA_tr, vA_phi, vA_kvw = 1, 2, 3, 4, 5, 6, 7, 8
    vA_z, vA_kvr, vA_o, vA_phw = 9, 10, 14, 15
    vA_fl = vLane
    vPHQ = [16, 2]
    vEps = 18
    vNH = 20
    vXA = 22
    vOM = 24
    vK = 40
    vX = 72
    vT = 104
    vP = 120
    vG = 124
    vB = 128
    vKVB, vZB, vD = 128, 144, [148, 152]
    vA_kr = 160
    vA_kd = 40
    vOne, vA_g, vA_c, vNon, vA_l4 = 4, 156, 157, 0, 159
    vC = 88
    NV = 164
    nst = [0]
    def stamp():
        if stamps:
            A(f"s_memrealtime {sr(sSt + 2*nst[0], 2)}")
            nst[0] += 1
    def xstamp(i):
        if stamps: A(f"s_memrealtime {sr(sSt + 2*i, 2)}")
    def srd(d, b, n):
        A(f"s_mov_b32 s{d}, s{b}"); A(f"s_mov_b32 s{d+1}, s{b+1}")
        A(f"s_mov_b32 s{d+2}, {n}"); A(f"s_mov_b32 s{d+3}, 0x20000")

    A("s_cmp_ge_u32 s2, 256")
    A("s_cbranch_scc1 L_end")
    stamp()
    if tfix: A("s_memrealtime s[20:21]")
    A("s_load_dwordx8 s[4:11], s[0:1], 0")
    A("s_load_dwordx4 s[12:15], s[0:1], 32")
    A("s_load_dwordx2 s[16:17], s[0:1], 48")
    A(f"v_lshrrev_b32 v{vT}, 6, v0")
    A(f"v_and_b32 v{vLane}, 63, v0")
    A(f"v_readfirstlane_b32 s{sWr}, v{vT}")
    if hmap == 0:
        A(f"s_and_b32 s{sH}, s2, 31")
        A(f"s_lshr_b32 s{sP}, s2, 5")
    else:
        A(f"s_lshr_b32 s{sH}, s2, 3")
        A(f"s_and_b32 s{sP}, s2, 7")
    vc, vg = vT + 1, vT + 2
    A(f"v_and_b32 v{vc}, 15, v{vLane}")
    A(f"v_lshrrev_b32 v{vg}, 4, v{vLane}")
    A(f"v_lshlrev_b32 v{vA_lin}, 4, v{vLane}")
    A(f"v_lshlrev_b32 v{vT+3}, 4, v{vg}")
    A(f"v_xor_b32 v{vT+4}, v{vc}, v{vg}")
    A(f"v_lshlrev_b32 v{vT+4}, 4, v{vT+4}")
    A(f"s_lshl_b32 s{sBase}, s{sH}, 19")
    A(f"s_lshl_b32 s{sT}, s{sP}, 16")
    A(f"s_add_u32 s{sBase}, s{sBase}, s{sT}")
    A(f"s_lshr_b32 s{sRot}, s2, {rot[0]}")
    A(f"s_and_b32 s{sRot}, s{sRot}, {rot[1]}")
    A(f"s_lshl_b32 s{sRot}, s{sRot}, 12")
    A(f"v_mov_b32 v{vA_fl}, {LDS_FLAG}")
    A(f"s_cmp_eq_u32 s{sWr}, {lw}")
    A("s_cbranch_scc1 L_loader")
    A(f"s_mul_i32 s{sKVo}, s{sH}, {HSTRIDE}")
    A(f"v_add_u32 v{vA_phi}, {LDS_PHI}, v{vA_lin}")
    A(f"s_mov_b32 s{sSpin}, {spin*16}")
    A(f"v_lshl_add_u32 v{vA_z}, v{vg}, 3, v{vA_fl}")
    A(f"v_mov_b32 v{vOne}, 1")
    A(f"s_cmp_eq_u32 s{sWr}, {hw}")
    A("s_cbranch_scc1 L_helper")
    A(f"s_mov_b32 s{sW}, s{sWr}")
    for special in sorted((lw, hw), reverse=True):
        A(f"s_cmp_gt_u32 s{sWr}, {special}")
        A(f"s_subb_u32 s{sW}, s{sW}, 0")
    A(f"s_lshl_b32 s{sM0}, s{sW}, 12")
    A(f"s_add_u32 s{sT}, s{sM0}, s{sRot}")
    A(f"s_and_b32 s{sT}, s{sT}, 0xffff")
    A(f"s_xor_b32 s{sBase2}, s{sT}, 0x8000")
    A(f"s_add_u32 s{sBase2}, s{sBase}, s{sBase2}")
    A(f"s_add_u32 s{sBase}, s{sBase}, s{sT}")
    A(f"s_add_u32 s{sT}, s{sM0}, {LDS_KQ}")
    A(f"s_lshl_b32 s{sM0}, s{sW}, 13")
    A(f"v_lshl_add_u32 v{vT+4}, v{vc}, 8, v{vT+4}")
    A(f"v_add_u32 v{vA_kr}, s{sT}, v{vT+4}")
    for i in range(1, 4):
        A(f"v_xor_b32 v{vA_kr+i}, {64*i}, v{vA_kr}")
    A(f"s_lshl_b32 s{sT}, s{sW}, 11")
    A(f"s_add_u32 s{sCKo}, s{sKVo}, s{sT}")
    A(f"s_add_u32 s{sCKo}, s{sCKo}, {WS_CHK}")
    A(f"s_add_u32 s{sKVo}, s{sKVo}, s{sM0}")
    A(f"s_mov_b32 s{sSpin2}, {spin}")
    sc = f2u(128.0 ** -0.25)
    A(f"s_mov_b32 s{sScale}, {sc:#x}"); A(f"s_mov_b32 s{sScale+1}, {sc:#x}")
    l2e = f2u(1.4426950408889634)
    A(f"s_mov_b32 s{sL2E}, {l2e:#x}"); A(f"s_mov_b32 s{sL2E+1}, {l2e:#x}")
    A(f"s_mov_b32 s{sQuart}, {f2u(0.25):#x}"); A(f"s_mov_b32 s{sQuart+1}, {f2u(0.25):#x}")
    for r in range(4):
        A(f"s_mov_b32 s{sM[r]}, {(1<<r)|(1<<(20+r)):#x}")
        A(f"s_mov_b32 s{sM[r]+1}, {(1<<(8+r))|(1<<(28+r)):#x}")
    A(f"s_mov_b32 s{sHi}, 0xffff0000")
    A(f"v_mov_b32 v{vEps}, {f2u(1e-6):#x}"); A(f"v_mov_b32 v{vEps+1}, {f2u(1e-6):#x}")
    A(f"v_mov_b32 v{vNH}, 0xbf00bf00"); A(f"v_mov_b32 v{vNH+1}, 0xbf00bf00")
    A(f"v_mov_b32 v{vXA+1}, 0")
    A(f"s_lshl_b32 s{sT}, s{sW}, 10")
    A(f"v_add_u32 v{vA_phw}, s{sT}, v{vA_phi}")
    A(f"v_lshrrev_b32 v{vT+4}, 2, v{vc}")
    A(f"v_lshl_add_u32 v{vT+4}, v{vg}, 2, v{vT+4}")
    A(f"v_and_b32 v{vT+5}, 7, v{vT+4}")
    A(f"v_xor_b32 v{vT+5}, s{sW}, v{vT+5}")
    A(f"v_lshlrev_b32 v{vT+5}, 5, v{vT+5}")
    A(f"v_lshl_add_u32 v{vT+5}, v{vT+4}, 8, v{vT+5}")
    A(f"v_and_b32 v{vT+6}, 3, v{vc}")
    A(f"v_lshl_add_u32 v{vA_tr}, v{vT+6}, 3, v{vT+5}")
    A(f"s_lshr_b32 s{sT}, s{sW}, 1")
    A(f"v_bfe_u32 v{vT+4}, v{vc}, 1, 2")
    A(f"v_xor_b32 v{vT+4}, s{sT}, v{vT+4}")
    A(f"v_lshlrev_b32 v{vT+4}, 4, v{vT+4}")
    A(f"v_and_b32 v{vT+5}, 1, v{vc}")
    A(f"v_lshl_add_u32 v{vT+4}, v{vT+5}, 3, v{vT+4}")
    A(f"v_lshrrev_b32 v{vT+5}, 3, v{vc}")
    A(f"v_lshl_add_u32 v{vT+4}, v{vT+5}, 6, v{vT+4}")
    A(f"v_lshl_add_u32 v{vT+4}, v{vg}, 10, v{vT+4}")
    A(f"s_lshl_b32 s{sT}, s{sW}, 7")
    A(f"s_add_u32 s{sT}, s{sT}, {LDS_KVT}")
    A(f"v_add_u32 v{vA_kvw}, s{sT}, v{vT+4}")
    A(f"v_lshrrev_b32 v{vT+4}, 2, v{vc}")
    A(f"v_lshlrev_b32 v{vT+4}, 4, v{vT+4}")
    A(f"v_lshl_add_u32 v{vT+4}, v{vc}, 6, v{vT+4}")
    A(f"v_lshl_add_u32 v{vT+4}, v{vg}, 10, v{vT+4}")
    A(f"v_add_u32 v{vA_kvr}, {LDS_KVT}, v{vT+4}")
    for k in range(1, 4):
        A(f"v_xor_b32 v{vA_kvr+k}, {16*k}, v{vA_kvr}")
    A(f"v_lshlrev_b32 v{vT+4}, 4, v{vc}")
    A(f"v_lshl_add_u32 v{vA_o}, v{vg}, 10, v{vT+4}")
    A("s_waitcnt lgkmcnt(0)")
    srd(SO, 12, 1 << 24); srd(SWS, 16, WS_BYTES)
    A("s_barrier")

    npoll = [0]
    def poll(off, need, sleep=True, extra=None):
        n = npoll[0]; npoll[0] += 1
        LB(f"L_p{n}")
        A(f"ds_read_b32 v{vT}, v{vA_fl} offset:{off}")
        if extra: A(extra)
        A("s_waitcnt lgkmcnt(0)")
        A(f"v_cmp_le_i32 vcc, {need}, v{vT}")
        A(f"s_cbranch_vccnz L_pk{n}")
        if sleep and slp: A(f"s_sleep {slp}")
        A(f"s_sub_u32 s{sSpin}, s{sSpin}, 1")
        A(f"s_cbranch_scc0 L_p{n}")
        A(f"s_mov_b32 s{sSpin}, 0")
        LB(f"L_pk{n}")
    def pollw(base):
        A(f"s_add_u32 s{sNeed}, s{sW}, {base}")
        poll(4, f"s{sNeed}")
    def rdkq(t):
        for s in range(4):
            A(f"ds_read_b128 {vr(vX+4*s,4)}, v{vA_kr+s} offset:{t*32768}")

    def scale4(base):
        for i in range(4):
            A(f"v_lshlrev_b32 v{vT+2*i}, 16, v{base+i}")
            A(f"v_and_b32 v{vT+2*i+1}, s{sHi}, v{base+i}")
        for i in range(4):
            A(f"v_pk_mul_f32 {vr(vT+2*i,2)}, {vr(vT+2*i,2)}, {sr(sScale,2)}")
        for i in range(4):
            A(f"v_cvt_pk_bf16_f32 v{base+i}, v{vT+2*i}, v{vT+2*i+1}")

    def round4(dst, src):
        for i in range(4):
            A(f"v_cvt_pk_bf16_f32 v{dst+i}, 0, v{src+i}")

    def phi(isq, out):
        base = vX
        for s in range(4):
            A(f"s_waitcnt lgkmcnt({3-s})")
            scale4(base + 4*s)
            if s > 0:
                x = vr(base+4*(s-1), 4); o = vr(vOM+4*(s-1), 4)
                c0 = "0" if s == 1 else vr(vG, 4); c1 = "0" if s == 1 else vr(vP, 4)
                A(f"v_mfma_f32_16x16x32_bf16 {vr(vG,4)}, {x}, {x}, {c0}")
                A(f"v_mfma_f32_16x16x32_bf16 {vr(vP,4)}, {o if isq else x}, {x if isq else o}, {c1}")
        x = vr(base+12, 4); o = vr(vOM+12, 4)
        A("s_nop 1")
        A(f"v_mfma_f32_16x16x32_bf16 {vr(vG,4)}, {x}, {x}, {vr(vG,4)}")
        A(f"v_mfma_f32_16x16x32_bf16 {vr(vP,4)}, {o if isq else x}, {x if isq else o}, {vr(vP,4)}")
        A("s_nop 6")
        A(f"v_cndmask_b32 v{vT}, 0, v{vG}, {sr(sM[0],2)}")
        for r in range(1, 4):
            A(f"v_cndmask_b32 v{vT}, v{vT}, v{vG+r}, {sr(sM[r],2)}")
        A(f"v_cvt_pk_bf16_f32 v{vXA}, v{vT}, v{vXA+1}")
        round4(vT+4, vP)
        A("s_nop 1")
        a, b = (vr(vNH,2), vr(vXA,2)) if isq else (vr(vXA,2), vr(vNH,2))
        A(f"v_mfma_f32_16x16x16_bf16 {vr(vP,4)}, {a}, {b}, {vr(vT+4,4)}")
        A("s_nop 7")
        round4(vT+8, vP)
        A(f"v_pk_mul_f32 {vr(vT+8,2)}, {vr(vT+8,2)}, {sr(sL2E,2)}")
        A(f"v_pk_mul_f32 {vr(vT+10,2)}, {vr(vT+10,2)}, {sr(sL2E,2)}")
        for i in range(4):
            A(f"v_exp_f32 v{vT+8+i}, v{vT+8+i}")
        A("s_nop 0")
        round4(vT+12, vT+8)
        A(f"v_pk_fma_f32 {vr(vT+12,2)}, {vr(vT+12,2)}, {sr(sQuart,2)}, {vr(vEps,2)}")
        A(f"v_pk_fma_f32 {vr(vT+14,2)}, {vr(vT+14,2)}, {sr(sQuart,2)}, {vr(vEps,2)}")
        A(f"v_cvt_pk_bf16_f32 v{out}, v{vT+12}, v{vT+13}")
        A(f"v_cvt_pk_bf16_f32 v{out+1}, v{vT+14}, v{vT+15}")

    pollw(2)
    stamp()
    for s in range(4):
        A(f"ds_read_b128 {vr(vOM+4*s,4)}, v{vA_phi} offset:{LDS_OM-LDS_PHI+1024*s}")
    rdkq(0)
    phi(False, vK)
    pollw(10)
    stamp()
    rdkq(1)
    phi(False, vK+2)
    A(f"ds_write_b128 v{vA_phw}, {vr(vK,4)}")
    A("s_waitcnt lgkmcnt(0)")
    A("s_barrier")
    stamp()
    for b in range(8):
        A(f"ds_read_b128 {vr(vK+4*b,4)}, v{vA_phi} offset:{1024*b}")
    A(f"ds_read_b32 v{vNon}, v{vA_fl} offset:20")
    poll(4, 33, sleep=False)
    stamp()
    for b in range(8):
        A(f"ds_read_b64_tr_b16 {vr(vB+4*b,2)}, v{vA_tr} offset:{4096*b}")
        A(f"ds_read_b64_tr_b16 {vr(vB+4*b+2,2)}, v{vA_tr} offset:{4096*b+32768}")
    for b in range(8):
        A(f"s_waitcnt lgkmcnt({14-2*b})")
        A(f"v_mfma_f32_16x16x32_bf16 {vr(vP,4)}, {vr(vK+4*b,4)}, {vr(vB+4*b,4)}, {'0' if b==0 else vr(vP,4)}")
    A("s_mov_b64 exec, 1")
    A(f"ds_add_u32 v{vA_fl}, v{vOne} offset:12")
    A("s_mov_b64 exec, -1")
    A(f"s_lshl_b32 s{sT}, s{sP}, 10")
    A(f"s_add_u32 s{sT}, s{sT}, s{sKVo}")
    A(f"s_lshl_b32 s{sNeed}, s{sP}, 8")
    A(f"s_add_u32 s{sNeed}, s{sNeed}, s{sCKo}")
    A(f"v_lshrrev_b32 v{vA_l4}, 2, v{vA_lin}")
    A(f"buffer_store_dwordx4 {vr(vP,4)}, v{vA_lin}, {sr(SWS,4)}, s{sT} offen sc1")
    A(f"v_bitop3_b32 v{vT}, v{vP}, v{vP+1}, v{vP+2} bitop3:0x96")
    A(f"v_bitop3_b32 v{vT}, v{vT}, v{vP+3}, v{vNon} bitop3:0x96")
    A(f"buffer_store_dword v{vT}, v{vA_l4}, {sr(SWS,4)}, s{sNeed} offen sc1")
    stamp()
    pollw(34)
    rdkq(0)
    phi(True, vPHQ[0])
    stamp()
    pollw(42)
    rdkq(1)
    phi(True, vPHQ[1])
    poll(8, 1, extra=f"ds_read_b64 {vr(vZB,2)}, v{vA_z} offset:32")
    for t in range(2):
        A(f"v_mfma_f32_16x16x16_bf16 {vr(vD[t],4)}, {vr(vPHQ[t],2)}, {vr(vZB,2)}, 0")
    A(f"v_add_u32 v{vA_g}, s{sM0}, v{vA_lin}")
    A(f"s_add_u32 s{sNeed}, s{sW}, 1")
    A(f"s_lshl_b32 s{sT}, s{sW}, 11")
    A(f"s_add_u32 s{sT}, s{sT}, {LDS_CHK}")
    A(f"v_add_u32 v{vA_c}, s{sT}, v{vA_l4}")
    A("s_nop 1")
    for t in range(2):
        round4(vD[t], vD[t])
        A(f"v_pk_add_f32 {vr(vD[t],2)}, {vr(vD[t],2)}, {vr(vEps,2)}")
        A(f"v_pk_add_f32 {vr(vD[t]+2,2)}, {vr(vD[t]+2,2)}, {vr(vEps,2)}")
        round4(vD[t], vD[t])
        for i in range(4): A(f"v_rcp_f32 v{vD[t]+i}, v{vD[t]+i}")
    stamp()
    poll(0, f"s{sNeed}", sleep=False)
    vGa = vK
    for p in range(0, 8, 2):
        A(f"ds_read_b128 {vr(vGa+4*p,4)}, v{vA_g} offset:{1024*p}")
        A(f"ds_read_b128 {vr(vGa+4*p+4,4)}, v{vA_g} offset:{1024*p+1024}")
        A(f"ds_read2st64_b32 {vr(vC+p,2)}, v{vA_c} offset0:{p} offset1:{p+1}")
    vS = vT
    def gsum(counted):
        for p in range(0, 8, 2):
            if counted: A(f"s_waitcnt lgkmcnt({3*(3 - p//2)})")
            if p == 0:
                A(f"v_pk_add_f32 {vr(vS,2)}, {vr(vGa,2)}, {vr(vGa+4,2)}")
                A(f"v_pk_add_f32 {vr(vS+2,2)}, {vr(vGa+2,2)}, {vr(vGa+6,2)}")
            else:
                for q in (p, p+1):
                    A(f"v_pk_add_f32 {vr(vS,2)}, {vr(vS,2)}, {vr(vGa+4*q,2)}")
                    A(f"v_pk_add_f32 {vr(vS+2,2)}, {vr(vS+2,2)}, {vr(vGa+4*q+2,2)}")
            for q in (p, p+1):
                A(f"v_bitop3_b32 v{vC+q}, v{vC+q}, v{vGa+4*q}, v{vGa+4*q+1} bitop3:0x96")
            for q in (p, p+1):
                A(f"v_bitop3_b32 v{vC+q}, v{vC+q}, v{vGa+4*q+2}, v{vGa+4*q+3} bitop3:0x96")
            A(f"v_min3_u32 v{vT+4}, v{vNon if p == 0 else vT+4}, v{vC+p}, v{vC+p+1}")
            A(f"v_max3_u32 v{vT+5}, v{vNon if p == 0 else vT+5}, v{vC+p}, v{vC+p+1}")
        A(f"v_cvt_pk_bf16_f32 v{vT+12}, v{vS}, v{vS+1}")
        A(f"v_cmp_ne_u32 vcc, v{vT+4}, v{vT+5}")
        A(f"v_cvt_pk_bf16_f32 v{vT+13}, v{vS+2}, v{vS+3}")
    gsum(True)
    A("s_cbranch_vccnz L_regather")
    LB("L_gok")
    A(f"ds_write_b64 v{vA_kvw}, {vr(vT+12,2)}")
    A("s_waitcnt lgkmcnt(0)")
    A("s_barrier")
    stamp()
    for k in range(4):
        A(f"ds_read_b128 {vr(vKVB+4*k,4)}, v{vA_kvr+k}")
    vN = [vK, vX]
    for k in range(4):
        A(f"s_waitcnt lgkmcnt({3-k})")
        for j in range(2):
            dd = 2*k + j
            A(f"v_mfma_f32_16x16x16_bf16 {vr(vN[0]+4*dd,4)}, {vr(vPHQ[0],2)}, {vr(vKVB+2*dd,2)}, 0")
    for dd in range(8):
        A(f"v_mfma_f32_16x16x16_bf16 {vr(vN[1]+4*dd,4)}, {vr(vPHQ[1],2)}, {vr(vKVB+2*dd,2)}, 0")
    no = 0
    for t in range(2):
        for rp in range(2):
            r0 = 2*rp
            for dd in range(8):
                for r in (r0, r0+1):
                    A(f"v_cvt_pk_bf16_f32 v{vN[t]+4*dd+r}, 0, v{vN[t]+4*dd+r}")
            for dd in range(8):
                A(f"v_pk_mul_f32 {vr(vN[t]+4*dd+r0,2)}, {vr(vN[t]+4*dd+r0,2)}, {vr(vD[t]+r0,2)}")
            for r in (r0, r0+1):
                o = vT + 4*(no % 4); no += 1
                for j in range(4):
                    A(f"v_cvt_pk_bf16_f32 v{o+j}, v{vN[t]+8*j+r}, v{vN[t]+8*j+4+r}")
                A(f"buffer_store_dwordx4 {vr(o,4)}, v{vA_o}, {sr(SO,4)}, s{sBase+t} offen offset:{256*r} {st}")
    LB("L_fin")
    if tfix:
        LB("L_tf")
        A("s_memrealtime s[22:23]")
        A("s_waitcnt lgkmcnt(0)")
        A("s_sub_u32 s22, s22, s20")
        A(f"s_cmp_lt_u32 s22, {tfix}")
        A("s_cbranch_scc1 L_tf")
    if stamps:
        stamp()
        A("s_waitcnt vmcnt(0)")
        stamp()
        A("s_waitcnt lgkmcnt(0)")
        assert nst[0] <= 11, nst[0]
        for i in range(12):
            A(f"v_mov_b32 v{vK+i}, s{sSt+2*i}" if i < nst[0] else f"v_mov_b32 v{vK+i}, s{sSpin2}")
        A(f"s_mul_i32 s{sT}, s2, {NW}")
        A(f"s_add_u32 s{sT}, s{sT}, s{sWr}")
        A(f"s_mul_i32 s{sT}, s{sT}, 48")
        A(f"s_add_u32 s{sT}, s{sT}, {WS_STAMP}")
        A("s_mov_b64 exec, 1")
        for i in range(3):
            A(f"buffer_store_dwordx4 {vr(vK+4*i,4)}, off, {sr(SWS,4)}, s{sT} offset:{16*i}")
    LB("L_end")
    A("s_endpgm")

    LB("L_regather")
    A(f"s_add_u32 s{sT}, s{sKVo}, 4096")
    for p in range(8):
        A(f"buffer_load_dwordx4 {vr(vGa+4*p,4)}, v{vA_lin}, {sr(SWS,4)}, s{sKVo if p < 4 else sT} offen offset:{(p%4)*1024} sc1")
        A(f"buffer_load_dword v{vC+p}, v{vA_l4}, {sr(SWS,4)}, s{sCKo} offen offset:{256*p} sc1")
    A("s_waitcnt vmcnt(0)")
    gsum(False)
    A("s_cbranch_vccz L_gok")
    A(f"s_sub_u32 s{sSpin2}, s{sSpin2}, 1")
    A("s_cbranch_scc0 L_regather")
    A("s_branch L_gok")

    LB("L_loader")
    if lprio: A(f"s_setprio {lprio}")
    A(f"v_lshl_add_u32 v{vA_kq}, v{vc}, 8, v{vT+3}")
    A(f"v_lshl_add_u32 v{vA_kd}, v{vg}, 8, v{vT+4}")
    for i in range(1, 4):
        A(f"v_xor_b32 v{vA_kd+i}, {64*i}, v{vA_kd}")
    A(f"v_lshlrev_b32 v{vT+5}, 1, v{vg}")
    A(f"v_xor_b32 v{vT+5}, v{vT+5}, v{vc}")
    A(f"v_lshlrev_b32 v{vT+5}, 4, v{vT+5}")
    A(f"v_lshl_add_u32 v{vA_v0}, v{vg}, 8, v{vT+5}")
    A(f"v_xor_b32 v{vA_v1}, 128, v{vA_v0}")
    A(f"v_mov_b32 v{vT+6}, 0")
    A(f"v_mov_b32 v{vT+8}, 1")
    A(f"ds_write_b32 v{vA_fl}, v{vT+6} offset:4")
    A("s_waitcnt lgkmcnt(0)")
    srd(SOM, 10, 4096); srd(SK, 6, 1 << 24)
    ngroups = 49
    cur = [0]
    def signal(p, off=4):
        cur[0] = p
        r = vT + 6 + ((p if off else p >> 1) & 1)
        A(f"v_mov_b32 v{r}, {p}")
        A(f"ds_write_b32 v{vA_fl}, v{r} offset:{off}")
    for n in range(ngroups):
        if n == 0:
            for s in range(4):
                A(f"s_mov_b32 m0, {LDS_OM + s*1024 - s*64}")
                A("s_nop 0")
                A(f"buffer_load_dwordx4 v{vA_kq}, {sr(SOM,4)}, 0 offen offset:{64*s} lds")
        else:
            if n <= 16: S, off, ldsb, regs = SK, (n-1)*4096, LDS_KQ, [vA_kd+i for i in range(4)]
            elif n <= 32: S, off, ldsb, regs = SV, (n-17)*4096, LDS_V, [vA_v0, vA_v1, vA_v0, vA_v1]
            else: S, off, ldsb, regs = SQ, (n-33)*4096, LDS_KQ, [vA_kd+i for i in range(4)]
            if n == 33:
                xstamp(2)
                A("s_barrier")
                xstamp(3)
            A(f"s_mov_b32 m0, {ldsb + off}")
            A(f"s_add_u32 s{sT}, s{sRot}, {off}")
            A(f"s_and_b32 s{sT}, s{sT}, 0xffff")
            A(f"s_add_u32 s{sT}, s{sBase}, s{sT}")
            for i in range(4):
                A(f"buffer_load_dwordx4 v{regs[i]}, {sr(S,4)}, s{sT} offen offset:{i*1024} {ld} lds")
        if n == 1: srd(SV, 8, 1 << 24); srd(SQ, 4, 1 << 24)
        if n == pre:
            A("s_barrier")
            xstamp(1)
        if n == ngroups - gq:
            A(f"ds_write_b32 v{vA_fl}, v{vT+8} offset:16")
        w = W if cur[0] < 33 else W2
        p = n + 1 - w // 4
        if p > cur[0] and n < ngroups - 1:
            A(f"s_waitcnt vmcnt({w})")
            signal(p)
    xstamp(4)
    for p in range(cur[0] + 1, ngroups + 1):
        A(f"s_waitcnt vmcnt({4*(ngroups - p)})")
        signal(p)
    if stamps:
        for i in range(5, 9): xstamp(i)
        srd(SWS, 16, WS_BYTES)
        A(f"s_mov_b32 s{sSpin2}, {spin}")
        A("s_branch L_fin")
    else:
        A("s_endpgm")

    LB("L_helper")
    if hprio: A(f"s_setprio {hprio}")
    A("s_memrealtime s[22:23]")
    A(f"v_mov_b32 v{vT+8}, 0")
    A(f"v_mov_b32 v{vT+9}, 0")
    A(f"ds_write_b32 v{vA_fl}, v{vT+8}")
    A(f"ds_write_b64 v{vA_fl}, {vr(vT+8,2)} offset:8")
    A(f"ds_write_b32 v{vA_fl}, v{vT+8} offset:16")
    A(f"v_mov_b32 v{vT+12}, 0x3f803f80")
    for i in range(1, 4): A(f"v_mov_b32 v{vT+12+i}, v{vT+12}")
    A(f"v_and_b32 v{vX+2}, 7, v{vc}")
    A(f"v_lshl_add_u32 v{vX}, v{vX+2}, 7, v{vT+3}")
    A(f"v_lshlrev_b32 v{vX+3}, 2, v{vg}")
    A(f"v_lshl_add_u32 v{vX+1}, v{vX+2}, 7, v{vX+3}")
    A(f"s_mov_b32 s{sSpin2}, {spin}")
    A("s_waitcnt lgkmcnt(0)")
    srd(SWS, 16, WS_BYTES); srd(SDB, 14, 256)
    A("s_barrier")
    A(f"s_cmp_ge_u32 s2, {nroot}")
    A("s_cbranch_scc1 L_noroot")
    A("s_or_b32 s22, s22, 0x80000000")
    A(f"v_mov_b32 v{vT+8}, s22")
    A("s_mov_b64 exec, 1")
    A(f"buffer_atomic_cmpswap {vr(vT+8,2)}, off, {sr(SDB,4)}, 0 sc1")
    A("s_mov_b64 exec, -1")
    LB("L_noroot")
    A(f"s_add_u32 s{sGo}, s{sKVo}, {WS_ZS}")
    A(f"s_lshl_b32 s{sT}, s{sP}, 7")
    A(f"s_add_u32 s{sM0}, s{sT}, s{sGo}")
    poll(4, nat)
    LB("L_non")
    A(f"buffer_load_dword v{vNon}, off, {sr(SDB,4)}, 0 sc1")
    A("s_waitcnt vmcnt(0)")
    A(f"v_cmp_ne_u32 vcc, 0, v{vNon}")
    A("s_cbranch_vccnz L_nonk")
    A(f"s_sub_u32 s{sSpin2}, s{sSpin2}, 1")
    A("s_cbranch_scc0 L_non")
    A(f"s_mov_b32 s{sSpin2}, 0")
    LB("L_nonk")
    A(f"ds_write_b32 v{vA_fl}, v{vNon} offset:20")
    xstamp(1)
    A("s_waitcnt lgkmcnt(0)")
    A("s_barrier")
    for b in range(8):
        A(f"ds_read_b128 {vr(vK+4*b,4)}, v{vA_phi} offset:{1024*b}")
    for b in range(8):
        A(f"s_waitcnt lgkmcnt({7-b})")
        A(f"v_mfma_f32_16x16x32_bf16 {vr(vP,4)}, {vr(vK+4*b,4)}, {vr(vT+12,4)}, {'0' if b==0 else vr(vP,4)}")
    A("s_mov_b32 exec_lo, 0x00010001")
    A("s_mov_b32 exec_hi, 0x00010001")
    A("s_nop 5")
    A(f"buffer_store_dwordx4 {vr(vP,4)}, v{vT+3}, {sr(SWS,4)}, s{sM0} offen sc1")
    A(f"v_bitop3_b32 v{vT}, v{vP}, v{vP+1}, v{vP+2} bitop3:0x96")
    A(f"v_bitop3_b32 v{vT}, v{vT}, v{vP+3}, v{vNon} bitop3:0x96")
    A(f"buffer_store_dword v{vT}, v{vX+3}, {sr(SWS,4)}, s{sM0} offen offset:64 sc1")
    A("s_mov_b64 exec, -1")
    xstamp(2)
    vZg = vK
    def zload(fl):
        A(f"buffer_load_dwordx4 {vr(vZg,4)}, v{vX}, {sr(SWS,4)}, s{sGo} offen {fl}")
        A(f"buffer_load_dword v{vZg+10}, v{vX+1}, {sr(SWS,4)}, s{sGo} offen offset:64 {fl}")
    def zchk():
        A(f"v_bitop3_b32 v{vZg+10}, v{vZg+10}, v{vZg}, v{vZg+1} bitop3:0x96")
        A(f"v_bitop3_b32 v{vZg+10}, v{vZg+10}, v{vZg+2}, v{vZg+3} bitop3:0x96")
        A(f"v_cmp_ne_u32 vcc, v{vZg+10}, v{vNon}")
    def zred():
        for i in range(4):
            A(f"v_add_f32_dpp v{vZg+4+i}, v{vZg+i}, v{vZg+i} quad_perm:[1,0,3,2] row_mask:0xf bank_mask:0xf")
        for i in range(4):
            A(f"v_add_f32_dpp v{vZg+i}, v{vZg+4+i}, v{vZg+4+i} quad_perm:[2,3,0,1] row_mask:0xf bank_mask:0xf")
        for i in range(4):
            A(f"v_add_f32_dpp v{vZg+4+i}, v{vZg+i}, v{vZg+i} row_half_mirror row_mask:0xf bank_mask:0xf")
        A(f"v_cvt_pk_bf16_f32 v{vZg+8}, v{vZg+4}, v{vZg+5}")
        A(f"v_cvt_pk_bf16_f32 v{vZg+9}, v{vZg+6}, v{vZg+7}")
        A(f"ds_write_b64 v{vA_z}, {vr(vZg+8,2)} offset:32")
        A(f"ds_write_b32 v{vA_fl}, v{vOne} offset:8")
    poll(4, zat if zat else 35)
    zload('sc1')
    xstamp(3)
    poll(12, 8, sleep=False)
    poll(16, 1, sleep=False)
    xstamp(4)
    cur[0] = 0
    A(f"s_add_u32 s{sCKo}, s{sKVo}, {WS_CHK}")
    def gsignal(p):
        cur[0] = p
        A(f"v_mov_b32 v{vT+6+(p&1)}, {p}")
        A(f"ds_write_b32 v{vA_fl}, v{vT+6+(p&1)}")
    GW = WG // 10
    for w in range(8):
        for hf in range(2):
            A(f"s_mov_b32 m0, {LDS_V + w*8192 + hf*4096}")
            A(f"s_add_u32 s{sT}, s{sKVo}, {w*8192 + hf*4096}")
            for i in range(4):
                A(f"buffer_load_dwordx4 v{vA_lin}, {sr(SWS,4)}, s{sT} offen offset:{i*1024} {gfl} lds")
        A(f"s_mov_b32 m0, {LDS_CHK + w*2048}")
        A(f"s_add_u32 s{sT}, s{sCKo}, {w*2048}")
        for i in range(2):
            A(f"buffer_load_dwordx4 v{vA_lin}, {sr(SWS,4)}, s{sT} offen offset:{i*1024} {gfl} lds")
        if w == 0:
            A("s_waitcnt vmcnt(10)")
            zchk()
            A(f"s_mov_b32 s{sNeed}, 1")
            A("s_cbranch_vccnz L_zlater")
            zred()
            A(f"s_mov_b32 s{sNeed}, 0")
            LB("L_zlater")
            xstamp(5)
        p = w + 1 - GW
        if p > cur[0] and w < 7:
            A(f"s_waitcnt vmcnt({10*GW})")
            gsignal(p)
    xstamp(6)
    for p in range(cur[0] + 1, 9):
        A(f"s_waitcnt vmcnt({10*(8 - p)})")
        gsignal(p)
    xstamp(7)
    A(f"s_cmp_eq_u32 s{sNeed}, 0")
    A("s_cbranch_scc1 L_hend")
    LB("L_zre")
    zload('sc1')
    A("s_waitcnt vmcnt(0)")
    zchk()
    A(f"s_sub_u32 s{sSpin2}, s{sSpin2}, 1")
    A("s_cbranch_scc1 L_zfin")
    A("s_cbranch_vccnz L_zre")
    LB("L_zfin")
    A("s_nop 1")
    zred()
    LB("L_hend")
    if stamps:
        xstamp(8)
        A("s_branch L_fin")
    else:
        A("s_endpgm")
    return HEADER.format(lds=LDS_TOTAL) + "\n".join(L) + FOOTER.format(vgpr=NV, sgpr=102 if stamps else 80, acc=NV)

if __name__ == '__main__':
    out = sys.argv[1]
    kw = {}
    for a in sys.argv[2:]:
        k, v = a.split('=')
        kw[k] = v if k in ('ld', 'st', 'gfl') else (tuple(map(int, v.split(','))) if k == 'rot' else int(v))
    open(out, 'w').write(gen(**kw))
```

```python
import sys, struct

def f2u(x): return struct.unpack('<I', struct.pack('<f', x))[0]

HEADER = """; Kernarg layout for this problem (56 bytes, ptrs only, base s[0:1]):
; @launch grid=(256,1,1) block=(640,1,1) lds={lds}
.amdgcn_target "amdgcn-amd-amdhsa--gfx950"
.text
.globl standalone__linear_kernel_rfa__prompt_kernel
.p2align 8
.type standalone__linear_kernel_rfa__prompt_kernel,@function
standalone__linear_kernel_rfa__prompt_kernel:
"""
FOOTER = """
.section .rodata,"a"
.p2align 6
.amdhsa_kernel standalone__linear_kernel_rfa__prompt_kernel
  .amdhsa_next_free_vgpr {vgpr}
  .amdhsa_next_free_sgpr {sgpr}
  .amdhsa_accum_offset {acc}
  .amdhsa_group_segment_fixed_size 0
  .amdhsa_kernarg_size 56
  .amdhsa_user_sgpr_count 2
  .amdhsa_user_sgpr_kernarg_segment_ptr 1
  .amdhsa_system_sgpr_workgroup_id_x 1
  .amdhsa_float_denorm_mode_32 3
  .amdhsa_float_denorm_mode_16_64 3
.end_amdhsa_kernel
"""

LDS_V, LDS_KQ, LDS_PHI, LDS_KVT, LDS_FLAG, LDS_OM = 0, 65536, 131072, 139264, 143360, 143616
LDS_CHK = LDS_OM
LDS_TOTAL = LDS_OM + 4096
HSTRIDE = 69632
WS_CHK, WS_ZS = 65536, 67584
WS_BYTES = 4 << 20
WS_STAMP = 3 << 20
NW = 10

def gen(ld='', st='sc1', gfl='', stamps=False, W=28, W2=20, WG=5, spin=200000, lw=0, hw=1, lprio=3, hprio=2,
        slp=1, pre=6, rot=(4,15), hmap=0, tfix=0, grot=0, own=1, fine=0, gq=1, nat=10, zat=0, nroot=8):
    L = []
    def A(s): L.append("    " + s)
    def LB(s): L.append(s + ":")
    def vr(a, n): return f"v[{a}:{a+n-1}]"
    def sr(a, n): return f"s[{a}:{a+n-1}]"
    SQ, SK, SV, SO, SOM, SWS, SDB = 24, 28, 32, 36, 40, 44, 48
    sBase, sBase2, sW, sH, sP, sWr = 52, 53, 54, 55, 56, 57
    sScale, sL2E, sQuart = 58, 60, 62
    sM = [64, 66, 68, 70]
    sHi = 72
    sKVo, sCKo, sGo, sT, sSpin, sM0, sSpin2 = 73, 74, 75, 76, 77, 78, 79
    sSt = 80
    sNeed, sRot = 18, 19
    vLane, vA_kq, vA_v0, vA_v1, vA_lin, vA_tr, vA_phi, vA_kvw = 1, 2, 3, 4, 5, 6, 7, 8
    vA_z, vA_kvr, vA_o, vA_phw = 9, 10, 14, 15
    vA_fl = vLane
    vPHQ = [16, 2]
    vEps = 18
    vNH = 20
    vXA = 22
    vOM = 24
    vK = 40
    vX = 72
    vT = 104
    vP = 120
    vG = 124
    vB = 128
    vKVB, vZB, vD = 128, 144, [148, 152]
    vA_kr = 160
    vA_kd = 40
    vOne, vA_g, vA_c, vA_cs = 4, 156, 157, 0
    vNon = 100
    vOwn = 96
    vC = 88
    NV = 164
    nst = [0]
    def stamp():
        if stamps:
            A(f"s_memrealtime {sr(sSt + 2*nst[0], 2)}")
            nst[0] += 1
    def xstamp(i):
        if stamps: A(f"s_memrealtime {sr(sSt + 2*i, 2)}")
    def srd(d, b, n):
        A(f"s_mov_b32 s{d}, s{b}"); A(f"s_mov_b32 s{d+1}, s{b+1}")
        A(f"s_mov_b32 s{d+2}, {n}"); A(f"s_mov_b32 s{d+3}, 0x20000")

    A("s_cmp_ge_u32 s2, 256")
    A("s_cbranch_scc1 L_end")
    stamp()
    if tfix: A("s_memrealtime s[20:21]")
    A("s_load_dwordx8 s[4:11], s[0:1], 0")
    A("s_load_dwordx4 s[12:15], s[0:1], 32")
    A("s_load_dwordx2 s[16:17], s[0:1], 48")
    A(f"v_lshrrev_b32 v{vT}, 6, v0")
    A(f"v_and_b32 v{vLane}, 63, v0")
    A(f"v_readfirstlane_b32 s{sWr}, v{vT}")
    if hmap == 0:
        A(f"s_and_b32 s{sH}, s2, 31")
        A(f"s_lshr_b32 s{sP}, s2, 5")
    else:
        A(f"s_lshr_b32 s{sH}, s2, 3")
        A(f"s_and_b32 s{sP}, s2, 7")
    vc, vg = vT + 1, vT + 2
    A(f"v_and_b32 v{vc}, 15, v{vLane}")
    A(f"v_lshrrev_b32 v{vg}, 4, v{vLane}")
    A(f"v_lshlrev_b32 v{vA_lin}, 4, v{vLane}")
    A(f"v_lshlrev_b32 v{vT+3}, 4, v{vg}")
    A(f"v_xor_b32 v{vT+4}, v{vc}, v{vg}")
    A(f"v_lshlrev_b32 v{vT+4}, 4, v{vT+4}")
    A(f"s_lshl_b32 s{sBase}, s{sH}, 19")
    A(f"s_lshl_b32 s{sT}, s{sP}, 16")
    A(f"s_add_u32 s{sBase}, s{sBase}, s{sT}")
    A(f"s_lshr_b32 s{sRot}, s2, {rot[0]}")
    A(f"s_and_b32 s{sRot}, s{sRot}, {rot[1]}")
    A(f"s_lshl_b32 s{sRot}, s{sRot}, 12")
    A(f"v_mov_b32 v{vA_fl}, {LDS_FLAG}")
    A(f"s_cmp_eq_u32 s{sWr}, {lw}")
    A("s_cbranch_scc1 L_loader")
    A(f"s_mul_i32 s{sKVo}, s{sH}, {HSTRIDE}")
    A(f"v_add_u32 v{vA_phi}, {LDS_PHI}, v{vA_lin}")
    A(f"s_mov_b32 s{sSpin}, {spin*16}")
    A(f"v_lshl_add_u32 v{vA_z}, v{vg}, 3, v{vA_fl}")
    A(f"v_mov_b32 v{vOne}, 1")
    A(f"s_cmp_eq_u32 s{sWr}, {hw}")
    A("s_cbranch_scc1 L_helper")
    A(f"s_mov_b32 s{sW}, s{sWr}")
    for special in sorted((lw, hw), reverse=True):
        A(f"s_cmp_gt_u32 s{sWr}, {special}")
        A(f"s_subb_u32 s{sW}, s{sW}, 0")
    A(f"s_lshl_b32 s{sM0}, s{sW}, 12")
    A(f"s_add_u32 s{sT}, s{sM0}, s{sRot}")
    A(f"s_and_b32 s{sT}, s{sT}, 0xffff")
    A(f"s_xor_b32 s{sBase2}, s{sT}, 0x8000")
    A(f"s_add_u32 s{sBase2}, s{sBase}, s{sBase2}")
    A(f"s_add_u32 s{sBase}, s{sBase}, s{sT}")
    A(f"s_add_u32 s{sT}, s{sM0}, {LDS_KQ}")
    A(f"s_lshl_b32 s{sM0}, s{sW}, 13")
    A(f"v_lshl_add_u32 v{vT+4}, v{vc}, 8, v{vT+4}")
    A(f"v_add_u32 v{vA_kr}, s{sT}, v{vT+4}")
    for i in range(1, 4):
        A(f"v_xor_b32 v{vA_kr+i}, {64*i}, v{vA_kr}")
    A(f"s_lshl_b32 s{sT}, s{sW}, 8")
    A(f"s_add_u32 s{sCKo}, s{sKVo}, s{sT}")
    A(f"s_add_u32 s{sCKo}, s{sCKo}, {WS_CHK}")
    A(f"s_add_u32 s{sKVo}, s{sKVo}, s{sM0}")
    A(f"s_mov_b32 s{sSpin2}, {spin}")
    sc = f2u(128.0 ** -0.25)
    A(f"s_mov_b32 s{sScale}, {sc:#x}"); A(f"s_mov_b32 s{sScale+1}, {sc:#x}")
    l2e = f2u(1.4426950408889634)
    A(f"s_mov_b32 s{sL2E}, {l2e:#x}"); A(f"s_mov_b32 s{sL2E+1}, {l2e:#x}")
    A(f"s_mov_b32 s{sQuart}, {f2u(0.25):#x}"); A(f"s_mov_b32 s{sQuart+1}, {f2u(0.25):#x}")
    for r in range(4):
        A(f"s_mov_b32 s{sM[r]}, {(1<<r)|(1<<(20+r)):#x}")
        A(f"s_mov_b32 s{sM[r]+1}, {(1<<(8+r))|(1<<(28+r)):#x}")
    A(f"s_mov_b32 s{sHi}, 0xffff0000")
    A(f"v_mov_b32 v{vEps}, {f2u(1e-6):#x}"); A(f"v_mov_b32 v{vEps+1}, {f2u(1e-6):#x}")
    A(f"v_mov_b32 v{vNH}, 0xbf00bf00"); A(f"v_mov_b32 v{vNH+1}, 0xbf00bf00")
    A(f"v_mov_b32 v{vXA+1}, 0")
    A(f"s_lshl_b32 s{sT}, s{sW}, 10")
    A(f"v_add_u32 v{vA_phw}, s{sT}, v{vA_phi}")
    A(f"v_lshrrev_b32 v{vT+4}, 2, v{vc}")
    A(f"v_lshl_add_u32 v{vT+4}, v{vg}, 2, v{vT+4}")
    A(f"v_and_b32 v{vT+5}, 7, v{vT+4}")
    A(f"v_xor_b32 v{vT+5}, s{sW}, v{vT+5}")
    A(f"v_lshlrev_b32 v{vT+5}, 5, v{vT+5}")
    A(f"v_lshl_add_u32 v{vT+5}, v{vT+4}, 8, v{vT+5}")
    A(f"v_and_b32 v{vT+6}, 3, v{vc}")
    A(f"v_lshl_add_u32 v{vA_tr}, v{vT+6}, 3, v{vT+5}")
    A(f"s_lshr_b32 s{sT}, s{sW}, 1")
    A(f"v_bfe_u32 v{vT+4}, v{vc}, 1, 2")
    A(f"v_xor_b32 v{vT+4}, s{sT}, v{vT+4}")
    A(f"v_lshlrev_b32 v{vT+4}, 4, v{vT+4}")
    A(f"v_and_b32 v{vT+5}, 1, v{vc}")
    A(f"v_lshl_add_u32 v{vT+4}, v{vT+5}, 3, v{vT+4}")
    A(f"v_lshrrev_b32 v{vT+5}, 3, v{vc}")
    A(f"v_lshl_add_u32 v{vT+4}, v{vT+5}, 6, v{vT+4}")
    A(f"v_lshl_add_u32 v{vT+4}, v{vg}, 10, v{vT+4}")
    A(f"s_lshl_b32 s{sT}, s{sW}, 7")
    A(f"s_add_u32 s{sT}, s{sT}, {LDS_KVT}")
    A(f"v_add_u32 v{vA_kvw}, s{sT}, v{vT+4}")
    A(f"v_lshrrev_b32 v{vT+4}, 2, v{vc}")
    A(f"v_lshlrev_b32 v{vT+4}, 4, v{vT+4}")
    A(f"v_lshl_add_u32 v{vT+4}, v{vc}, 6, v{vT+4}")
    A(f"v_lshl_add_u32 v{vT+4}, v{vg}, 10, v{vT+4}")
    A(f"v_add_u32 v{vA_kvr}, {LDS_KVT}, v{vT+4}")
    for k in range(1, 4):
        A(f"v_xor_b32 v{vA_kvr+k}, {16*k}, v{vA_kvr}")
    A(f"v_lshrrev_b32 v{vA_cs}, 5, v{vA_lin}")
    A(f"v_and_b32 v{vA_cs}, 28, v{vA_cs}")
    A(f"v_lshlrev_b32 v{vT+4}, 4, v{vc}")
    A(f"v_lshl_add_u32 v{vA_o}, v{vg}, 10, v{vT+4}")
    A("s_waitcnt lgkmcnt(0)")
    srd(SO, 12, 1 << 24); srd(SWS, 16, WS_BYTES)
    A("s_barrier")

    npoll = [0]
    def poll(off, need, sleep=True, extra=None):
        n = npoll[0]; npoll[0] += 1
        LB(f"L_p{n}")
        A(f"ds_read_b32 v{vT}, v{vA_fl} offset:{off}")
        if extra: A(extra)
        A("s_waitcnt lgkmcnt(0)")
        A(f"v_cmp_le_i32 vcc, {need}, v{vT}")
        A(f"s_cbranch_vccnz L_pk{n}")
        if sleep and slp: A(f"s_sleep {slp}")
        A(f"s_sub_u32 s{sSpin}, s{sSpin}, 1")
        A(f"s_cbranch_scc0 L_p{n}")
        A(f"s_mov_b32 s{sSpin}, 0")
        LB(f"L_pk{n}")
    def pollw(base):
        A(f"s_add_u32 s{sNeed}, s{sW}, {base}")
        poll(4, f"s{sNeed}")
    def rdkq(t):
        for s in range(4):
            A(f"ds_read_b128 {vr(vX+4*s,4)}, v{vA_kr+s} offset:{t*32768}")

    def scale4(base):
        for i in range(4):
            A(f"v_lshlrev_b32 v{vT+2*i}, 16, v{base+i}")
            A(f"v_and_b32 v{vT+2*i+1}, s{sHi}, v{base+i}")
        for i in range(4):
            A(f"v_pk_mul_f32 {vr(vT+2*i,2)}, {vr(vT+2*i,2)}, {sr(sScale,2)}")
        for i in range(4):
            A(f"v_cvt_pk_bf16_f32 v{base+i}, v{vT+2*i}, v{vT+2*i+1}")

    def round4(dst, src):
        for i in range(4):
            A(f"v_cvt_pk_bf16_f32 v{dst+i}, 0, v{src+i}")

    def phi(isq, out):
        base = vX
        for s in range(4):
            A(f"s_waitcnt lgkmcnt({3-s})")
            scale4(base + 4*s)
            if s > 0:
                x = vr(base+4*(s-1), 4); o = vr(vOM+4*(s-1), 4)
                c0 = "0" if s == 1 else vr(vG, 4); c1 = "0" if s == 1 else vr(vP, 4)
                A(f"v_mfma_f32_16x16x32_bf16 {vr(vG,4)}, {x}, {x}, {c0}")
                A(f"v_mfma_f32_16x16x32_bf16 {vr(vP,4)}, {o if isq else x}, {x if isq else o}, {c1}")
        x = vr(base+12, 4); o = vr(vOM+12, 4)
        A("s_nop 1")
        A(f"v_mfma_f32_16x16x32_bf16 {vr(vG,4)}, {x}, {x}, {vr(vG,4)}")
        A(f"v_mfma_f32_16x16x32_bf16 {vr(vP,4)}, {o if isq else x}, {x if isq else o}, {vr(vP,4)}")
        A("s_nop 6")
        A(f"v_cndmask_b32 v{vT}, 0, v{vG}, {sr(sM[0],2)}")
        for r in range(1, 4):
            A(f"v_cndmask_b32 v{vT}, v{vT}, v{vG+r}, {sr(sM[r],2)}")
        A(f"v_cvt_pk_bf16_f32 v{vXA}, v{vT}, v{vXA+1}")
        round4(vT+4, vP)
        A("s_nop 1")
        a, b = (vr(vNH,2), vr(vXA,2)) if isq else (vr(vXA,2), vr(vNH,2))
        A(f"v_mfma_f32_16x16x16_bf16 {vr(vP,4)}, {a}, {b}, {vr(vT+4,4)}")
        A("s_nop 7")
        round4(vT+8, vP)
        A(f"v_pk_mul_f32 {vr(vT+8,2)}, {vr(vT+8,2)}, {sr(sL2E,2)}")
        A(f"v_pk_mul_f32 {vr(vT+10,2)}, {vr(vT+10,2)}, {sr(sL2E,2)}")
        for i in range(4):
            A(f"v_exp_f32 v{vT+8+i}, v{vT+8+i}")
        A("s_nop 0")
        round4(vT+12, vT+8)
        A(f"v_pk_fma_f32 {vr(vT+12,2)}, {vr(vT+12,2)}, {sr(sQuart,2)}, {vr(vEps,2)}")
        A(f"v_pk_fma_f32 {vr(vT+14,2)}, {vr(vT+14,2)}, {sr(sQuart,2)}, {vr(vEps,2)}")
        A(f"v_cvt_pk_bf16_f32 v{out}, v{vT+12}, v{vT+13}")
        A(f"v_cvt_pk_bf16_f32 v{out+1}, v{vT+14}, v{vT+15}")

    pollw(2)
    if not fine: stamp()
    for s in range(4):
        A(f"ds_read_b128 {vr(vOM+4*s,4)}, v{vA_phi} offset:{LDS_OM-LDS_PHI+1024*s}")
    rdkq(0)
    phi(False, vK)
    pollw(10)
    if not fine: stamp()
    rdkq(1)
    phi(False, vK+2)
    A(f"ds_write_b128 v{vA_phw}, {vr(vK,4)}")
    A("s_waitcnt lgkmcnt(0)")
    A("s_barrier")
    if not fine: stamp()
    for b in range(8):
        A(f"ds_read_b128 {vr(vK+4*b,4)}, v{vA_phi} offset:{1024*b}")
    A(f"ds_read_b64 {vr(vNon,2)}, v{vA_fl} offset:24")
    poll(4, 33, sleep=False)
    stamp()
    for b in range(8):
        A(f"ds_read_b64_tr_b16 {vr(vB+4*b,2)}, v{vA_tr} offset:{4096*b}")
        A(f"ds_read_b64_tr_b16 {vr(vB+4*b+2,2)}, v{vA_tr} offset:{4096*b+32768}")
    for b in range(8):
        A(f"s_waitcnt lgkmcnt({14-2*b})")
        A(f"v_mfma_f32_16x16x32_bf16 {vr(vOwn,4)}, {vr(vK+4*b,4)}, {vr(vB+4*b,4)}, {'0' if b==0 else vr(vOwn,4)}")
    A("s_mov_b64 exec, 1")
    A(f"ds_add_u32 v{vA_fl}, v{vOne} offset:12")
    A("s_mov_b64 exec, -1")
    A(f"s_lshl_b32 s{sT}, s{sP}, 10")
    A(f"s_add_u32 s{sT}, s{sT}, s{sKVo}")
    A(f"s_lshl_b32 s{sNeed}, s{sP}, 5")
    A(f"s_add_u32 s{sNeed}, s{sNeed}, s{sCKo}")
    A("s_nop 0")
    A(f"buffer_store_dwordx4 {vr(vOwn,4)}, v{vA_lin}, {sr(SWS,4)}, s{sT} offen sc1")
    A(f"v_xor_b32 v{vT}, v{vOwn}, v{vOwn+1}")
    A(f"v_bitop3_b32 v{vT}, v{vT}, v{vOwn+2}, v{vOwn+3} bitop3:0x96")
    def xred8(r):
        for pat in ("quad_perm:[1,0,3,2]", "quad_perm:[2,3,0,1]", "row_half_mirror"):
            A("s_nop 1")
            A(f"v_xor_b32_dpp v{r}, v{r}, v{r} {pat} row_mask:0xf bank_mask:0xf")
    xred8(vT)
    A(f"v_xor_b32 v{vT}, v{vT}, v{vNon}")
    A("s_mov_b32 exec_lo, 0x01010101")
    A("s_mov_b32 exec_hi, 0x01010101")
    A(f"buffer_store_dword v{vT}, v{vA_cs}, {sr(SWS,4)}, s{sNeed} offen sc1")
    A("s_mov_b64 exec, -1")
    if not fine: stamp()
    pollw(34)
    rdkq(0)
    phi(True, vPHQ[0])
    stamp()
    pollw(42)
    if fine: stamp()
    rdkq(1)
    phi(True, vPHQ[1])
    if fine: stamp()
    poll(8, 1, extra=f"ds_read_b64 {vr(vZB,2)}, v{vA_z} offset:32")
    for t in range(2):
        A(f"v_mfma_f32_16x16x16_bf16 {vr(vD[t],4)}, {vr(vPHQ[t],2)}, {vr(vZB,2)}, 0")
    A(f"v_add_u32 v{vA_g}, s{sM0}, v{vA_lin}")
    if grot:
        A(f"s_sub_u32 s{sNeed}, s{sW}, s{sP}")
        A(f"s_and_b32 s{sNeed}, s{sNeed}, 7")
        A(f"s_add_u32 s{sNeed}, s{sNeed}, 1")
    else:
        A(f"s_add_u32 s{sNeed}, s{sW}, 1")
    A(f"v_and_b32 v{vA_c}, 0x70, v{vA_lin}")
    A(f"v_lshl_add_u32 v{vA_c}, v{vA_c}, 1, v{vA_cs}")
    A(f"s_lshl_b32 s{sT}, s{sP}, 10")
    A(f"v_add_u32 v{vA_g+2}, s{sT}, v{vA_g}")
    A(f"s_lshl_b32 s{sT}, s{sW}, 8")
    A(f"s_add_u32 s{sT}, s{sT}, {LDS_CHK}")
    A(f"v_add_u32 v{vA_g+3}, s{sT}, v{vA_c}")
    for t in range(2):
        round4(vD[t], vD[t])
        A(f"v_pk_add_f32 {vr(vD[t],2)}, {vr(vD[t],2)}, {vr(vEps,2)}")
        A(f"v_pk_add_f32 {vr(vD[t]+2,2)}, {vr(vD[t]+2,2)}, {vr(vEps,2)}")
        round4(vD[t], vD[t])
        for i in range(4): A(f"v_rcp_f32 v{vD[t]+i}, v{vD[t]+i}")
    stamp()
    poll(0, f"s{sNeed}", sleep=False)
    if fine: stamp()
    vGa = vK
    if own: A(f"ds_write_b128 v{vA_g+2}, {vr(vOwn,4)}")
    A(f"ds_read_b32 v{vC}, v{vA_g+3}")
    for p in range(8):
        A(f"ds_read_b128 {vr(vGa+4*p,4)}, v{vA_g} offset:{1024*p}")
    vS = vT
    def gsum(counted):
        for p in range(8):
            if counted and p != 0: A(f"s_waitcnt lgkmcnt({7 - p})")
            if p == 0: continue
            if p == 1:
                A(f"v_pk_add_f32 {vr(vS,2)}, {vr(vGa,2)}, {vr(vGa+4,2)}")
                A(f"v_pk_add_f32 {vr(vS+2,2)}, {vr(vGa+2,2)}, {vr(vGa+6,2)}")
                A(f"v_bitop3_b32 v{vC}, v{vC}, v{vGa}, v{vGa+1} bitop3:0x96")
                A(f"v_xor_b32 v{vC+1}, v{vGa+2}, v{vGa+3}")
            else:
                A(f"v_pk_add_f32 {vr(vS,2)}, {vr(vS,2)}, {vr(vGa+4*p,2)}")
                A(f"v_pk_add_f32 {vr(vS+2,2)}, {vr(vS+2,2)}, {vr(vGa+4*p+2,2)}")
            A(f"v_bitop3_b32 v{vC}, v{vC}, v{vGa+4*p}, v{vGa+4*p+1} bitop3:0x96")
            A(f"v_bitop3_b32 v{vC+1}, v{vC+1}, v{vGa+4*p+2}, v{vGa+4*p+3} bitop3:0x96")
        A(f"v_xor_b32 v{vC}, v{vC}, v{vC+1}")
        A(f"v_cvt_pk_bf16_f32 v{vT+12}, v{vS}, v{vS+1}")
        A(f"v_cvt_pk_bf16_f32 v{vT+13}, v{vS+2}, v{vS+3}")
        A(f"v_xor_b32_dpp v{vC}, v{vC}, v{vC} quad_perm:[1,0,3,2] row_mask:0xf bank_mask:0xf")
        A(f"ds_write_b64 v{vA_kvw}, {vr(vT+12,2)}")
        A("s_nop 0")
        A(f"v_xor_b32_dpp v{vC}, v{vC}, v{vC} quad_perm:[2,3,0,1] row_mask:0xf bank_mask:0xf")
        A("s_nop 1")
        A(f"v_xor_b32_dpp v{vC}, v{vC}, v{vC} row_half_mirror row_mask:0xf bank_mask:0xf")
        A(f"v_cmp_ne_u32 vcc, v{vC}, v{vNon+1}")
    gsum(True)
    A("s_cbranch_vccnz L_regather")
    LB("L_gok")
    if fine: stamp()
    A("s_waitcnt lgkmcnt(0)")
    A("s_barrier")
    stamp()
    for k in range(4):
        A(f"ds_read_b128 {vr(vKVB+4*k,4)}, v{vA_kvr+k}")
    vN = [vK, vX]
    for k in range(4):
        A(f"s_waitcnt lgkmcnt({3-k})")
        for j in range(2):
            dd = 2*k + j
            A(f"v_mfma_f32_16x16x16_bf16 {vr(vN[0]+4*dd,4)}, {vr(vPHQ[0],2)}, {vr(vKVB+2*dd,2)}, 0")
    for dd in range(8):
        A(f"v_mfma_f32_16x16x16_bf16 {vr(vN[1]+4*dd,4)}, {vr(vPHQ[1],2)}, {vr(vKVB+2*dd,2)}, 0")
    no = 0
    for t in range(2):
        for rp in range(2):
            r0 = 2*rp
            for dd in range(8):
                for r in (r0, r0+1):
                    A(f"v_cvt_pk_bf16_f32 v{vN[t]+4*dd+r}, 0, v{vN[t]+4*dd+r}")
            for dd in range(8):
                A(f"v_pk_mul_f32 {vr(vN[t]+4*dd+r0,2)}, {vr(vN[t]+4*dd+r0,2)}, {vr(vD[t]+r0,2)}")
            for r in (r0, r0+1):
                o = vT + 4*(no % 4); no += 1
                for j in range(4):
                    A(f"v_cvt_pk_bf16_f32 v{o+j}, v{vN[t]+8*j+r}, v{vN[t]+8*j+4+r}")
                A(f"buffer_store_dwordx4 {vr(o,4)}, v{vA_o}, {sr(SO,4)}, s{sBase+t} offen offset:{256*r} {st}")
    LB("L_fin")
    if tfix:
        LB("L_tf")
        A("s_memrealtime s[22:23]")
        A("s_waitcnt lgkmcnt(0)")
        A("s_sub_u32 s22, s22, s20")
        A(f"s_cmp_lt_u32 s22, {tfix}")
        A("s_cbranch_scc1 L_tf")
    if stamps:
        stamp()
        A("s_waitcnt vmcnt(0)")
        stamp()
        A("s_waitcnt lgkmcnt(0)")
        assert nst[0] <= 11, nst[0]
        for i in range(12):
            A(f"v_mov_b32 v{vK+i}, s{sSt+2*i}" if i < nst[0] else f"v_mov_b32 v{vK+i}, s{sSpin2}")
        A(f"s_mul_i32 s{sT}, s2, {NW}")
        A(f"s_add_u32 s{sT}, s{sT}, s{sWr}")
        A(f"s_mul_i32 s{sT}, s{sT}, 48")
        A(f"s_add_u32 s{sT}, s{sT}, {WS_STAMP}")
        A("s_mov_b64 exec, 1")
        for i in range(3):
            A(f"buffer_store_dwordx4 {vr(vK+4*i,4)}, off, {sr(SWS,4)}, s{sT} offset:{16*i}")
    LB("L_end")
    A("s_endpgm")

    LB("L_regather")
    A(f"s_add_u32 s{sT}, s{sKVo}, 4096")
    A(f"buffer_load_dword v{vC}, v{vA_c}, {sr(SWS,4)}, s{sCKo} offen sc1")
    for p in range(8):
        A(f"buffer_load_dwordx4 {vr(vGa+4*p,4)}, v{vA_lin}, {sr(SWS,4)}, s{sKVo if p < 4 else sT} offen offset:{(p%4)*1024} sc1")
    A("s_waitcnt vmcnt(0)")
    gsum(False)
    A("s_cbranch_vccz L_gok")
    A(f"s_sub_u32 s{sSpin2}, s{sSpin2}, 1")
    A("s_cbranch_scc0 L_regather")
    A("s_branch L_gok")

    LB("L_loader")
    if lprio: A(f"s_setprio {lprio}")
    A(f"v_lshl_add_u32 v{vA_kq}, v{vc}, 8, v{vT+3}")
    A(f"v_lshl_add_u32 v{vA_kd}, v{vg}, 8, v{vT+4}")
    for i in range(1, 4):
        A(f"v_xor_b32 v{vA_kd+i}, {64*i}, v{vA_kd}")
    A(f"v_lshlrev_b32 v{vT+5}, 1, v{vg}")
    A(f"v_xor_b32 v{vT+5}, v{vT+5}, v{vc}")
    A(f"v_lshlrev_b32 v{vT+5}, 4, v{vT+5}")
    A(f"v_lshl_add_u32 v{vA_v0}, v{vg}, 8, v{vT+5}")
    A(f"v_xor_b32 v{vA_v1}, 128, v{vA_v0}")
    A(f"v_mov_b32 v{vT+6}, 0")
    A(f"v_mov_b32 v{vT+8}, 1")
    A(f"ds_write_b32 v{vA_fl}, v{vT+6} offset:4")
    A("s_waitcnt lgkmcnt(0)")
    srd(SOM, 10, 4096); srd(SK, 6, 1 << 24)
    ngroups = 49
    cur = [0]
    def signal(p, off=4):
        cur[0] = p
        r = vT + 6 + ((p if off else p >> 1) & 1)
        A(f"v_mov_b32 v{r}, {p}")
        A(f"ds_write_b32 v{vA_fl}, v{r} offset:{off}")
    for n in range(ngroups):
        if n == 0:
            for s in range(4):
                A(f"s_mov_b32 m0, {LDS_OM + s*1024 - s*64}")
                A("s_nop 0")
                A(f"buffer_load_dwordx4 v{vA_kq}, {sr(SOM,4)}, 0 offen offset:{64*s} lds")
        else:
            if n <= 16: S, off, ldsb, regs = SK, (n-1)*4096, LDS_KQ, [vA_kd+i for i in range(4)]
            elif n <= 32: S, off, ldsb, regs = SV, (n-17)*4096, LDS_V, [vA_v0, vA_v1, vA_v0, vA_v1]
            else: S, off, ldsb, regs = SQ, (n-33)*4096, LDS_KQ, [vA_kd+i for i in range(4)]
            if n == 33:
                xstamp(2)
                A("s_barrier")
                xstamp(3)
            A(f"s_mov_b32 m0, {ldsb + off}")
            A(f"s_add_u32 s{sT}, s{sRot}, {off}")
            A(f"s_and_b32 s{sT}, s{sT}, 0xffff")
            A(f"s_add_u32 s{sT}, s{sBase}, s{sT}")
            for i in range(4):
                A(f"buffer_load_dwordx4 v{regs[i]}, {sr(S,4)}, s{sT} offen offset:{i*1024} {ld} lds")
        if n == 1: srd(SV, 8, 1 << 24); srd(SQ, 4, 1 << 24)
        if n == pre:
            A("s_barrier")
            xstamp(1)
        if n == ngroups - gq:
            A(f"ds_write_b32 v{vA_fl}, v{vT+8} offset:16")
        w = W if cur[0] < 33 else W2
        p = n + 1 - w // 4
        if p > cur[0] and n < ngroups - 1:
            A(f"s_waitcnt vmcnt({w})")
            signal(p)
    xstamp(4)
    for p in range(cur[0] + 1, ngroups + 1):
        A(f"s_waitcnt vmcnt({4*(ngroups - p)})")
        signal(p)
    if stamps:
        for i in range(5, 9): xstamp(i)
        srd(SWS, 16, WS_BYTES)
        A(f"s_mov_b32 s{sSpin2}, {spin}")
        A("s_branch L_fin")
    else:
        A("s_endpgm")

    LB("L_helper")
    if hprio: A(f"s_setprio {hprio}")
    A("s_memrealtime s[22:23]")
    A(f"v_mov_b32 v{vT+8}, 0")
    A(f"v_mov_b32 v{vT+9}, 0")
    A(f"ds_write_b32 v{vA_fl}, v{vT+8}")
    A(f"ds_write_b64 v{vA_fl}, {vr(vT+8,2)} offset:8")
    A(f"ds_write_b32 v{vA_fl}, v{vT+8} offset:16")
    A(f"v_mov_b32 v{vT+12}, 0x3f803f80")
    for i in range(1, 4): A(f"v_mov_b32 v{vT+12+i}, v{vT+12}")
    A(f"v_and_b32 v{vX+2}, 7, v{vc}")
    A(f"v_lshl_add_u32 v{vX}, v{vX+2}, 7, v{vT+3}")
    A(f"v_lshlrev_b32 v{vX+3}, 2, v{vg}")
    A(f"v_lshl_add_u32 v{vX+1}, v{vX+2}, 7, v{vX+3}")
    A(f"s_mov_b32 s{sSpin2}, {spin}")
    A("s_waitcnt lgkmcnt(0)")
    srd(SWS, 16, WS_BYTES); srd(SDB, 14, 256)
    A("s_barrier")
    A(f"s_cmp_ge_u32 s2, {nroot}")
    A("s_cbranch_scc1 L_noroot")
    A("s_or_b32 s22, s22, 0x80000000")
    A(f"v_mov_b32 v{vT+8}, s22")
    A("s_mov_b64 exec, 1")
    A(f"buffer_atomic_cmpswap {vr(vT+8,2)}, off, {sr(SDB,4)}, 0 sc1")
    A("s_mov_b64 exec, -1")
    LB("L_noroot")
    A(f"s_add_u32 s{sGo}, s{sKVo}, {WS_ZS}")
    A(f"s_lshl_b32 s{sT}, s{sP}, 7")
    A(f"s_add_u32 s{sM0}, s{sT}, s{sGo}")
    poll(4, nat)
    LB("L_non")
    A(f"buffer_load_dword v{vNon}, off, {sr(SDB,4)}, 0 sc1")
    A("s_waitcnt vmcnt(0)")
    A(f"v_cmp_ne_u32 vcc, 0, v{vNon}")
    A("s_cbranch_vccnz L_nonk")
    A(f"s_sub_u32 s{sSpin2}, s{sSpin2}, 1")
    A("s_cbranch_scc0 L_non")
    A(f"s_mov_b32 s{sSpin2}, 0")
    LB("L_nonk")
    sK1 = 60
    A(f"s_mov_b32 s{sK1}, 0x9E3779B1")
    A(f"v_add_u32 v{vNon+1}, s{sP}, v{vNon}")
    A(f"v_add_u32 v{vX+4}, v{vX+2}, v{vNon}")
    for r in (vNon+1, vX+4):
        A(f"v_mul_lo_u32 v{r}, v{r}, s{sK1}")
        A(f"v_lshrrev_b32 v{vX+5}, 15, v{r}")
        A(f"v_xor_b32 v{r}, v{r}, v{vX+5}")
        A(f"v_mul_lo_u32 v{r}, v{r}, s{sK1}")
        A(f"v_lshrrev_b32 v{vX+5}, 13, v{r}")
        A(f"v_xor_b32 v{r}, v{r}, v{vX+5}")
    A(f"v_mov_b32 v{vNon}, v{vNon+1}")
    A(f"v_mov_b32 v{vNon+1}, v{vX+4}")
    xred8(vNon+1)
    A(f"ds_write_b64 v{vA_fl}, {vr(vNon,2)} offset:24")
    xstamp(1)
    A("s_waitcnt lgkmcnt(0)")
    A("s_barrier")
    for b in range(8):
        A(f"ds_read_b128 {vr(vK+4*b,4)}, v{vA_phi} offset:{1024*b}")
    for b in range(8):
        A(f"s_waitcnt lgkmcnt({7-b})")
        A(f"v_mfma_f32_16x16x32_bf16 {vr(vP,4)}, {vr(vK+4*b,4)}, {vr(vT+12,4)}, {'0' if b==0 else vr(vP,4)}")
    A("s_mov_b32 exec_lo, 0x00010001")
    A("s_mov_b32 exec_hi, 0x00010001")
    A("s_nop 5")
    A(f"buffer_store_dwordx4 {vr(vP,4)}, v{vT+3}, {sr(SWS,4)}, s{sM0} offen sc1")
    A(f"v_bitop3_b32 v{vT}, v{vP}, v{vP+1}, v{vP+2} bitop3:0x96")
    A(f"v_bitop3_b32 v{vT}, v{vT}, v{vP+3}, v{vNon} bitop3:0x96")
    A(f"buffer_store_dword v{vT}, v{vX+3}, {sr(SWS,4)}, s{sM0} offen offset:64 sc1")
    A("s_mov_b64 exec, -1")
    xstamp(2)
    vZg = vK
    def zload(fl):
        A(f"buffer_load_dwordx4 {vr(vZg,4)}, v{vX}, {sr(SWS,4)}, s{sGo} offen {fl}")
        A(f"buffer_load_dword v{vZg+10}, v{vX+1}, {sr(SWS,4)}, s{sGo} offen offset:64 {fl}")
    def zchk():
        A(f"v_bitop3_b32 v{vZg+10}, v{vZg+10}, v{vZg}, v{vZg+1} bitop3:0x96")
        A(f"v_bitop3_b32 v{vZg+10}, v{vZg+10}, v{vZg+2}, v{vZg+3} bitop3:0x96")
        A(f"v_cmp_ne_u32 vcc, v{vZg+10}, v{vX+4}")
    def zred():
        for i in range(4):
            A(f"v_add_f32_dpp v{vZg+4+i}, v{vZg+i}, v{vZg+i} quad_perm:[1,0,3,2] row_mask:0xf bank_mask:0xf")
        for i in range(4):
            A(f"v_add_f32_dpp v{vZg+i}, v{vZg+4+i}, v{vZg+4+i} quad_perm:[2,3,0,1] row_mask:0xf bank_mask:0xf")
        for i in range(4):
            A(f"v_add_f32_dpp v{vZg+4+i}, v{vZg+i}, v{vZg+i} row_half_mirror row_mask:0xf bank_mask:0xf")
        A(f"v_cvt_pk_bf16_f32 v{vZg+8}, v{vZg+4}, v{vZg+5}")
        A(f"v_cvt_pk_bf16_f32 v{vZg+9}, v{vZg+6}, v{vZg+7}")
        A(f"ds_write_b64 v{vA_z}, {vr(vZg+8,2)} offset:32")
        A(f"ds_write_b32 v{vA_fl}, v{vOne} offset:8")
    poll(4, zat if zat else 35)
    zload('sc1')
    xstamp(3)
    cur[0] = 0
    A(f"s_add_u32 s{sCKo}, s{sKVo}, {WS_CHK}")
    def gsignal(p):
        cur[0] = p
        A(f"v_mov_b32 v{vT+6+(p&1)}, {p}")
        A(f"ds_write_b32 v{vA_fl}, v{vT+6+(p&1)}")
    GW = WG
    NL = 7 if own else 8
    sG1, sG2, sO = 58, 59, 64
    A(f"v_lshrrev_b32 v{vX+6}, 2, v{vA_lin}")
    for i in range(NL):
        if own:
            A(f"s_add_u32 s{sO+i}, s{sP}, {i+1}")
            A(f"s_and_b32 s{sO+i}, s{sO+i}, 7")
            A(f"s_lshl_b32 s{sO+i}, s{sO+i}, 10")
        else:
            A(f"s_mov_b32 s{sO+i}, {i*1024}")
    poll(12, 8, sleep=False)
    poll(16, 1, sleep=False)
    xstamp(4)
    for w in range(8):
        if grot:
            A(f"s_add_u32 s{sG1}, s{sP}, {w}")
            A(f"s_and_b32 s{sG1}, s{sG1}, 7")
            A(f"s_lshl_b32 s{sG1}, s{sG1}, 13")
        else:
            A(f"s_mov_b32 s{sG1}, {w*8192}")
        for i in range(NL):
            A(f"s_add_u32 m0, s{sG1}, s{sO+i}")
            A(f"s_add_u32 s{sT}, s{sKVo}, m0")
            A(f"buffer_load_dwordx4 v{vA_lin}, {sr(SWS,4)}, s{sT} offen {gfl} lds")
        A(f"s_lshr_b32 s{sG2}, s{sG1}, 5")
        A(f"s_add_u32 m0, s{sG2}, {LDS_CHK}")
        A(f"s_add_u32 s{sT}, s{sCKo}, s{sG2}")
        A(f"buffer_load_dword v{vX+6}, {sr(SWS,4)}, s{sT} offen {gfl} lds")
        if w == 0:
            A(f"s_waitcnt vmcnt({NL+1})")
            zchk()
            A(f"s_mov_b32 s{sNeed}, 1")
            A("s_cbranch_vccnz L_zlater")
            zred()
            A(f"s_mov_b32 s{sNeed}, 0")
            LB("L_zlater")
            xstamp(5)
        p = w + 1 - GW
        if p > cur[0] and w < 7:
            A(f"s_waitcnt vmcnt({(NL+1)*GW})")
            gsignal(p)
    xstamp(6)
    for p in range(cur[0] + 1, 9):
        A(f"s_waitcnt vmcnt({(NL+1)*(8 - p)})")
        gsignal(p)
    xstamp(7)
    A(f"s_cmp_eq_u32 s{sNeed}, 0")
    A("s_cbranch_scc1 L_hend")
    LB("L_zre")
    zload('sc1')
    A("s_waitcnt vmcnt(0)")
    zchk()
    A(f"s_sub_u32 s{sSpin2}, s{sSpin2}, 1")
    A("s_cbranch_scc1 L_zfin")
    A("s_cbranch_vccnz L_zre")
    LB("L_zfin")
    A("s_nop 1")
    zred()
    LB("L_hend")
    if stamps:
        xstamp(8)
        A("s_branch L_fin")
    else:
        A("s_endpgm")
    return HEADER.format(lds=LDS_TOTAL) + "\n".join(L) + FOOTER.format(vgpr=NV, sgpr=102 if stamps else 80, acc=NV)

if __name__ == '__main__':
    out = sys.argv[1]
    kw = {}
    for a in sys.argv[2:]:
        k, v = a.split('=')
        kw[k] = v if k in ('ld', 'st', 'gfl') else (tuple(map(int, v.split(','))) if k == 'rot' else int(v))
    open(out, 'w').write(gen(**kw))
```

```python
import sys, struct

def f2u(x): return struct.unpack('<I', struct.pack('<f', x))[0]

HEADER = """; Linear (random-feature) attention, B=1 H=32 S=2048 D=128 M=16, bf16.
; @launch grid=(256,1,1) block=(640,1,1) lds={lds}
.amdgcn_target "amdgcn-amd-amdhsa--gfx950"
.text
.globl standalone__linear_kernel_rfa__prompt_kernel
.p2align 8
.type standalone__linear_kernel_rfa__prompt_kernel,@function
standalone__linear_kernel_rfa__prompt_kernel:
"""
FOOTER = """
.section .rodata,"a"
.p2align 6
.amdhsa_kernel standalone__linear_kernel_rfa__prompt_kernel
  .amdhsa_next_free_vgpr {vgpr}
  .amdhsa_next_free_sgpr {sgpr}
  .amdhsa_accum_offset {acc}
  .amdhsa_group_segment_fixed_size 0
  .amdhsa_kernarg_size 56
  .amdhsa_user_sgpr_count 2
  .amdhsa_user_sgpr_kernarg_segment_ptr 1
  .amdhsa_system_sgpr_workgroup_id_x 1
  .amdhsa_float_denorm_mode_32 3
  .amdhsa_float_denorm_mode_16_64 3
.end_amdhsa_kernel
"""

LDS_V, LDS_KQ, LDS_PHI, LDS_KVT, LDS_FLAG, LDS_OM = 0, 65536, 131072, 139264, 143360, 143616
LDS_CHK = LDS_OM
LDS_TOTAL = LDS_OM + 4096
HSTRIDE = 69632
WS_CHK, WS_ZS = 65536, 67584
WS_BYTES = 4 << 20
WS_STAMP = 3 << 20
NW = 10

def gen(ld='nt', st='nt', gfl='', stamps=False, W=28, W2=20, WG=5, spin=200000, lprio=3, hprio=2,
        slp=1, pre=5, rot=(4,15), hmap=0, nat=10, zat=35, nroot=8, pf=1, fine=0, mi=4, dena=2, gT=3, gq=0, gprio=0, lT=5, qprio=0):
    L = []
    def A(s): L.append("    " + s)
    def C(s): L.append("    ; " + s)
    def LB(s): L.append(s + ":")
    def vr(a, n): return f"v[{a}:{a+n-1}]"
    def sr(a, n): return f"s[{a}:{a+n-1}]"
    G, G2 = W // 4, W2 // 4
    SC, SOM, SO, SWS, SDB = 4, 8, 12, 16, 20
    sPQ, sPV = 24, 26
    sBase, sBase2, sW, sH, sP, sWr = 28, 29, 30, 31, 32, 33
    sScale, sL2E, sQuart = 34, 36, 38
    sM = [40, 42, 44, 46]
    sHi = 48
    sKVo, sCKo, sGo, sT, sSpin, sM0, sSpin2, sNeed, sRot = 49, 50, 51, 52, 53, 54, 55, 56, 57
    sRet = 58
    sPhiK, sPhiQ = 60, 62
    sOff, sEnd, sLds, sPr, sPh = 34, 35, 36, 37, 38
    sClk = 34
    sO = 40
    sG1, sG2, sK1 = 36, 37, 38
    sSt = 64
    vA_cs, vA_fl, vOne, vA_lin, vA_tr, vA_phi, vA_kvw = 0, 1, 4, 5, 6, 7, 8
    vA_z, vA_kvr, vA_o, vA_phw = 9, 10, 14, 15
    vPHQ = [2, 16]
    vR = 16
    vEps, vNH, vXA = 18, 20, 22
    vOM = 24
    vK = 40
    vX = 72
    vC, vOwn, vNon = 88, 96, 100
    vT = 104
    vP, vG = 120, 124
    vB = 128
    vKVB, vZB, vD = 128, 144, [148, 152]
    vA_g, vA_c = 156, 157
    vA_kr = 160
    NV = 168
    nst = [0]
    lite = (stamps == 2)
    def stamp(force=False):
        if lite and not force:
            nst[0] += 1
            return
        if stamps:
            A(f"s_memrealtime {sr(sSt + 2*nst[0], 2)}")
            nst[0] += 1
    def stamp_again(k):
        for j in range(k): A(f"s_memrealtime {sr(sSt + 2*(nst[0]-k+j), 2)}")
    def xstamp(i):
        if stamps and not lite: A(f"s_memrealtime {sr(sSt + 2*i, 2)}")
    def srdc(d, n):
        A(f"s_mov_b32 s{d+2}, {n}"); A(f"s_mov_b32 s{d+3}, 0x20000")

    A("s_cmp_ge_u32 s2, 256")
    A("s_cbranch_scc1 L_end")
    stamp(True)
    A(f"s_load_dwordx2 {sr(SC,2)}, s[0:1], 8")
    A(f"s_load_dwordx2 {sr(SOM,2)}, s[0:1], 24")
    A(f"v_readfirstlane_b32 s{sWr}, v0")
    vc, vg = vT + 1, vT + 2
    A(f"v_and_b32 v{vc}, 15, v0")
    A(f"v_bfe_u32 v{vg}, v0, 4, 2")
    if hmap == 0:
        A(f"s_and_b32 s{sH}, s2, 31")
        A(f"s_lshr_b32 s{sP}, s2, 5")
    else:
        A(f"s_lshr_b32 s{sH}, s2, 3")
        A(f"s_and_b32 s{sP}, s2, 7")
    A(f"v_xor_b32 v{vT+4}, v{vc}, v{vg}")
    A(f"v_lshlrev_b32 v{vT+4}, 4, v{vT+4}")
    A(f"s_lshl_b32 s{sBase}, s{sH}, 19")
    A(f"s_lshl_b32 s{sT}, s{sP}, 16")
    A(f"s_add_u32 s{sBase}, s{sBase}, s{sT}")
    if len(rot) == 2:
        A(f"s_bfe_u32 s{sRot}, s2, {rot[0] | (rot[1].bit_length() << 16):#x}")
    else:
        A(f"s_lshr_b32 s{sRot}, s2, {rot[0]}")
        A(f"s_mul_i32 s{sRot}, s{sRot}, {rot[1]}")
        A(f"s_and_b32 s{sT}, s2, 7")
        A(f"s_mul_i32 s{sT}, s{sT}, {rot[2]}")
        A(f"s_add_u32 s{sRot}, s{sRot}, s{sT}")
        A(f"s_and_b32 s{sRot}, s{sRot}, 15")
    A(f"s_lshl_b32 s{sRot}, s{sRot}, 12")
    A(f"s_lshr_b32 s{sWr}, s{sWr}, 6")
    A("s_cbranch_scc1 L_notloader")

    C("loader: streams omega, K, V, Q into LDS by DMA and publishes a progress count")
    vA = 40; vAq = 44; vAv = 48; vS = 52; vAo = 54
    A(f"v_lshl_add_u32 v{vA}, v{vg}, 8, v{vT+4}")
    for i in range(1, 4):
        A(f"v_xor_b32 v{vA+i}, {64*i}, v{vA}")
    srdc(SC, 1 << 24)
    A(f"s_mov_b32 m0, {LDS_KQ}")
    A(f"s_add_u32 s{sT}, s{sBase}, s{sRot}")
    if lprio: A(f"s_setprio {lprio}")
    A("s_waitcnt lgkmcnt(0)")
    for i in range(4):
        A(f"buffer_load_dwordx4 v{vA+i}, {sr(SC,4)}, s{sT} offen offset:{i*1024} {ld} lds")
    A(f"s_load_dwordx2 {sr(sPQ,2)}, s[0:1], 0")
    A(f"s_load_dwordx2 {sr(sPV,2)}, s[0:1], 16")
    if stamps: A(f"s_load_dwordx2 {sr(SWS,2)}, s[0:1], 48")
    srdc(SOM, 4096)
    A(f"v_lshlrev_b32 v{vT+3}, 4, v{vg}")
    A(f"v_lshl_add_u32 v{vAo}, v{vc}, 8, v{vT+3}")
    for s in range(4):
        A(f"s_mov_b32 m0, {LDS_OM + s*1024 - s*64}")
        A(["s_nop 0", f"s_mov_b32 s{sOff}, 4096", f"s_mov_b32 s{sEnd}, {pre*4096}", f"s_mov_b32 s{sLds}, {LDS_KQ}"][s])
        A(f"buffer_load_dwordx4 v{vAo}, {sr(SOM,4)}, 0 offen offset:{64*s} lds")
    A(f"s_mov_b32 s{sPr}, {2 - G}")
    A(f"s_mov_b32 s{sPh}, 0")
    A(f"v_mov_b32 v{vS}, 0")
    A(f"v_mov_b32 v{vA_fl}, {LDS_FLAG}")
    for i in range(4): A(f"v_mov_b32 v{vAq+i}, v{vA+i}")
    A(f"v_lshlrev_b32 v{vT+5}, 1, v{vg}")
    A(f"v_xor_b32 v{vT+5}, v{vT+5}, v{vc}")
    A(f"v_lshlrev_b32 v{vT+5}, 4, v{vT+5}")
    A(f"v_lshl_add_u32 v{vAv}, v{vg}, 8, v{vT+5}")
    def prep():
        A(f"s_add_u32 m0, s{sLds}, s{sOff}")
        A(f"s_add_u32 s{sT}, s{sRot}, s{sOff}")
        A(f"s_and_b32 s{sT}, s{sT}, 0xffff")
        A(f"s_add_u32 s{sT}, s{sBase}, s{sT}")
    def loads():
        for i in range(4):
            A(f"buffer_load_dwordx4 v{vA+i}, {sr(SC,4)}, s{sT} offen offset:{i*1024} {ld} lds")
    def body(w, end, label):
        A(f"s_waitcnt vmcnt({w})")
        A(f"ds_write_b32 v{vA_fl}, v{vS} offset:4")
        loads()
        A(f"s_add_u32 s{sOff}, s{sOff}, 4096")
        prep()
        A(f"s_add_u32 s{sPr}, s{sPr}, 1")
        A(f"v_mov_b32 v{vS}, s{sPr}")
        A(f"s_cmp_lg_u32 s{sOff}, {end}")
        A(f"s_cbranch_scc1 {label}")
    LB("L_lp0")
    prep()
    LB("L_lp")
    body(W, f"s{sEnd}", "L_lp")
    A(f"s_add_u32 s{sPh}, s{sPh}, 1")
    A(f"s_cmp_eq_u32 s{sPh}, 1")
    A("s_cbranch_scc0 L_ph2")
    A("s_waitcnt lgkmcnt(0)")
    A("s_barrier")
    xstamp(1)
    A(f"s_mov_b32 s{sEnd}, 65536")
    A("s_branch L_lp")
    LB("L_ph2")
    A(f"s_cmp_eq_u32 s{sPh}, 2")
    A("s_cbranch_scc0 L_ph3")
    A(f"s_mov_b64 {sr(SC,2)}, {sr(sPV,2)}")
    A(f"s_mov_b32 s{sOff}, 0")
    A(f"s_mov_b32 s{sLds}, {LDS_V}")
    A(f"v_mov_b32 v{vA}, v{vAv}")
    A(f"v_xor_b32 v{vA+1}, 128, v{vAv}")
    A(f"v_mov_b32 v{vA+2}, v{vAv}")
    A(f"v_xor_b32 v{vA+3}, 128, v{vAv}")
    A("s_branch L_lp0")
    LB("L_ph3")
    A(f"s_cmp_eq_u32 s{sPh}, 3")
    A("s_cbranch_scc0 L_ph4")
    A(f"s_mov_b64 {sr(SC,2)}, {sr(sPQ,2)}")
    A(f"s_mov_b32 s{sOff}, 0")
    A(f"s_mov_b32 s{sEnd}, {(G+1)*4096}")
    A(f"s_mov_b32 s{sLds}, {LDS_KQ}")
    for i in range(4): A(f"v_mov_b32 v{vA+i}, v{vAq+i}")
    xstamp(2)
    A("s_barrier")
    xstamp(3)
    A("s_branch L_lp0")
    LB("L_ph4")
    assert G2 <= G and G < 14
    A(f"s_add_u32 s{sPr}, s{sPr}, {G - G2}")
    A(f"v_mov_b32 v{vS}, s{sPr}")
    LB("L_lq")
    body(W2, 65536 - gq*4096, "L_lq")
    A(f"v_mov_b32 v{vS+3}, 1")
    A(f"ds_write_b32 v{vA_fl}, v{vS+3} offset:16")
    if gq:
        LB("L_lr")
        body(W2, 65536, "L_lr")
    xstamp(4)
    for k in range(G2, -1, -1):
        A(f"v_mov_b32 v{vS+(k&1)}, {49 - k}")
        A(f"s_waitcnt vmcnt({4*k})")
        A(f"ds_write_b32 v{vA_fl}, v{vS+(k&1)} offset:4")
    if stamps:
        for i in range(5, 9): xstamp(i)
        srdc(SWS, WS_BYTES)
        A(f"s_mov_b32 s{sSpin2}, {spin}")
        A("s_branch L_fin")
    else:
        A("s_endpgm")

    LB("L_notloader")
    A(f"s_load_dwordx2 {sr(SO,2)}, s[0:1], 32")
    A(f"s_load_dwordx2 {sr(SDB,2)}, s[0:1], 40")
    A(f"s_load_dwordx2 {sr(SWS,2)}, s[0:1], 48")
    A(f"v_mov_b32 v{vA_fl}, {LDS_FLAG}")
    A(f"v_lshlrev_b32 v{vT+3}, 4, v{vg}")
    A(f"v_and_b32 v{vA_lin}, 63, v0")
    A(f"v_lshlrev_b32 v{vA_lin}, 4, v{vA_lin}")
    A(f"s_mul_i32 s{sKVo}, s{sH}, {HSTRIDE}")
    A(f"v_add_u32 v{vA_phi}, {LDS_PHI}, v{vA_lin}")
    A(f"s_mov_b32 s{sSpin}, {spin*16}")
    A(f"s_mov_b32 s{sSpin2}, {spin}")
    A(f"v_lshl_add_u32 v{vA_z}, v{vg}, 3, v{vA_fl}")
    A(f"v_mov_b32 v{vOne}, 1")
    srdc(SWS, WS_BYTES)
    A(f"s_cmp_eq_u32 s{sWr}, 1")
    A("s_cbranch_scc1 L_helper")

    A(f"s_getpc_b64 {sr(sPhiK,2)}")
    LB("L_pc")
    A(f"s_add_u32 s{sPhiQ}, s{sPhiK}, L_phiq-L_pc")
    A(f"s_addc_u32 s{sPhiQ+1}, s{sPhiK+1}, 0")
    if pf:
        C("pull the rest of the code into the L2 while the first tiles are in flight")
        A(f"v_lshlrev_b32 v{vT+5}, 3, v{vA_lin}")
        A(f"s_cmp_lg_u32 s{sWr}, 9")
        A("s_cbranch_scc1 L_nopf")
        A(f"v_min_u32 v{vT+5}, L_codeend-L_pc-4, v{vT+5}")
        A(f"global_load_dword v164, v{vT+5}, {sr(sPhiK,2)}")
        LB("L_nopf")
    A(f"s_add_u32 s{sPhiK}, s{sPhiK}, L_phik-L_pc")
    A(f"s_addc_u32 s{sPhiK+1}, s{sPhiK+1}, 0")
    A(f"s_sub_u32 s{sW}, s{sWr}, 2")
    A(f"s_lshl_b32 s{sM0}, s{sW}, 12")
    A(f"s_add_u32 s{sT}, s{sM0}, s{sRot}")
    A(f"s_and_b32 s{sT}, s{sT}, 0xffff")
    A(f"s_xor_b32 s{sBase2}, s{sT}, 0x8000")
    A(f"s_add_u32 s{sBase2}, s{sBase}, s{sBase2}")
    A(f"s_add_u32 s{sBase}, s{sBase}, s{sT}")
    A(f"s_add_u32 s{sT}, s{sM0}, {LDS_KQ}")
    A(f"s_lshl_b32 s{sM0}, s{sW}, 13")
    A(f"v_lshl_add_u32 v{vT+4}, v{vc}, 8, v{vT+4}")
    A(f"v_add_u32 v{vA_kr}, s{sT}, v{vT+4}")
    for i in range(1, 4):
        A(f"v_xor_b32 v{vA_kr+i}, {64*i}, v{vA_kr}")
    A(f"s_lshl_b32 s{sT}, s{sW}, 8")
    A(f"s_add_u32 s{sCKo}, s{sKVo}, s{sT}")
    A(f"s_add_u32 s{sCKo}, s{sCKo}, {WS_CHK}")
    A(f"s_add_u32 s{sKVo}, s{sKVo}, s{sM0}")
    sc = f2u(128.0 ** -0.25)
    A(f"s_mov_b32 s{sScale}, {sc:#x}"); A(f"s_mov_b32 s{sScale+1}, {sc:#x}")
    l2e = f2u(1.4426950408889634)
    A(f"s_mov_b32 s{sL2E}, {l2e:#x}"); A(f"s_mov_b32 s{sL2E+1}, {l2e:#x}")
    A(f"s_mov_b32 s{sQuart}, {f2u(0.25):#x}"); A(f"s_mov_b32 s{sQuart+1}, {f2u(0.25):#x}")
    for r in range(4):
        A(f"s_mov_b32 s{sM[r]}, {(1<<r)|(1<<(20+r)):#x}")
        A(f"s_mov_b32 s{sM[r]+1}, {(1<<(8+r))|(1<<(28+r)):#x}")
    A(f"s_mov_b32 s{sHi}, 0xffff0000")
    A(f"v_mov_b32 v{vEps}, {f2u(1e-6):#x}"); A(f"v_mov_b32 v{vEps+1}, {f2u(1e-6):#x}")
    A(f"v_mov_b32 v{vNH}, 0xbf00bf00"); A(f"v_mov_b32 v{vNH+1}, 0xbf00bf00")
    A(f"v_mov_b32 v{vXA+1}, 0")
    A(f"s_lshl_b32 s{sT}, s{sW}, 10")
    A(f"v_add_u32 v{vA_phw}, s{sT}, v{vA_phi}")
    A(f"v_lshrrev_b32 v{vT+4}, 2, v{vc}")
    A(f"v_lshl_add_u32 v{vT+4}, v{vg}, 2, v{vT+4}")
    A(f"v_and_b32 v{vT+5}, 7, v{vT+4}")
    A(f"v_xor_b32 v{vT+5}, s{sW}, v{vT+5}")
    A(f"v_lshlrev_b32 v{vT+5}, 5, v{vT+5}")
    A(f"v_lshl_add_u32 v{vT+5}, v{vT+4}, 8, v{vT+5}")
    A(f"v_and_b32 v{vT+7}, 3, v{vc}")
    A(f"v_lshl_add_u32 v{vA_tr}, v{vT+7}, 3, v{vT+5}")
    A(f"s_lshr_b32 s{sT}, s{sW}, 1")
    A(f"v_bfe_u32 v{vT+4}, v{vc}, 1, 2")
    A(f"v_xor_b32 v{vT+4}, s{sT}, v{vT+4}")
    A(f"v_lshlrev_b32 v{vT+4}, 4, v{vT+4}")
    A(f"v_and_b32 v{vT+5}, 1, v{vc}")
    A(f"v_lshl_add_u32 v{vT+4}, v{vT+5}, 3, v{vT+4}")
    A(f"v_lshrrev_b32 v{vT+5}, 3, v{vc}")
    A(f"v_lshl_add_u32 v{vT+4}, v{vT+5}, 6, v{vT+4}")
    A(f"v_lshl_add_u32 v{vT+4}, v{vg}, 10, v{vT+4}")
    A(f"s_lshl_b32 s{sT}, s{sW}, 7")
    A(f"s_add_u32 s{sT}, s{sT}, {LDS_KVT}")
    A(f"v_add_u32 v{vA_kvw}, s{sT}, v{vT+4}")
    A(f"v_lshrrev_b32 v{vT+4}, 2, v{vc}")
    A(f"v_lshlrev_b32 v{vT+4}, 4, v{vT+4}")
    A(f"v_lshl_add_u32 v{vT+4}, v{vc}, 6, v{vT+4}")
    A(f"v_lshl_add_u32 v{vT+4}, v{vg}, 10, v{vT+4}")
    A(f"v_add_u32 v{vA_kvr}, {LDS_KVT}, v{vT+4}")
    for k in range(1, 4):
        A(f"v_xor_b32 v{vA_kvr+k}, {16*k}, v{vA_kvr}")
    A(f"v_lshrrev_b32 v{vA_cs}, 5, v{vA_lin}")
    A(f"v_and_b32 v{vA_cs}, 28, v{vA_cs}")
    A(f"v_lshlrev_b32 v{vT+4}, 4, v{vc}")
    A(f"v_lshl_add_u32 v{vA_o}, v{vg}, 10, v{vT+4}")
    srdc(SO, 1 << 24)
    A("s_waitcnt lgkmcnt(0)")
    A("s_barrier")

    npoll = [0]
    def poll(off, need, sleep=True, extra=None):
        n = npoll[0]; npoll[0] += 1
        LB(f"L_p{n}")
        A(f"ds_read_b32 v{vT}, v{vA_fl} offset:{off}")
        if extra: A(extra)
        A(f"s_sub_u32 s{sSpin}, s{sSpin}, 1")
        A("s_waitcnt lgkmcnt(0)")
        A(f"v_cmp_le_i32 vcc, {need}, v{vT}")
        A(f"s_cbranch_vccnz L_pk{n}")
        if sleep and slp: A(f"s_sleep {slp}")
        A(f"s_cbranch_scc0 L_p{n}")
        A(f"s_mov_b32 s{sSpin}, 0")
        LB(f"L_pk{n}")
    def pollw(base, sleep=True):
        A(f"s_add_u32 s{sNeed}, s{sW}, {base}")
        poll(4, f"s{sNeed}", sleep)
    def rdkq(t):
        for s in range(4):
            A(f"ds_read_b128 {vr(vX+4*s,4)}, v{vA_kr+s} offset:{t*32768}")
    def round4(dst, src):
        for i in range(4):
            A(f"v_cvt_pk_bf16_f32 v{dst+i}, 0, v{src+i}")
    def xred8(r):
        for pat in ("quad_perm:[1,0,3,2]", "quad_perm:[2,3,0,1]", "row_half_mirror"):
            A("s_nop 1")
            A(f"v_xor_b32_dpp v{r}, v{r}, v{r} {pat} row_mask:0xf bank_mask:0xf")
    def call(s): A(f"s_swappc_b64 {sr(sRet,2)}, {sr(s,2)}")

    pollw(2)
    if not fine: stamp()
    for s in range(4):
        A(f"ds_read_b128 {vr(vOM+4*s,4)}, v{vA_phi} offset:{LDS_OM-LDS_PHI+1024*s}")
    rdkq(0)
    call(sPhiK)
    A(f"v_mov_b32 v{vK}, v{vR}")
    A(f"v_mov_b32 v{vK+1}, v{vR+1}")
    pollw(10)
    if not fine: stamp()
    rdkq(1)
    call(sPhiK)
    A(f"ds_write2_b64 v{vA_phw}, {vr(vK,2)}, {vr(vR,2)} offset0:0 offset1:1")
    A("s_waitcnt lgkmcnt(0)")
    A("s_barrier")
    if not fine: stamp()
    for b in range(8):
        A(f"ds_read_b128 {vr(vK+4*b,4)}, v{vA_phi} offset:{1024*b}")
    A(f"ds_read_b64 {vr(vNon,2)}, v{vA_fl} offset:24")
    A(f"s_lshl_b32 s{sT}, s{sP}, 10")
    A(f"s_add_u32 s{sT}, s{sT}, s{sKVo}")
    A(f"s_lshl_b32 s{sNeed}, s{sP}, 5")
    A(f"s_add_u32 s{sNeed}, s{sNeed}, s{sCKo}")
    poll(4, 33, sleep=False)
    stamp()
    for b in range(8):
        A(f"ds_read_b64_tr_b16 {vr(vB+4*b,2)}, v{vA_tr} offset:{4096*b}")
        A(f"ds_read_b64_tr_b16 {vr(vB+4*b+2,2)}, v{vA_tr} offset:{4096*b+32768}")
    for b in range(8):
        A(f"s_waitcnt lgkmcnt({14-2*b})")
        A(f"v_mfma_f32_16x16x32_bf16 {vr(vOwn,4)}, {vr(vK+4*b,4)}, {vr(vB+4*b,4)}, {'0' if b==0 else vr(vOwn,4)}")
    A(f"v_and_b32 v{vA_c}, 0x70, v{vA_lin}")
    A(f"v_lshl_add_u32 v{vA_c}, v{vA_c}, 1, v{vA_cs}")
    A(f"s_add_u32 s{sGo}, s{sKVo}, 4096")
    A("s_nop 4")
    A(f"buffer_store_dwordx4 {vr(vOwn,4)}, v{vA_lin}, {sr(SWS,4)}, s{sT} offen sc1")
    A(f"v_xor_b32 v{vT}, v{vOwn}, v{vOwn+1}")
    A(f"v_bitop3_b32 v{vT}, v{vT}, v{vOwn+2}, v{vOwn+3} bitop3:0x96")
    xred8(vT)
    A(f"v_xor_b32 v{vT}, v{vT}, v{vNon}")
    A("s_mov_b32 exec_lo, 0x01010101")
    A("s_mov_b32 exec_hi, 0x01010101")
    A(f"buffer_store_dword v{vT}, v{vA_cs}, {sr(SWS,4)}, s{sNeed} offen sc1")
    A("s_mov_b64 exec, -1")
    if not fine: stamp()
    def den(t):
        A(f"v_mfma_f32_16x16x16_bf16 {vr(vD[t],4)}, {vr(vPHQ[t],2)}, {vr(vZB,2)}, 0")
    def den2(t):
        round4(vD[t], vD[t])
        A(f"v_pk_add_f32 {vr(vD[t],2)}, {vr(vD[t],2)}, {vr(vEps,2)}")
        A(f"v_pk_add_f32 {vr(vD[t]+2,2)}, {vr(vD[t]+2,2)}, {vr(vEps,2)}")
        round4(vD[t], vD[t])
        for i in range(4): A(f"v_rcp_f32 v{vD[t]+i}, v{vD[t]+i}")
    vGa = vK
    def gload(fl):
        for p in range(8):
            A(f"buffer_load_dwordx4 {vr(vGa+4*p,4)}, v{vA_lin}, {sr(SWS,4)}, s{sKVo if p < 4 else sGo} offen offset:{(p%4)*1024} {fl}")
        A(f"buffer_load_dword v{vC}, v{vA_c}, {sr(SWS,4)}, s{sCKo} offen {fl}")
    zx = f"ds_read_b64 {vr(vZB,2)}, v{vA_z} offset:32"
    if qprio:
        A(f"s_cmp_lt_u32 s{sW}, 4")
        A("s_cbranch_scc1 L_np")
        A(f"s_setprio {qprio}")
        LB("L_np")
    pollw(34)
    rdkq(0)
    call(sPhiQ)
    A(f"v_mov_b32 v{vPHQ[0]}, v{vR}")
    A(f"v_mov_b32 v{vPHQ[0]+1}, v{vR+1}")
    stamp()
    A(f"s_cmp_lt_u32 s{sW}, {gT}")
    A("s_cbranch_scc1 L_ng1")
    poll(16, 1, sleep=False)
    if gprio: A(f"s_setprio {gprio}")
    gload(gfl)
    if gprio: A("s_setprio 0")
    LB("L_ng1")
    if lT < 8:
        A(f"s_cmp_ge_u32 s{sW}, {lT}")
        A("s_cbranch_scc1 L_late1")
    C("wait for tile b; if z turns up first, finish tile a's denominators meanwhile")
    A(f"s_add_u32 s{sNeed}, s{sW}, 42")
    A(f"s_mov_b32 s{sRot}, 0")
    LB("L_qz")
    A(f"ds_read2_b32 {vr(vT,2)}, v{vA_fl} offset0:1 offset1:2")
    A(zx)
    A(f"s_sub_u32 s{sSpin}, s{sSpin}, 1")
    A("s_waitcnt lgkmcnt(0)")
    A(f"v_cmp_le_i32 vcc, s{sNeed}, v{vT}")
    A("s_cbranch_vccnz L_qb")
    A(f"v_cmp_le_i32 vcc, 1, v{vT+1}")
    A("s_cbranch_vccnz L_za")
    A("s_cbranch_scc0 L_qz")
    A(f"s_mov_b32 s{sSpin}, 0")
    A("s_branch L_qb")
    LB("L_za")
    den(0)
    A(f"s_mov_b32 s{sRot}, 1")
    A("s_nop 6")
    den2(0)
    poll(4, f"s{sNeed}", sleep=False)
    LB("L_qb")
    if fine: stamp()
    rdkq(1)
    call(sPhiQ)
    if fine: stamp()
    A(f"s_cmp_ge_u32 s{sW}, {gT}")
    A("s_cbranch_scc1 L_ng2")
    poll(16, 1, sleep=False)
    gload(gfl)
    LB("L_ng2")
    A(f"s_cmp_lg_u32 s{sRot}, 0")
    A("s_cbranch_scc1 L_db")
    poll(8, 1, sleep=False, extra=zx)
    den(0)
    A("s_nop 7")
    den2(0)
    LB("L_db")
    den(1)
    A("s_nop 7")
    den2(1)
    if lT < 8:
        A("s_branch L_j1")
        LB("L_late1")
        if fine: stamp_again(2)
        poll(8, 1, sleep=False, extra=zx)
        den(0)
        A("s_nop 7")
        den2(0)
        LB("L_j1")
    stamp()
    vS_ = vT
    LB("L_gsum")
    for p in range(1, 8):
        A(f"s_waitcnt vmcnt({8 - p if p < 7 else 0})")
        if p == 1:
            if fine: stamp()
        if p == 1:
            A(f"v_pk_add_f32 {vr(vS_,2)}, {vr(vGa,2)}, {vr(vGa+4,2)}")
            A(f"v_pk_add_f32 {vr(vS_+2,2)}, {vr(vGa+2,2)}, {vr(vGa+6,2)}")
            A(f"v_xor_b32 v{vC+2}, v{vGa}, v{vGa+1}")
            A(f"v_xor_b32 v{vC+1}, v{vGa+2}, v{vGa+3}")
        else:
            A(f"v_pk_add_f32 {vr(vS_,2)}, {vr(vS_,2)}, {vr(vGa+4*p,2)}")
            A(f"v_pk_add_f32 {vr(vS_+2,2)}, {vr(vS_+2,2)}, {vr(vGa+4*p+2,2)}")
        A(f"v_bitop3_b32 v{vC+2}, v{vC+2}, v{vGa+4*p}, v{vGa+4*p+1} bitop3:0x96")
        A(f"v_bitop3_b32 v{vC+1}, v{vC+1}, v{vGa+4*p+2}, v{vGa+4*p+3} bitop3:0x96")
    A(f"v_bitop3_b32 v{vC}, v{vC}, v{vC+1}, v{vC+2} bitop3:0x96")
    A(f"v_cvt_pk_bf16_f32 v{vT+12}, v{vS_}, v{vS_+1}")
    A(f"v_cvt_pk_bf16_f32 v{vT+13}, v{vS_+2}, v{vS_+3}")
    A(f"v_xor_b32_dpp v{vC}, v{vC}, v{vC} quad_perm:[1,0,3,2] row_mask:0xf bank_mask:0xf")
    A(f"ds_write_b64 v{vA_kvw}, {vr(vT+12,2)}")
    A(f"s_sub_u32 s{sSpin2}, s{sSpin2}, 1")
    A(f"v_xor_b32_dpp v{vC}, v{vC}, v{vC} quad_perm:[2,3,0,1] row_mask:0xf bank_mask:0xf")
    A("s_nop 1")
    A(f"v_xor_b32_dpp v{vC}, v{vC}, v{vC} row_half_mirror row_mask:0xf bank_mask:0xf")
    A(f"v_cmp_ne_u32 vcc, v{vC}, v{vNon+1}")
    A("s_cbranch_vccnz L_regather")
    LB("L_gok")
    if fine: stamp()
    A("s_waitcnt lgkmcnt(0)")
    A("s_barrier")
    stamp()
    for k in range(4):
        A(f"ds_read_b128 {vr(vKVB+4*k,4)}, v{vA_kvr+k}")
    vN = [vK, vX]
    for k in range(4):
        A(f"s_waitcnt lgkmcnt({3-k})")
        for j in range(2):
            dd = 2*k + j
            A(f"v_mfma_f32_16x16x16_bf16 {vr(vN[0]+4*dd,4)}, {vr(vPHQ[0],2)}, {vr(vKVB+2*dd,2)}, 0")
    mb = [f"v_mfma_f32_16x16x16_bf16 {vr(vN[1]+4*dd,4)}, {vr(vPHQ[1],2)}, {vr(vKVB+2*dd,2)}, 0" for dd in range(8)]
    body = []
    no = 0
    for t in range(2):
        for rp in range(2):
            r0 = 2*rp
            for dd in range(8):
                for r in (r0, r0+1):
                    body.append(f"v_cvt_pk_bf16_f32 v{vN[t]+4*dd+r}, 0, v{vN[t]+4*dd+r}")
            for dd in range(8):
                body.append(f"v_pk_mul_f32 {vr(vN[t]+4*dd+r0,2)}, {vr(vN[t]+4*dd+r0,2)}, {vr(vD[t]+r0,2)}")
            for r in (r0, r0+1):
                o = vT + 4*(no % 4); no += 1
                for j in range(4):
                    body.append(f"v_cvt_pk_bf16_f32 v{o+j}, v{vN[t]+8*j+r}, v{vN[t]+8*j+4+r}")
                body.append(f"buffer_store_dwordx4 {vr(o,4)}, v{vA_o}, {sr(SO,4)}, s{sBase+t} offen offset:{256*r} {st}")
    if lT < 8:
        h = len(body) // 2
        A("s_nop 0")
        for x in body[:h]: A(x)
        A(f"s_cmp_lt_u32 s{sW}, {lT}")
        A("s_cbranch_scc1 L_j2")
        pollw(42, sleep=False)
        rdkq(1)
        call(sPhiQ)
        A("s_nop 0")
        den(1)
        for x in mb: A(x)
        den2(1)
        A("s_branch L_j3")
        LB("L_j2")
        for x in mb: A(x)
        A("s_nop 0")
        LB("L_j3")
        for x in body[h:]: A(x)
    elif mi == 0:
        for x in mb: A(x)
        for x in body: A(x)
    else:
        A(mb.pop(0))
        for i, x in enumerate(body):
            A(x)
            if mb and i % mi == mi - 1: A(mb.pop(0))
    LB("L_fin")
    if stamps:
        stamp()
        A("s_waitcnt vmcnt(0)")
        stamp(True)
        A("s_waitcnt lgkmcnt(0)")
        assert nst[0] <= 11, nst[0]
        for i in range(12):
            A(f"v_mov_b32 v{vK+i}, s{sSt+2*i}" if i < nst[0] else f"v_mov_b32 v{vK+i}, s{sSpin2}")
        A(f"s_mul_i32 s{sT}, s2, {NW}")
        A(f"s_add_u32 s{sT}, s{sT}, s{sWr}")
        A(f"s_mul_i32 s{sT}, s{sT}, 48")
        A(f"s_add_u32 s{sT}, s{sT}, {WS_STAMP}")
        A("s_mov_b64 exec, 1")
        for i in range(3):
            A(f"buffer_store_dwordx4 {vr(vK+4*i,4)}, off, {sr(SWS,4)}, s{sT} offset:{16*i}")
    LB("L_end")
    A("s_endpgm")

    def phi(isq):
        base = vX
        for s in range(4):
            A(f"s_waitcnt lgkmcnt({3-s})")
            b = base + 4*s
            for i in range(4):
                A(f"v_lshlrev_b32 v{vT+2*i}, 16, v{b+i}")
                A(f"v_and_b32 v{vT+2*i+1}, s{sHi}, v{b+i}")
            for i in range(4):
                A(f"v_pk_mul_f32 {vr(vT+2*i,2)}, {vr(vT+2*i,2)}, {sr(sScale,2)}")
            for i in range(4):
                A(f"v_cvt_pk_bf16_f32 v{b+i}, v{vT+2*i}, v{vT+2*i+1}")
            if s > 0:
                x = vr(base+4*(s-1), 4); o = vr(vOM+4*(s-1), 4)
                c0 = "0" if s == 1 else vr(vG, 4); c1 = "0" if s == 1 else vr(vP, 4)
                A(f"v_mfma_f32_16x16x32_bf16 {vr(vG,4)}, {x}, {x}, {c0}")
                A(f"v_mfma_f32_16x16x32_bf16 {vr(vP,4)}, {o if isq else x}, {x if isq else o}, {c1}")
        x = vr(base+12, 4); o = vr(vOM+12, 4)
        A(f"v_mfma_f32_16x16x32_bf16 {vr(vG,4)}, {x}, {x}, {vr(vG,4)}")
        A(f"v_mfma_f32_16x16x32_bf16 {vr(vP,4)}, {o if isq else x}, {x if isq else o}, {vr(vP,4)}")
        A("s_nop 6")
        A(f"v_cndmask_b32 v{vT}, 0, v{vG}, {sr(sM[0],2)}")
        for r in range(1, 4):
            A(f"v_cndmask_b32 v{vT}, v{vT}, v{vG+r}, {sr(sM[r],2)}")
        A(f"v_cvt_pk_bf16_f32 v{vXA}, v{vT}, v{vXA+1}")
        round4(vT+4, vP)
        A("s_nop 1")
        a, b = (vr(vNH,2), vr(vXA,2)) if isq else (vr(vXA,2), vr(vNH,2))
        A(f"v_mfma_f32_16x16x16_bf16 {vr(vP,4)}, {a}, {b}, {vr(vT+4,4)}")
        A("s_nop 7")
        round4(vT+8, vP)
        A(f"v_pk_mul_f32 {vr(vT+8,2)}, {vr(vT+8,2)}, {sr(sL2E,2)}")
        A(f"v_pk_mul_f32 {vr(vT+10,2)}, {vr(vT+10,2)}, {sr(sL2E,2)}")
        for i in range(4):
            A(f"v_exp_f32 v{vT+8+i}, v{vT+8+i}")
        A("s_nop 0")
        round4(vT+12, vT+8)
        A(f"v_pk_fma_f32 {vr(vT+12,2)}, {vr(vT+12,2)}, {sr(sQuart,2)}, {vr(vEps,2)}")
        A(f"v_pk_fma_f32 {vr(vT+14,2)}, {vr(vT+14,2)}, {sr(sQuart,2)}, {vr(vEps,2)}")
        A(f"v_cvt_pk_bf16_f32 v{vR}, v{vT+12}, v{vT+13}")
        A(f"v_cvt_pk_bf16_f32 v{vR+1}, v{vT+14}, v{vT+15}")
        A(f"s_setpc_b64 {sr(sRet,2)}")
    LB("L_phik")
    phi(False)
    LB("L_phiq")
    phi(True)

    LB("L_regather")
    A("s_cbranch_scc1 L_gok")
    gload('sc1')
    A("s_branch L_gsum")

    LB("L_helper")
    if hprio: A(f"s_setprio {hprio}")
    A(f"s_memrealtime {sr(sClk,2)}")
    A(f"v_mov_b32 v{vT+8}, 0")
    A(f"v_mov_b32 v{vT+9}, 0")
    A(f"ds_write_b32 v{vA_fl}, v{vT+8}")
    A(f"ds_write_b64 v{vA_fl}, {vr(vT+8,2)} offset:8")
    A(f"ds_write_b32 v{vA_fl}, v{vT+8} offset:16")
    A(f"v_mov_b32 v{vT+12}, 0x3f803f80")
    for i in range(1, 4): A(f"v_mov_b32 v{vT+12+i}, v{vT+12}")
    A(f"v_and_b32 v{vX+2}, 7, v{vc}")
    A(f"v_lshl_add_u32 v{vX}, v{vX+2}, 7, v{vT+3}")
    A(f"v_lshlrev_b32 v{vX+3}, 2, v{vg}")
    A(f"v_lshl_add_u32 v{vX+1}, v{vX+2}, 7, v{vX+3}")
    srdc(SDB, 256)
    A("s_waitcnt lgkmcnt(0)")
    A("s_barrier")
    C("the first few workgroups offer a launch nonce; the first offer to land wins")
    A(f"s_cmp_ge_u32 s2, {nroot}")
    A("s_cbranch_scc1 L_noroot")
    A(f"s_or_b32 s{sClk}, s{sClk}, 0x80000000")
    A(f"v_mov_b32 v{vT+8}, s{sClk}")
    A("s_mov_b64 exec, 1")
    A(f"buffer_atomic_cmpswap {vr(vT+8,2)}, off, {sr(SDB,4)}, 0 sc1")
    A("s_mov_b64 exec, -1")
    LB("L_noroot")
    A(f"s_add_u32 s{sGo}, s{sKVo}, {WS_ZS}")
    A(f"s_lshl_b32 s{sT}, s{sP}, 7")
    A(f"s_add_u32 s{sM0}, s{sT}, s{sGo}")
    A(f"s_mov_b32 s{sK1}, 0x9E3779B1")
    poll(4, nat)
    LB("L_non")
    A(f"buffer_load_dword v{vNon}, off, {sr(SDB,4)}, 0 sc1")
    A(f"s_sub_u32 s{sSpin2}, s{sSpin2}, 1")
    A("s_waitcnt vmcnt(0)")
    A(f"v_cmp_ne_u32 vcc, 0, v{vNon}")
    A("s_cbranch_vccnz L_nonk")
    A("s_cbranch_scc0 L_non")
    A(f"s_mov_b32 s{sSpin2}, 0")
    LB("L_nonk")
    A(f"v_add_u32 v{vX+4}, v{vX+2}, v{vNon}")
    A(f"v_mul_lo_u32 v{vX+4}, v{vX+4}, s{sK1}")
    A(f"v_lshrrev_b32 v{vX+5}, 15, v{vX+4}")
    A(f"v_xor_b32 v{vX+4}, v{vX+4}, v{vX+5}")
    A(f"v_mul_lo_u32 v{vX+4}, v{vX+4}, s{sK1}")
    A(f"v_lshrrev_b32 v{vX+5}, 13, v{vX+4}")
    A(f"v_xor_b32 v{vX+4}, v{vX+4}, v{vX+5}")
    A(f"v_mov_b32 v{vNon+1}, v{vX+4}")
    A(f"v_readlane_b32 s{sT}, v{vX+4}, s{sP}")
    xred8(vNon+1)
    A(f"v_mov_b32 v{vNon}, s{sT}")
    A(f"ds_write_b64 v{vA_fl}, {vr(vNon,2)} offset:24")
    xstamp(1)
    A("s_waitcnt lgkmcnt(0)")
    A("s_barrier")
    for b in range(8):
        A(f"ds_read_b128 {vr(vK+4*b,4)}, v{vA_phi} offset:{1024*b}")
    for b in range(8):
        A(f"s_waitcnt lgkmcnt({7-b})")
        A(f"v_mfma_f32_16x16x32_bf16 {vr(vP,4)}, {vr(vK+4*b,4)}, {vr(vT+12,4)}, {'0' if b==0 else vr(vP,4)}")
    A("s_mov_b32 exec_lo, 0x00010001")
    A("s_mov_b32 exec_hi, 0x00010001")
    A("s_nop 5")
    A(f"buffer_store_dwordx4 {vr(vP,4)}, v{vT+3}, {sr(SWS,4)}, s{sM0} offen sc1")
    A(f"v_bitop3_b32 v{vT}, v{vP}, v{vP+1}, v{vP+2} bitop3:0x96")
    A(f"v_bitop3_b32 v{vT}, v{vT}, v{vP+3}, v{vNon} bitop3:0x96")
    A(f"buffer_store_dword v{vT}, v{vX+3}, {sr(SWS,4)}, s{sM0} offen offset:64 sc1")
    A("s_mov_b64 exec, -1")
    xstamp(2)
    vZg = vK
    def zload():
        A(f"buffer_load_dwordx4 {vr(vZg,4)}, v{vX}, {sr(SWS,4)}, s{sGo} offen sc1")
        A(f"buffer_load_dword v{vZg+10}, v{vX+1}, {sr(SWS,4)}, s{sGo} offen offset:64 sc1")
    poll(4, zat)
    zload()
    xstamp(3)
    A("s_waitcnt vmcnt(0)")
    LB("L_zchk")
    A(f"v_bitop3_b32 v{vZg+10}, v{vZg+10}, v{vZg}, v{vZg+1} bitop3:0x96")
    A(f"v_bitop3_b32 v{vZg+10}, v{vZg+10}, v{vZg+2}, v{vZg+3} bitop3:0x96")
    A(f"v_cmp_ne_u32 vcc, v{vZg+10}, v{vX+4}")
    A("s_cbranch_vccnz L_zbad")
    LB("L_zok")
    for i in range(4):
        A(f"v_add_f32_dpp v{vZg+4+i}, v{vZg+i}, v{vZg+i} quad_perm:[1,0,3,2] row_mask:0xf bank_mask:0xf")
    for i in range(4):
        A(f"v_add_f32_dpp v{vZg+i}, v{vZg+4+i}, v{vZg+4+i} quad_perm:[2,3,0,1] row_mask:0xf bank_mask:0xf")
    for i in range(4):
        A(f"v_add_f32_dpp v{vZg+4+i}, v{vZg+i}, v{vZg+i} row_half_mirror row_mask:0xf bank_mask:0xf")
    A(f"v_cvt_pk_bf16_f32 v{vZg+8}, v{vZg+4}, v{vZg+5}")
    A(f"v_cvt_pk_bf16_f32 v{vZg+9}, v{vZg+6}, v{vZg+7}")
    A(f"ds_write_b64 v{vA_z}, {vr(vZg+8,2)} offset:32")
    A(f"ds_write_b32 v{vA_fl}, v{vOne} offset:8")
    xstamp(5)
    xstamp(4); xstamp(6)
    if stamps:
        xstamp(7); xstamp(8)
        A("s_branch L_fin")
    else:
        A("s_endpgm")
    LB("L_zbad")
    A(f"s_sub_u32 s{sSpin2}, s{sSpin2}, 1")
    A("s_cbranch_scc1 L_zok")
    zload()
    A("s_waitcnt vmcnt(0)")
    A("s_branch L_zchk")
    LB("L_codeend")
    return HEADER.format(lds=LDS_TOTAL) + "\n".join(x for x in L if x) + FOOTER.format(vgpr=NV, sgpr=90 if stamps else 64, acc=NV)

if __name__ == '__main__':
    out = sys.argv[1]
    kw = {}
    for a in sys.argv[2:]:
        k, v = a.split('=')
        kw[k] = v if k in ('ld', 'st', 'gfl') else (tuple(map(int, v.split(','))) if k == 'rot' else int(v))
    open(out, 'w').write(gen(**kw))
```

```python
import sys, struct

def f2u(x): return struct.unpack('<I', struct.pack('<f', x))[0]

HEADER = """; Linear (random-feature) attention, B=1 H=32 S=2048 D=128 M=16, bf16.
; @launch grid=(256,1,1) block=(640,1,1) lds={lds}
.amdgcn_target "amdgcn-amd-amdhsa--gfx950"
.text
.globl standalone__linear_kernel_rfa__prompt_kernel
.p2align 8
.type standalone__linear_kernel_rfa__prompt_kernel,@function
standalone__linear_kernel_rfa__prompt_kernel:
"""
FOOTER = """
.section .rodata,"a"
.p2align 6
.amdhsa_kernel standalone__linear_kernel_rfa__prompt_kernel
  .amdhsa_next_free_vgpr {vgpr}
  .amdhsa_next_free_sgpr {sgpr}
  .amdhsa_accum_offset {acc}
  .amdhsa_group_segment_fixed_size 0
  .amdhsa_kernarg_size 56
  .amdhsa_user_sgpr_count 2
  .amdhsa_user_sgpr_kernarg_segment_ptr 1
  .amdhsa_system_sgpr_workgroup_id_x 1
  .amdhsa_float_denorm_mode_32 3
  .amdhsa_float_denorm_mode_16_64 3
.end_amdhsa_kernel
"""

LDS_V, LDS_KQ, LDS_PHI, LDS_KVT, LDS_FLAG, LDS_OM = 0, 65536, 131072, 139264, 143360, 143616
LDS_CHK = LDS_OM
LDS_TOTAL = LDS_OM + 4096
HSTRIDE = 69632
WS_CHK, WS_ZS, WS_TAG = 65536, 67584, 68608
WS_BYTES = 4 << 20
WS_STAMP = 3 << 20
NW = 10

def gen(ld='nt', st='nt', gfl='', stamps=False, W=28, W2=36, WG=5, spin=200000, lprio=3, hprio=2,
        slp=1, pre=5, rot=(4,15), hmap=0, nat=10, zat=33, nroot=8, pf=1, fine=0, mi=4, dena=2, gT=0, gq=0, gprio=0, lT=0, qprio=0, lb3=0, own=1, dyn=0, st2=None, tsl=2, gmin=0, eg=1, tat=32, lgo=0):
    L = []
    def A(s): L.append("    " + s)
    def C(s): L.append("    ; " + s)
    def LB(s): L.append(s + ":")
    def vr(a, n): return f"v[{a}:{a+n-1}]"
    def sr(a, n): return f"s[{a}:{a+n-1}]"
    G, G2 = W // 4, W2 // 4
    if st2 is None: st2 = st
    SC, SOM, SO, SWS, SDB = 4, 8, 12, 16, 20
    sPQ, sPV = 24, 26
    sBase, sBase2, sW, sH, sP, sWr = 28, 29, 30, 31, 32, 33
    sScale, sL2E, sQuart = 34, 36, 38
    sM = [40, 42, 44, 46]
    sHi = 48
    sKVo, sCKo, sGo, sT, sSpin, sM0, sSpin2, sNeed, sRot = 49, 50, 51, 52, 53, 54, 55, 56, 57
    sRet = 58
    sPhiK, sPhiQ = 60, 62
    sOff, sEnd, sLds, sPr, sPh = 34, 35, 36, 37, 38
    sClk = 34
    sO = 40
    sG1, sG2, sK1 = 36, 37, 38
    sGp = 64
    sSt = 72
    vA_cs, vA_fl, vOne, vA_lin, vA_tr, vA_phi, vA_kvw = 0, 1, 4, 5, 6, 7, 8
    vA_z, vA_kvr, vA_o, vA_phw = 9, 10, 14, 15
    vPHQ = [2, 16]
    vR = 16
    vEps, vNH, vXA = 18, 20, 22
    vOM = 24
    vK = 40
    vX = 72
    vC, vOwn, vNon, vN0 = 88, 96, 100, 102
    vT = 104
    vP, vG = 120, 124
    vB = 128
    vKVB, vZB, vD = 128, 144, [148, 152]
    vA_g, vA_c = 156, 157
    vA_kr = 160
    NV = 168
    nst = [0]
    lite = (stamps == 2)
    def stamp(force=False):
        if lite and not force:
            nst[0] += 1
            return
        if stamps:
            A(f"s_memrealtime {sr(sSt + 2*nst[0], 2)}")
            nst[0] += 1
    def stamp_again(k):
        for j in range(k): A(f"s_memrealtime {sr(sSt + 2*(nst[0]-k+j), 2)}")
    def xstamp(i):
        if stamps and not lite: A(f"s_memrealtime {sr(sSt + 2*i, 2)}")
    def srdc(d, n):
        A(f"s_mov_b32 s{d+2}, {n}"); A(f"s_mov_b32 s{d+3}, 0x20000")

    A("s_cmp_ge_u32 s2, 256")
    A("s_cbranch_scc1 L_end")
    stamp(True)
    A(f"s_load_dwordx2 {sr(SC,2)}, s[0:1], 8")
    A(f"s_load_dwordx2 {sr(SOM,2)}, s[0:1], 24")
    A(f"v_readfirstlane_b32 s{sWr}, v0")
    vc, vg = vT + 1, vT + 2
    A(f"v_and_b32 v{vc}, 15, v0")
    A(f"v_bfe_u32 v{vg}, v0, 4, 2")
    if hmap == 0:
        A(f"s_and_b32 s{sH}, s2, 31")
        A(f"s_lshr_b32 s{sP}, s2, 5")
    else:
        A(f"s_lshr_b32 s{sH}, s2, 3")
        A(f"s_and_b32 s{sP}, s2, 7")
    A(f"v_xor_b32 v{vT+4}, v{vc}, v{vg}")
    A(f"v_lshlrev_b32 v{vT+4}, 4, v{vT+4}")
    A(f"s_lshl_b32 s{sBase}, s{sH}, 19")
    A(f"s_lshl_b32 s{sT}, s{sP}, 16")
    A(f"s_add_u32 s{sBase}, s{sBase}, s{sT}")
    if len(rot) == 2:
        A(f"s_bfe_u32 s{sRot}, s2, {rot[0] | (rot[1].bit_length() << 16):#x}")
    else:
        A(f"s_lshr_b32 s{sRot}, s2, {rot[0]}")
        A(f"s_mul_i32 s{sRot}, s{sRot}, {rot[1]}")
        A(f"s_and_b32 s{sT}, s2, 7")
        A(f"s_mul_i32 s{sT}, s{sT}, {rot[2]}")
        A(f"s_add_u32 s{sRot}, s{sRot}, s{sT}")
        A(f"s_and_b32 s{sRot}, s{sRot}, 15")
    A(f"s_lshl_b32 s{sRot}, s{sRot}, 12")
    A(f"s_lshr_b32 s{sWr}, s{sWr}, 6")
    A("s_cbranch_scc1 L_notloader")

    C("loader: streams omega, K, V, Q into LDS by DMA and publishes a progress count")
    vA = 40; vAq = 44; vAv = 48; vS = 52; vAo = 54
    A(f"v_lshl_add_u32 v{vA}, v{vg}, 8, v{vT+4}")
    for i in range(1, 4):
        A(f"v_xor_b32 v{vA+i}, {64*i}, v{vA}")
    srdc(SC, 1 << 24)
    A(f"s_mov_b32 m0, {LDS_KQ}")
    A(f"s_add_u32 s{sT}, s{sBase}, s{sRot}")
    if lprio: A(f"s_setprio {lprio}")
    A("s_waitcnt lgkmcnt(0)")
    for i in range(4):
        A(f"buffer_load_dwordx4 v{vA+i}, {sr(SC,4)}, s{sT} offen offset:{i*1024} {ld} lds")
    A(f"s_load_dwordx2 {sr(sPQ,2)}, s[0:1], 0")
    A(f"s_load_dwordx2 {sr(sPV,2)}, s[0:1], 16")
    if stamps: A(f"s_load_dwordx2 {sr(SWS,2)}, s[0:1], 48")
    srdc(SOM, 4096)
    A(f"v_lshlrev_b32 v{vT+3}, 4, v{vg}")
    A(f"v_lshl_add_u32 v{vAo}, v{vc}, 8, v{vT+3}")
    for s in range(4):
        A(f"s_mov_b32 m0, {LDS_OM + s*1024 - s*64}")
        A(["s_nop 0", f"s_mov_b32 s{sOff}, 4096", f"s_mov_b32 s{sEnd}, {pre*4096}", f"s_mov_b32 s{sLds}, {LDS_KQ}"][s])
        A(f"buffer_load_dwordx4 v{vAo}, {sr(SOM,4)}, 0 offen offset:{64*s} lds")
    A(f"s_mov_b32 s{sPr}, {2 - G}")
    A(f"s_mov_b32 s{sPh}, 0")
    A(f"v_mov_b32 v{vS}, 0")
    A(f"v_mov_b32 v{vA_fl}, {LDS_FLAG}")
    for i in range(4): A(f"v_mov_b32 v{vAq+i}, v{vA+i}")
    A(f"v_lshlrev_b32 v{vT+5}, 1, v{vg}")
    A(f"v_xor_b32 v{vT+5}, v{vT+5}, v{vc}")
    A(f"v_lshlrev_b32 v{vT+5}, 4, v{vT+5}")
    A(f"v_lshl_add_u32 v{vAv}, v{vg}, 8, v{vT+5}")
    def prep():
        A(f"s_add_u32 m0, s{sLds}, s{sOff}")
        A(f"s_add_u32 s{sT}, s{sRot}, s{sOff}")
        A(f"s_and_b32 s{sT}, s{sT}, 0xffff")
        A(f"s_add_u32 s{sT}, s{sBase}, s{sT}")
    def loads():
        for i in range(4):
            A(f"buffer_load_dwordx4 v{vA+i}, {sr(SC,4)}, s{sT} offen offset:{i*1024} {ld} lds")
    def body(w, end, label, clamp=False):
        A(f"s_waitcnt vmcnt({w})")
        A(f"ds_write_b32 v{vA_fl}, v{vS} offset:4")
        loads()
        A(f"s_add_u32 s{sOff}, s{sOff}, 4096")
        prep()
        A(f"s_add_u32 s{sPr}, s{sPr}, 1")
        if clamp:
            A(f"s_max_i32 s{sPh}, s{sPr}, 33")
            A(f"v_mov_b32 v{vS}, s{sPh}")
        else:
            A(f"v_mov_b32 v{vS}, s{sPr}")
        A(f"s_cmp_lg_u32 s{sOff}, {end}")
        A(f"s_cbranch_scc1 {label}")
    LB("L_lp0")
    prep()
    LB("L_lp")
    body(W, f"s{sEnd}", "L_lp")
    A(f"s_add_u32 s{sPh}, s{sPh}, 1")
    A(f"s_cmp_eq_u32 s{sPh}, 1")
    A("s_cbranch_scc0 L_ph2")
    A("s_waitcnt lgkmcnt(0)")
    A("s_barrier")
    xstamp(1)
    A(f"s_mov_b32 s{sEnd}, 65536")
    A("s_branch L_lp")
    LB("L_ph2")
    A(f"s_cmp_eq_u32 s{sPh}, 2")
    A("s_cbranch_scc0 L_ph3")
    A(f"s_mov_b64 {sr(SC,2)}, {sr(sPV,2)}")
    A(f"s_mov_b32 s{sOff}, 0")
    A(f"s_mov_b32 s{sLds}, {LDS_V}")
    A(f"v_mov_b32 v{vA}, v{vAv}")
    A(f"v_xor_b32 v{vA+1}, 128, v{vAv}")
    A(f"v_mov_b32 v{vA+2}, v{vAv}")
    A(f"v_xor_b32 v{vA+3}, 128, v{vAv}")
    A("s_branch L_lp0")
    LB("L_ph3")
    A(f"s_cmp_eq_u32 s{sPh}, 3")
    A("s_cbranch_scc0 L_ph4")
    A(f"s_mov_b64 {sr(SC,2)}, {sr(sPQ,2)}")
    A(f"s_mov_b32 s{sOff}, 0")
    A(f"s_mov_b32 s{sEnd}, {(G+1)*4096}")
    A(f"s_mov_b32 s{sLds}, {LDS_KQ}")
    for i in range(4): A(f"v_mov_b32 v{vA+i}, v{vAq+i}")
    xstamp(2)
    A("s_barrier")
    xstamp(3)
    A("s_branch L_lp0")
    LB("L_ph4")
    assert G < 14
    A(f"s_add_i32 s{sPr}, s{sPr}, {G - G2}")
    A(f"s_max_i32 s{sPh}, s{sPr}, 33")
    A(f"v_mov_b32 v{vS}, s{sPh}")
    LB("L_lq")
    body(W2, 65536 - gq*4096, "L_lq", G2 > G + 1)
    if lgo:
        A(f"v_mov_b32 v{vS+3}, 1")
        A(f"ds_write_b32 v{vA_fl}, v{vS+3} offset:16")
    if gq:
        LB("L_lr")
        body(W2, 65536, "L_lr")
    xstamp(4)
    if lb3:
        assert lT == 0
        A("s_barrier")
    for k in range(min(G2, 15), -1, -1):
        A(f"v_mov_b32 v{vS+(k&1)}, {49 - k}")
        A(f"s_waitcnt vmcnt({4*k})")
        A(f"ds_write_b32 v{vA_fl}, v{vS+(k&1)} offset:4")
    if stamps:
        for i in range(5, 9): xstamp(i)
        srdc(SWS, WS_BYTES)
        A(f"s_mov_b32 s{sSpin2}, {spin}")
        A("s_branch L_fin")
    else:
        A("s_endpgm")

    LB("L_notloader")
    A(f"s_load_dwordx2 {sr(SO,2)}, s[0:1], 32")
    A(f"s_load_dwordx2 {sr(SDB,2)}, s[0:1], 40")
    A(f"s_load_dwordx2 {sr(SWS,2)}, s[0:1], 48")
    A(f"v_mov_b32 v{vA_fl}, {LDS_FLAG}")
    A(f"v_lshlrev_b32 v{vT+3}, 4, v{vg}")
    A(f"v_and_b32 v{vA_lin}, 63, v0")
    A(f"v_lshlrev_b32 v{vA_lin}, 4, v{vA_lin}")
    A(f"s_mul_i32 s{sKVo}, s{sH}, {HSTRIDE}")
    A(f"v_add_u32 v{vA_phi}, {LDS_PHI}, v{vA_lin}")
    A(f"s_mov_b32 s{sSpin}, {spin*16}")
    A(f"s_mov_b32 s{sSpin2}, {spin}")
    A(f"v_lshl_add_u32 v{vA_z}, v{vg}, 3, v{vA_fl}")
    A(f"v_mov_b32 v{vOne}, 1")
    srdc(SWS, WS_BYTES)
    A(f"s_cmp_eq_u32 s{sWr}, 1")
    A("s_cbranch_scc1 L_helper")

    A(f"s_getpc_b64 {sr(sPhiK,2)}")
    LB("L_pc")
    A(f"s_add_u32 s{sPhiQ}, s{sPhiK}, L_phiq-L_pc")
    A(f"s_addc_u32 s{sPhiQ+1}, s{sPhiK+1}, 0")
    if pf:
        C("pull the rest of the code into the L2 while the first tiles are in flight")
        A(f"v_lshlrev_b32 v{vT+5}, 3, v{vA_lin}")
        A(f"s_cmp_lg_u32 s{sWr}, 9")
        A("s_cbranch_scc1 L_nopf")
        A(f"v_min_u32 v{vT+5}, L_codeend-L_pc-4, v{vT+5}")
        A(f"global_load_dword v164, v{vT+5}, {sr(sPhiK,2)}")
        LB("L_nopf")
    A(f"s_add_u32 s{sPhiK}, s{sPhiK}, L_phik-L_pc")
    A(f"s_addc_u32 s{sPhiK+1}, s{sPhiK+1}, 0")
    A(f"s_sub_u32 s{sW}, s{sWr}, 2")
    A(f"s_lshl_b32 s{sM0}, s{sW}, 12")
    A(f"s_add_u32 s{sT}, s{sM0}, s{sRot}")
    A(f"s_and_b32 s{sT}, s{sT}, 0xffff")
    A(f"s_xor_b32 s{sBase2}, s{sT}, 0x8000")
    A(f"s_add_u32 s{sBase2}, s{sBase}, s{sBase2}")
    A(f"s_add_u32 s{sBase}, s{sBase}, s{sT}")
    A(f"s_add_u32 s{sT}, s{sM0}, {LDS_KQ}")
    A(f"s_lshl_b32 s{sM0}, s{sW}, 13")
    A(f"v_lshl_add_u32 v{vT+4}, v{vc}, 8, v{vT+4}")
    A(f"v_add_u32 v{vA_kr}, s{sT}, v{vT+4}")
    for i in range(1, 4):
        A(f"v_xor_b32 v{vA_kr+i}, {64*i}, v{vA_kr}")
    A(f"s_lshl_b32 s{sT}, s{sW}, 8")
    A(f"s_add_u32 s{sCKo}, s{sKVo}, s{sT}")
    A(f"s_add_u32 s{sCKo}, s{sCKo}, {WS_CHK}")
    A(f"s_add_u32 s{sKVo}, s{sKVo}, s{sM0}")
    if own:
        for i in range(7):
            A(f"s_add_u32 s{sGp+i}, s{sP}, {i+1}")
            A(f"s_and_b32 s{sGp+i}, s{sGp+i}, 7")
            A(f"s_lshl_b32 s{sGp+i}, s{sGp+i}, 10")
            A(f"s_add_u32 s{sGp+i}, s{sGp+i}, s{sKVo}")
    sc = f2u(128.0 ** -0.25)
    A(f"s_mov_b32 s{sScale}, {sc:#x}"); A(f"s_mov_b32 s{sScale+1}, {sc:#x}")
    l2e = f2u(1.4426950408889634)
    A(f"s_mov_b32 s{sL2E}, {l2e:#x}"); A(f"s_mov_b32 s{sL2E+1}, {l2e:#x}")
    A(f"s_mov_b32 s{sQuart}, {f2u(0.25):#x}"); A(f"s_mov_b32 s{sQuart+1}, {f2u(0.25):#x}")
    for r in range(4):
        A(f"s_mov_b32 s{sM[r]}, {(1<<r)|(1<<(20+r)):#x}")
        A(f"s_mov_b32 s{sM[r]+1}, {(1<<(8+r))|(1<<(28+r)):#x}")
    A(f"v_mov_b32 v{vEps}, {f2u(1e-6):#x}"); A(f"v_mov_b32 v{vEps+1}, {f2u(1e-6):#x}")
    A(f"v_mov_b32 v{vNH}, 0xbf00bf00"); A(f"v_mov_b32 v{vNH+1}, 0xbf00bf00")
    A(f"v_mov_b32 v{vXA+1}, 0")
    A(f"s_lshl_b32 s{sT}, s{sW}, 10")
    A(f"v_add_u32 v{vA_phw}, s{sT}, v{vA_phi}")
    A(f"v_lshrrev_b32 v{vT+4}, 2, v{vc}")
    A(f"v_lshl_add_u32 v{vT+4}, v{vg}, 2, v{vT+4}")
    A(f"v_and_b32 v{vT+5}, 7, v{vT+4}")
    A(f"v_xor_b32 v{vT+5}, s{sW}, v{vT+5}")
    A(f"v_lshlrev_b32 v{vT+5}, 5, v{vT+5}")
    A(f"v_lshl_add_u32 v{vT+5}, v{vT+4}, 8, v{vT+5}")
    A(f"v_and_b32 v{vT+7}, 3, v{vc}")
    A(f"v_lshl_add_u32 v{vA_tr}, v{vT+7}, 3, v{vT+5}")
    A(f"s_lshr_b32 s{sT}, s{sW}, 1")
    A(f"v_bfe_u32 v{vT+4}, v{vc}, 1, 2")
    A(f"v_xor_b32 v{vT+4}, s{sT}, v{vT+4}")
    A(f"v_lshlrev_b32 v{vT+4}, 4, v{vT+4}")
    A(f"v_and_b32 v{vT+5}, 1, v{vc}")
    A(f"v_lshl_add_u32 v{vT+4}, v{vT+5}, 3, v{vT+4}")
    A(f"v_lshrrev_b32 v{vT+5}, 3, v{vc}")
    A(f"v_lshl_add_u32 v{vT+4}, v{vT+5}, 6, v{vT+4}")
    A(f"v_lshl_add_u32 v{vT+4}, v{vg}, 10, v{vT+4}")
    A(f"s_lshl_b32 s{sT}, s{sW}, 7")
    A(f"s_add_u32 s{sT}, s{sT}, {LDS_KVT}")
    A(f"v_add_u32 v{vA_kvw}, s{sT}, v{vT+4}")
    A(f"v_lshrrev_b32 v{vT+4}, 2, v{vc}")
    A(f"v_lshlrev_b32 v{vT+4}, 4, v{vT+4}")
    A(f"v_lshl_add_u32 v{vT+4}, v{vc}, 6, v{vT+4}")
    A(f"v_lshl_add_u32 v{vT+4}, v{vg}, 10, v{vT+4}")
    A(f"v_add_u32 v{vA_kvr}, {LDS_KVT}, v{vT+4}")
    for k in range(1, 4):
        A(f"v_xor_b32 v{vA_kvr+k}, {16*k}, v{vA_kvr}")
    A(f"v_lshrrev_b32 v{vA_cs}, 5, v{vA_lin}")
    A(f"v_and_b32 v{vA_cs}, 28, v{vA_cs}")
    A(f"v_lshlrev_b32 v{vT+4}, 4, v{vc}")
    A(f"v_lshl_add_u32 v{vA_o}, v{vg}, 10, v{vT+4}")
    srdc(SO, 1 << 24)
    A("s_waitcnt lgkmcnt(0)")
    A("s_barrier")

    npoll = [0]
    def poll(off, need, sleep=True, extra=None):
        n = npoll[0]; npoll[0] += 1
        LB(f"L_p{n}")
        A(f"ds_read_b32 v{vT}, v{vA_fl} offset:{off}")
        if extra: A(extra)
        A(f"s_sub_u32 s{sSpin}, s{sSpin}, 1")
        A("s_waitcnt lgkmcnt(0)")
        A(f"v_cmp_le_i32 vcc, {need}, v{vT}")
        A(f"s_cbranch_vccnz L_pk{n}")
        if sleep and slp: A(f"s_sleep {slp}")
        A(f"s_cbranch_scc0 L_p{n}")
        A(f"s_mov_b32 s{sSpin}, 0")
        LB(f"L_pk{n}")
    def pollw(base, sleep=True):
        A(f"s_add_u32 s{sNeed}, s{sW}, {base}")
        poll(4, f"s{sNeed}", sleep)
    def rdkq(t):
        for s in range(4):
            A(f"ds_read_b128 {vr(vX+4*s,4)}, v{vA_kr+s} offset:{t*32768}")
    def round4(dst, src):
        for i in range(4):
            A(f"v_cvt_pk_bf16_f32 v{dst+i}, 0, v{src+i}")
    def xred8(r):
        for pat in ("quad_perm:[1,0,3,2]", "quad_perm:[2,3,0,1]", "row_half_mirror"):
            A("s_nop 1")
            A(f"v_xor_b32_dpp v{r}, v{r}, v{r} {pat} row_mask:0xf bank_mask:0xf")
    def call(s): A(f"s_swappc_b64 {sr(sRet,2)}, {sr(s,2)}")

    pollw(2)
    if not fine: stamp()
    for s in range(4):
        A(f"ds_read_b128 {vr(vOM+4*s,4)}, v{vA_phi} offset:{LDS_OM-LDS_PHI+1024*s}")
    rdkq(0)
    call(sPhiK)
    A(f"v_mov_b32 v{vK}, v{vR}")
    A(f"v_mov_b32 v{vK+1}, v{vR+1}")
    pollw(10)
    if not fine: stamp()
    rdkq(1)
    call(sPhiK)
    A(f"ds_write2_b64 v{vA_phw}, {vr(vK,2)}, {vr(vR,2)} offset0:0 offset1:1")
    A("s_waitcnt lgkmcnt(0)")
    A("s_barrier")
    if not fine: stamp()
    for b in range(8):
        A(f"ds_read_b128 {vr(vK+4*b,4)}, v{vA_phi} offset:{1024*b}")
    A(f"ds_read_b64 {vr(vNon,2)}, v{vA_fl} offset:24")
    A(f"s_lshl_b32 s{sT}, s{sP}, 10")
    A(f"s_add_u32 s{sT}, s{sT}, s{sKVo}")
    A(f"s_lshl_b32 s{sNeed}, s{sP}, 5")
    A(f"s_add_u32 s{sNeed}, s{sNeed}, s{sCKo}")
    poll(4, 33, sleep=False)
    stamp()
    for b in range(8):
        A(f"ds_read_b64_tr_b16 {vr(vB+4*b,2)}, v{vA_tr} offset:{4096*b}")
        A(f"ds_read_b64_tr_b16 {vr(vB+4*b+2,2)}, v{vA_tr} offset:{4096*b+32768}")
    for b in range(8):
        A(f"s_waitcnt lgkmcnt({14-2*b})")
        A(f"v_mfma_f32_16x16x32_bf16 {vr(vOwn,4)}, {vr(vK+4*b,4)}, {vr(vB+4*b,4)}, {'0' if b==0 else vr(vOwn,4)}")
    A(f"v_and_b32 v{vA_c}, 0x70, v{vA_lin}")
    A(f"s_lshl_b32 s{sGo}, s{sP}, 4")
    A(f"v_cmp_eq_u32 vcc, s{sGo}, v{vA_c}")
    A(f"v_lshl_add_u32 v{vA_c}, v{vA_c}, 1, v{vA_cs}")
    A(f"v_xor_b32 v{vNon+1}, v{vNon+1}, v{vNon}")
    A(f"v_cndmask_b32 v{vA_c}, v{vA_c}, v{vNH}, vcc")
    A("s_nop 1")
    A(f"buffer_store_dwordx4 {vr(vOwn,4)}, v{vA_lin}, {sr(SWS,4)}, s{sT} offen sc1")
    A(f"v_xor_b32 v{vT}, v{vOwn}, v{vOwn+1}")
    A(f"v_bitop3_b32 v{vT}, v{vT}, v{vOwn+2}, v{vOwn+3} bitop3:0x96")
    xred8(vT)
    A(f"v_xor_b32 v{vT}, v{vT}, v{vNon}")
    A("s_mov_b32 exec_lo, 0x01010101")
    A("s_mov_b32 exec_hi, 0x01010101")
    A(f"buffer_store_dword v{vT}, v{vA_cs}, {sr(SWS,4)}, s{sNeed} offen sc1")
    A("s_mov_b64 exec, -1")
    if not fine: stamp()
    def den(t):
        A(f"v_mfma_f32_16x16x16_bf16 {vr(vD[t],4)}, {vr(vPHQ[t],2)}, {vr(vZB,2)}, 0")
    def den2(t):
        round4(vD[t], vD[t])
        A(f"v_pk_add_f32 {vr(vD[t],2)}, {vr(vD[t],2)}, {vr(vEps,2)}")
        A(f"v_pk_add_f32 {vr(vD[t]+2,2)}, {vr(vD[t]+2,2)}, {vr(vEps,2)}")
        round4(vD[t], vD[t])
        for i in range(4): A(f"v_rcp_f32 v{vD[t]+i}, v{vD[t]+i}")
    vGa = vK
    def gload(fl):
        for p in range(8):
            if own:
                if p: A(f"buffer_load_dwordx4 {vr(vGa+4*p,4)}, v{vA_lin}, {sr(SWS,4)}, s{sGp+p-1} offen {fl}")
            else:
                A(f"buffer_load_dwordx4 {vr(vGa+4*p,4)}, v{vA_lin}, {sr(SWS,4)}, s{sKVo if p < 4 else sGo} offen offset:{(p%4)*1024} {fl}")
        A(f"buffer_load_dword v{vC}, v{vA_c}, {sr(SWS,4)}, s{sCKo} offen {fl}")
    zx = f"ds_read_b64 {vr(vZB,2)}, v{vA_z} offset:32"
    if qprio:
        A(f"s_cmp_lt_u32 s{sW}, 4")
        A("s_cbranch_scc1 L_np")
        A(f"s_setprio {qprio}")
        LB("L_np")
    A(f"s_add_u32 s{sNeed}, s{sW}, 34")
    A(f"s_mov_b32 s{sRot}, 0")
    LB("L_qa")
    A(f"ds_read2_b32 {vr(vT,2)}, v{vA_fl} offset0:1 offset1:4")
    A(f"s_sub_u32 s{sSpin}, s{sSpin}, 1")
    A("s_waitcnt lgkmcnt(0)")
    if eg:
        A(f"v_cmp_lt_i32 vcc, s{sRot}, v{vT+1}")
        A("s_cbranch_vccnz L_g1")
    A(f"v_cmp_le_i32 vcc, s{sNeed}, v{vT}")
    A("s_cbranch_vccnz L_qak")
    A(f"s_sleep {slp}")
    A("s_cbranch_scc0 L_qa")
    A(f"s_mov_b32 s{sSpin}, 0")
    if eg:
        A("s_branch L_qak")
        LB("L_g1")
        gload(gfl)
        A(f"s_mov_b32 s{sRot}, 1")
        A("s_branch L_qa")
    LB("L_qak")
    rdkq(0)
    call(sPhiQ)
    A(f"v_mov_b32 v{vPHQ[0]}, v{vR}")
    A(f"v_mov_b32 v{vPHQ[0]+1}, v{vR+1}")
    stamp()
    assert lT == 0
    if True:
        A(f"s_cmp_lg_u32 s{sRot}, 0")
        A("s_cbranch_scc1 L_g2")
        poll(16, 1, sleep=False)
        gload(gfl)
        LB("L_g2")
        if fine: stamp()
        poll(8, 1, sleep=False, extra=zx)
        den(0)
        A("s_nop 7")
        den2(0)
        if dyn:
            A(f"ds_read_b32 v{vT}, v{vA_fl} offset:4")
            A(f"s_add_u32 s{sNeed}, s{sW}, 42")
            A(f"s_mov_b32 s{sRot}, 0")
            A("s_waitcnt lgkmcnt(0)")
            A(f"v_cmp_le_i32 vcc, s{sNeed}, v{vT}")
            A("s_cbranch_vccz L_nob")
            rdkq(1)
            call(sPhiQ)
            A(f"s_mov_b32 s{sRot}, 1")
            den(1)
            A("s_nop 7")
            den2(1)
            LB("L_nob")
        if fine: stamp()
        stamp()
    vS_ = vT
    LB("L_gsum")
    for p in range(1, 8):
        A(f"s_waitcnt vmcnt({8 - p if p < 7 else 0})")
        if p == 1:
            if fine: stamp()
        if p == 1:
            g0 = vOwn if own else vGa
            A(f"v_pk_add_f32 {vr(vS_,2)}, {vr(g0,2)}, {vr(vGa+4,2)}")
            A(f"v_pk_add_f32 {vr(vS_+2,2)}, {vr(g0+2,2)}, {vr(vGa+6,2)}")
            A(f"v_xor_b32 v{vC+2}, v{vGa+4}, v{vGa+5}")
            A(f"v_xor_b32 v{vC+1}, v{vGa+6}, v{vGa+7}")
            continue
        else:
            A(f"v_pk_add_f32 {vr(vS_,2)}, {vr(vS_,2)}, {vr(vGa+4*p,2)}")
            A(f"v_pk_add_f32 {vr(vS_+2,2)}, {vr(vS_+2,2)}, {vr(vGa+4*p+2,2)}")
        A(f"v_bitop3_b32 v{vC+2}, v{vC+2}, v{vGa+4*p}, v{vGa+4*p+1} bitop3:0x96")
        A(f"v_bitop3_b32 v{vC+1}, v{vC+1}, v{vGa+4*p+2}, v{vGa+4*p+3} bitop3:0x96")
    A(f"v_bitop3_b32 v{vC}, v{vC}, v{vC+1}, v{vC+2} bitop3:0x96")
    A(f"v_cvt_pk_bf16_f32 v{vT+12}, v{vS_}, v{vS_+1}")
    A(f"v_cvt_pk_bf16_f32 v{vT+13}, v{vS_+2}, v{vS_+3}")
    A(f"v_xor_b32_dpp v{vC}, v{vC}, v{vC} quad_perm:[1,0,3,2] row_mask:0xf bank_mask:0xf")
    A(f"ds_write_b64 v{vA_kvw}, {vr(vT+12,2)}")
    A(f"s_sub_u32 s{sSpin2}, s{sSpin2}, 1")
    A(f"v_xor_b32_dpp v{vC}, v{vC}, v{vC} quad_perm:[2,3,0,1] row_mask:0xf bank_mask:0xf")
    A("s_nop 1")
    A(f"v_xor_b32_dpp v{vC}, v{vC}, v{vC} row_half_mirror row_mask:0xf bank_mask:0xf")
    A(f"v_cmp_ne_u32 vcc, v{vC}, v{vNon+1}")
    A("s_cbranch_vccnz L_regather")
    LB("L_gok")
    if fine: stamp()
    A("s_mov_b64 exec, 1")
    A(f"ds_add_u32 v{vA_fl}, v{vOne}")
    A("s_mov_b64 exec, -1")
    poll(0, 8, sleep=False)
    stamp()
    for k in range(4):
        A(f"ds_read_b128 {vr(vKVB+4*k,4)}, v{vA_kvr+k}")
    vN = [vK, vX]
    for k in range(4):
        A(f"s_waitcnt lgkmcnt({3-k})")
        for j in range(2):
            dd = 2*k + j
            A(f"v_mfma_f32_16x16x16_bf16 {vr(vN[0]+4*dd,4)}, {vr(vPHQ[0],2)}, {vr(vKVB+2*dd,2)}, 0")
    mb = [f"v_mfma_f32_16x16x16_bf16 {vr(vN[1]+4*dd,4)}, {vr(vPHQ[1],2)}, {vr(vKVB+2*dd,2)}, 0" for dd in range(8)]
    body = []
    no = 0
    for t in range(2):
        for rp in range(2):
            r0 = 2*rp
            for dd in range(8):
                for r in (r0, r0+1):
                    body.append(f"v_cvt_pk_bf16_f32 v{vN[t]+4*dd+r}, 0, v{vN[t]+4*dd+r}")
            for dd in range(8):
                body.append(f"v_pk_mul_f32 {vr(vN[t]+4*dd+r0,2)}, {vr(vN[t]+4*dd+r0,2)}, {vr(vD[t]+r0,2)}")
            for r in (r0, r0+1):
                o = vT + 4*(no % 4); no += 1
                for j in range(4):
                    body.append(f"v_cvt_pk_bf16_f32 v{o+j}, v{vN[t]+8*j+r}, v{vN[t]+8*j+4+r}")
                body.append(f"buffer_store_dwordx4 {vr(o,4)}, v{vA_o}, {sr(SO,4)}, s{sBase+t} offen offset:{256*r} {st if t == 0 else st2}")
    if lT < 8:
        h = len(body) // 2
        A("s_nop 0")
        for x in body[:h]: A(x)
        if lT:
            A(f"s_cmp_lt_u32 s{sW}, {lT}")
            A("s_cbranch_scc1 L_j2")
        elif dyn:
            A(f"s_cmp_lg_u32 s{sRot}, 0")
            A("s_cbranch_scc1 L_j2")
        pollw(42, sleep=False)
        rdkq(1)
        call(sPhiQ)
        A("s_nop 0")
        den(1)
        for x in mb: A(x)
        den2(1)
        if lT or dyn:
            A("s_branch L_j3")
            LB("L_j2")
            for x in mb: A(x)
            A("s_nop 0")
            LB("L_j3")
        for x in body[h:]: A(x)
    elif mi == 0:
        for x in mb: A(x)
        for x in body: A(x)
    else:
        A(mb.pop(0))
        for i, x in enumerate(body):
            A(x)
            if mb and i % mi == mi - 1: A(mb.pop(0))
    LB("L_fin")
    if stamps:
        stamp()
        A("s_waitcnt vmcnt(0)")
        stamp(True)
        A("s_waitcnt lgkmcnt(0)")
        assert nst[0] <= 11, nst[0]
        for i in range(12):
            A(f"v_mov_b32 v{vK+i}, s{sSt+2*i}" if i < nst[0] else f"v_mov_b32 v{vK+i}, s{sSpin2}")
        A(f"s_mul_i32 s{sT}, s2, {NW}")
        A(f"s_add_u32 s{sT}, s{sT}, s{sWr}")
        A(f"s_mul_i32 s{sT}, s{sT}, 48")
        A(f"s_add_u32 s{sT}, s{sT}, {WS_STAMP}")
        A("s_mov_b64 exec, 1")
        for i in range(3):
            A(f"buffer_store_dwordx4 {vr(vK+4*i,4)}, off, {sr(SWS,4)}, s{sT} offset:{16*i}")
    LB("L_end")
    A("s_endpgm")

    def phi(isq):
        base = vX
        for s in range(4):
            A(f"s_waitcnt lgkmcnt({3-s})")
            b = base + 4*s
            for i in range(4):
                A(f"v_lshlrev_b32 v{vT+2*i}, 16, v{b+i}")
                A(f"v_and_b32 v{vT+2*i+1}, 0xffff0000, v{b+i}")
            for i in range(4):
                A(f"v_pk_mul_f32 {vr(vT+2*i,2)}, {vr(vT+2*i,2)}, {sr(sScale,2)}")
            for i in range(4):
                A(f"v_cvt_pk_bf16_f32 v{b+i}, v{vT+2*i}, v{vT+2*i+1}")
            if s > 0:
                x = vr(base+4*(s-1), 4); o = vr(vOM+4*(s-1), 4)
                c0 = "0" if s == 1 else vr(vG, 4); c1 = "0" if s == 1 else vr(vP, 4)
                A(f"v_mfma_f32_16x16x32_bf16 {vr(vG,4)}, {x}, {x}, {c0}")
                A(f"v_mfma_f32_16x16x32_bf16 {vr(vP,4)}, {o if isq else x}, {x if isq else o}, {c1}")
        x = vr(base+12, 4); o = vr(vOM+12, 4)
        A(f"v_mfma_f32_16x16x32_bf16 {vr(vG,4)}, {x}, {x}, {vr(vG,4)}")
        A(f"v_mfma_f32_16x16x32_bf16 {vr(vP,4)}, {o if isq else x}, {x if isq else o}, {vr(vP,4)}")
        A("s_nop 6")
        A(f"v_cndmask_b32 v{vT}, 0, v{vG}, {sr(sM[0],2)}")
        for r in range(1, 4):
            A(f"v_cndmask_b32 v{vT}, v{vT}, v{vG+r}, {sr(sM[r],2)}")
        A(f"v_cvt_pk_bf16_f32 v{vXA}, v{vT}, v{vXA+1}")
        round4(vT+4, vP)
        A("s_nop 1")
        a, b = (vr(vNH,2), vr(vXA,2)) if isq else (vr(vXA,2), vr(vNH,2))
        A(f"v_mfma_f32_16x16x16_bf16 {vr(vP,4)}, {a}, {b}, {vr(vT+4,4)}")
        A("s_nop 7")
        round4(vT+8, vP)
        A(f"v_pk_mul_f32 {vr(vT+8,2)}, {vr(vT+8,2)}, {sr(sL2E,2)}")
        A(f"v_pk_mul_f32 {vr(vT+10,2)}, {vr(vT+10,2)}, {sr(sL2E,2)}")
        for i in range(4):
            A(f"v_exp_f32 v{vT+8+i}, v{vT+8+i}")
        A("s_nop 0")
        round4(vT+12, vT+8)
        A(f"v_pk_fma_f32 {vr(vT+12,2)}, {vr(vT+12,2)}, {sr(sQuart,2)}, {vr(vEps,2)}")
        A(f"v_pk_fma_f32 {vr(vT+14,2)}, {vr(vT+14,2)}, {sr(sQuart,2)}, {vr(vEps,2)}")
        A(f"v_cvt_pk_bf16_f32 v{vR}, v{vT+12}, v{vT+13}")
        A(f"v_cvt_pk_bf16_f32 v{vR+1}, v{vT+14}, v{vT+15}")
        A(f"s_setpc_b64 {sr(sRet,2)}")
    LB("L_phik")
    phi(False)
    LB("L_phiq")
    phi(True)

    LB("L_regather")
    A("s_cbranch_scc1 L_gok")
    gload('sc1')
    A("s_branch L_gsum")

    LB("L_helper")
    if hprio: A(f"s_setprio {hprio}")
    A(f"s_memrealtime {sr(sClk,2)}")
    A(f"v_mov_b32 v{vT+8}, 0")
    A(f"v_mov_b32 v{vT+9}, 0")
    A(f"ds_write_b32 v{vA_fl}, v{vT+8}")
    A(f"ds_write_b64 v{vA_fl}, {vr(vT+8,2)} offset:8")
    A(f"ds_write_b32 v{vA_fl}, v{vT+8} offset:16")
    A(f"v_mov_b32 v{vT+12}, 0x3f803f80")
    for i in range(1, 4): A(f"v_mov_b32 v{vT+12+i}, v{vT+12}")
    A(f"v_and_b32 v{vX+2}, 7, v{vc}")
    A(f"v_lshl_add_u32 v{vX}, v{vX+2}, 7, v{vT+3}")
    A(f"v_lshlrev_b32 v{vX+3}, 2, v{vg}")
    A(f"v_lshl_add_u32 v{vX+1}, v{vX+2}, 7, v{vX+3}")
    srdc(SDB, 256)
    A("s_waitcnt lgkmcnt(0)")
    A("s_barrier")
    C("the first few workgroups offer a launch nonce; the first offer to land wins")
    A(f"s_cmp_ge_u32 s2, {nroot}")
    A("s_cbranch_scc1 L_noroot")
    A(f"s_or_b32 s{sClk}, s{sClk}, 0x80000000")
    A(f"v_mov_b32 v{vT+8}, s{sClk}")
    A("s_mov_b64 exec, 1")
    A(f"buffer_atomic_cmpswap {vr(vT+8,2)}, off, {sr(SDB,4)}, 0 sc1")
    A("s_mov_b64 exec, -1")
    LB("L_noroot")
    A(f"s_add_u32 s{sGo}, s{sKVo}, {WS_ZS}")
    A(f"s_lshl_b32 s{sT}, s{sP}, 7")
    A(f"s_add_u32 s{sM0}, s{sT}, s{sGo}")
    A(f"s_mov_b32 s{sK1}, 0x9E3779B1")
    poll(4, nat)
    LB("L_non")
    A(f"buffer_load_dword v{vNon}, off, {sr(SDB,4)}, 0 sc1")
    A(f"s_sub_u32 s{sSpin2}, s{sSpin2}, 1")
    A("s_waitcnt vmcnt(0)")
    A(f"v_cmp_ne_u32 vcc, 0, v{vNon}")
    A("s_cbranch_vccnz L_nonk")
    A("s_cbranch_scc0 L_non")
    A(f"s_mov_b32 s{sSpin2}, 0")
    LB("L_nonk")
    A(f"v_mov_b32 v{vN0}, v{vNon}")
    A(f"v_readfirstlane_b32 s{sG1}, v{vNon}")
    A(f"v_add_u32 v{vX+4}, v{vX+2}, v{vNon}")
    A(f"v_mul_lo_u32 v{vX+4}, v{vX+4}, s{sK1}")
    A(f"v_lshrrev_b32 v{vX+5}, 15, v{vX+4}")
    A(f"v_xor_b32 v{vX+4}, v{vX+4}, v{vX+5}")
    A(f"v_mul_lo_u32 v{vX+4}, v{vX+4}, s{sK1}")
    A(f"v_lshrrev_b32 v{vX+5}, 13, v{vX+4}")
    A(f"v_xor_b32 v{vX+4}, v{vX+4}, v{vX+5}")
    A(f"v_mov_b32 v{vNon+1}, v{vX+4}")
    A(f"v_readlane_b32 s{sT}, v{vX+4}, s{sP}")
    xred8(vNon+1)
    A(f"v_mov_b32 v{vNon}, s{sT}")
    A(f"ds_write_b64 v{vA_fl}, {vr(vNon,2)} offset:24")
    xstamp(1)
    A("s_waitcnt lgkmcnt(0)")
    A("s_barrier")
    for b in range(8):
        A(f"ds_read_b128 {vr(vK+4*b,4)}, v{vA_phi} offset:{1024*b}")
    for b in range(8):
        A(f"s_waitcnt lgkmcnt({7-b})")
        A(f"v_mfma_f32_16x16x32_bf16 {vr(vP,4)}, {vr(vK+4*b,4)}, {vr(vT+12,4)}, {'0' if b==0 else vr(vP,4)}")
    A("s_mov_b32 exec_lo, 0x00010001")
    A("s_mov_b32 exec_hi, 0x00010001")
    A("s_nop 5")
    A(f"buffer_store_dwordx4 {vr(vP,4)}, v{vT+3}, {sr(SWS,4)}, s{sM0} offen sc1")
    A(f"v_bitop3_b32 v{vT}, v{vP}, v{vP+1}, v{vP+2} bitop3:0x96")
    A(f"v_bitop3_b32 v{vT}, v{vT}, v{vP+3}, v{vNon} bitop3:0x96")
    A(f"buffer_store_dword v{vT}, v{vX+3}, {sr(SWS,4)}, s{sM0} offen offset:64 sc1")
    A("s_mov_b64 exec, -1")
    xstamp(2)
    vZg = vK
    def zload():
        A(f"buffer_load_dwordx4 {vr(vZg,4)}, v{vX}, {sr(SWS,4)}, s{sGo} offen sc1")
        A(f"buffer_load_dword v{vZg+10}, v{vX+1}, {sr(SWS,4)}, s{sGo} offen offset:64 sc1")
    sTg, sTP = 40, 48
    A(f"s_add_u32 s{sT}, s{sKVo}, {WS_TAG}")
    A(f"s_add_u32 s{sTP}, s{SWS}, s{sT}")
    A(f"s_addc_u32 s{sTP+1}, s{SWS+1}, 0")
    A(f"s_lshr_b32 s{sG2}, 0x80, s{sP}")
    A(f"s_mov_b32 s{sNeed}, 0")
    A(f"s_lshl_b32 s{sK1}, s{sP}, 2")
    A(f"s_add_u32 s{sT}, s{sT}, s{sK1}")
    poll(4, tat, sleep=False)
    A("s_mov_b64 exec, 1")
    A(f"buffer_store_dword v{vN0}, off, {sr(SWS,4)}, s{sT} sc1")
    A("s_mov_b64 exec, -1")
    LB("L_t")
    A(f"s_load_dwordx8 {sr(sTg,8)}, {sr(sTP,2)}, 0 glc")
    A(f"ds_read_b32 v{vT}, v{vA_fl} offset:4")
    A(f"s_mov_b32 s{sT}, 0")
    A("s_waitcnt lgkmcnt(0)")
    A(f"v_cmp_le_i32 vcc, {zat}, v{vT}")
    A(f"s_cmp_lg_u32 s{sNeed}, 0")
    A("s_cbranch_scc1 L_t1")
    A("s_cbranch_vccz L_t1")
    zload()
    A(f"s_mov_b32 s{sNeed}, 1")
    LB("L_t1")
    for i in range(8):
        A(f"s_cmp_eq_u32 s{sTg+i}, s{sG1}")
        A(f"s_addc_u32 s{sT}, s{sT}, s{sT}")
    A(f"s_or_b32 s{sT}, s{sT}, s{sG2}")
    A(f"s_cmp_eq_u32 s{sT}, 0xff")
    A("s_cbranch_scc1 L_t2")
    if tsl: A(f"s_sleep {tsl}")
    A(f"s_sub_u32 s{sSpin2}, s{sSpin2}, 1")
    A("s_cbranch_scc0 L_t")
    A(f"s_mov_b32 s{sSpin2}, 0")
    LB("L_t2")
    if gmin: poll(4, gmin, sleep=False)
    A(f"ds_write_b32 v{vA_fl}, v{vOne} offset:16")
    xstamp(3)
    A(f"s_cmp_lg_u32 s{sNeed}, 0")
    A("s_cbranch_scc1 L_t3")
    poll(4, zat)
    zload()
    LB("L_t3")
    A("s_waitcnt vmcnt(0)")
    LB("L_zchk")
    A(f"v_bitop3_b32 v{vZg+10}, v{vZg+10}, v{vZg}, v{vZg+1} bitop3:0x96")
    A(f"v_bitop3_b32 v{vZg+10}, v{vZg+10}, v{vZg+2}, v{vZg+3} bitop3:0x96")
    A(f"v_cmp_ne_u32 vcc, v{vZg+10}, v{vX+4}")
    A("s_cbranch_vccnz L_zbad")
    LB("L_zok")
    for i in range(4):
        A(f"v_add_f32_dpp v{vZg+4+i}, v{vZg+i}, v{vZg+i} quad_perm:[1,0,3,2] row_mask:0xf bank_mask:0xf")
    for i in range(4):
        A(f"v_add_f32_dpp v{vZg+i}, v{vZg+4+i}, v{vZg+4+i} quad_perm:[2,3,0,1] row_mask:0xf bank_mask:0xf")
    for i in range(4):
        A(f"v_add_f32_dpp v{vZg+4+i}, v{vZg+i}, v{vZg+i} row_half_mirror row_mask:0xf bank_mask:0xf")
    A(f"v_cvt_pk_bf16_f32 v{vZg+8}, v{vZg+4}, v{vZg+5}")
    A(f"v_cvt_pk_bf16_f32 v{vZg+9}, v{vZg+6}, v{vZg+7}")
    A(f"ds_write_b64 v{vA_z}, {vr(vZg+8,2)} offset:32")
    A(f"ds_write_b32 v{vA_fl}, v{vOne} offset:8")
    xstamp(5)
    xstamp(4); xstamp(6)
    if stamps:
        xstamp(7); xstamp(8)
        A("s_branch L_fin")
    else:
        A("s_endpgm")
    LB("L_zbad")
    A(f"s_sub_u32 s{sSpin2}, s{sSpin2}, 1")
    A("s_cbranch_scc1 L_zok")
    zload()
    A("s_waitcnt vmcnt(0)")
    A("s_branch L_zchk")
    LB("L_codeend")
    return HEADER.format(lds=LDS_TOTAL) + "\n".join(x for x in L if x) + FOOTER.format(vgpr=NV, sgpr=98 if stamps else 72, acc=NV)

if __name__ == '__main__':
    out = sys.argv[1]
    kw = {}
    for a in sys.argv[2:]:
        k, v = a.split('=')
        kw[k] = v if k in ('ld', 'st', 'gfl', 'st2') else (tuple(map(int, v.split(','))) if k == 'rot' else int(v))
    open(out, 'w').write(gen(**kw))
```

```python
import sys, struct

def f2u(x): return struct.unpack('<I', struct.pack('<f', x))[0]

HEADER = """; Linear (random-feature) attention, B=1 H=32 S=2048 D=128 M=16, bf16.
; @launch grid=(256,1,1) block=(640,1,1) lds={lds}
.amdgcn_target "amdgcn-amd-amdhsa--gfx950"
.text
.globl standalone__linear_kernel_rfa__prompt_kernel
.p2align 8
.type standalone__linear_kernel_rfa__prompt_kernel,@function
standalone__linear_kernel_rfa__prompt_kernel:
"""
FOOTER = """
.section .rodata,"a"
.p2align 6
.amdhsa_kernel standalone__linear_kernel_rfa__prompt_kernel
  .amdhsa_next_free_vgpr {vgpr}
  .amdhsa_next_free_sgpr {sgpr}
  .amdhsa_accum_offset {acc}
  .amdhsa_group_segment_fixed_size 0
  .amdhsa_kernarg_size 56
  .amdhsa_user_sgpr_count 2
  .amdhsa_user_sgpr_kernarg_segment_ptr 1
  .amdhsa_system_sgpr_workgroup_id_x 1
  .amdhsa_float_denorm_mode_32 3
  .amdhsa_float_denorm_mode_16_64 3
.end_amdhsa_kernel
"""

LDS_V, LDS_KQ, LDS_PHI, LDS_KVT, LDS_FLAG, LDS_OM = 0, 65536, 131072, 139264, 143360, 143616
LDS_CHK = LDS_OM
LDS_TOTAL = LDS_OM + 4096
HSTRIDE = 69632
WS_CHK, WS_ZS, WS_TAG = 65536, 67584, 68608
WS_BYTES = 4 << 20
WS_STAMP = 3 << 20
NW = 10

def gen(ld='nt', st='nt', gfl='', stamps=False, W=28, W2=36, WG=5, spin=200000, lprio=3, hprio=2,
        slp=1, pre=5, rot=(4,15), hmap=0, nat=10, zat=33, nroot=8, pf=1, fine=0, mi=4, dena=2, gT=0, gq=0, gprio=0, lT=0, qprio=0, lb3=0, own=1, dyn=0, st2=None, tsl=2, gmin=0, eg=0, tat=34, lgo=0, SW=8, kvs=5, il=1, pb=0):
    L = []
    def A(s): L.append("    " + s)
    def C(s): L.append("    ; " + s)
    def LB(s): L.append(s + ":")
    def vr(a, n): return f"v[{a}:{a+n-1}]"
    def sr(a, n): return f"s[{a}:{a+n-1}]"
    G, G2 = W // 4, W2 // 4
    if st2 is None: st2 = st
    SC, SOM, SO, SWS, SDB = 4, 8, 12, 16, 20
    sPQ, sPV = 24, 26
    sBase, sBase2, sW, sH, sP, sWr = 28, 29, 30, 31, 32, 33
    sScale, sL2E, sQuart = 34, 36, 38
    sM = [40, 42, 44, 46]
    sHi = 48
    sKVo, sCKo, sGo, sT, sSpin, sM0, sSpin2, sNeed, sRot = 49, 50, 51, 52, 53, 54, 55, 56, 57
    sRet = 58
    sPhiK, sPhiQ = 60, 62
    sOff, sEnd, sLds, sPr, sPh = 34, 35, 36, 37, 38
    sClk = 34
    sO = 40
    sG1, sG2, sK1 = 36, 37, 38
    sGp = 64
    sSt = 72
    vA_cs, vA_fl, vOne, vA_lin, vA_tr, vA_phi, vA_kvw = 0, 1, 4, 5, 6, 7, 8
    vA_z, vA_kvr, vA_o, vA_phw = 9, 10, 14, 15
    vPHQ = [2, 16]
    vR = 16
    vEps, vNH, vXA = 18, 20, 22
    vOM = 24
    vK = 40
    vX = 72
    vC, vOwn, vNon, vN0 = 88, 96, 100, 102
    vT = 104
    vP, vG = 120, 124
    vB = 128
    vKVB, vZB, vD = 128, 144, [148, 152]
    vA_g, vA_c = 156, 157
    vA_kr = 160
    NV = 168
    nst = [0]
    lite = (stamps == 2)
    def stamp(force=False):
        if lite and not force:
            nst[0] += 1
            return
        if stamps:
            A(f"s_memrealtime {sr(sSt + 2*nst[0], 2)}")
            nst[0] += 1
    def stamp_again(k):
        for j in range(k): A(f"s_memrealtime {sr(sSt + 2*(nst[0]-k+j), 2)}")
    def xstamp(i):
        if stamps and not lite: A(f"s_memrealtime {sr(sSt + 2*i, 2)}")
    def srdc(d, n):
        A(f"s_mov_b32 s{d+2}, {n}"); A(f"s_mov_b32 s{d+3}, 0x20000")

    A("s_cmp_ge_u32 s2, 256")
    A("s_cbranch_scc1 L_end")
    stamp(True)
    A(f"s_load_dwordx2 {sr(SC,2)}, s[0:1], 8")
    A(f"s_load_dwordx2 {sr(SOM,2)}, s[0:1], 24")
    A(f"v_readfirstlane_b32 s{sWr}, v0")
    vc, vg = vT + 1, vT + 2
    A(f"v_and_b32 v{vc}, 15, v0")
    A(f"v_bfe_u32 v{vg}, v0, 4, 2")
    if hmap == 0:
        A(f"s_and_b32 s{sH}, s2, 31")
        A(f"s_lshr_b32 s{sP}, s2, 5")
    else:
        A(f"s_lshr_b32 s{sH}, s2, 3")
        A(f"s_and_b32 s{sP}, s2, 7")
    A(f"v_xor_b32 v{vT+4}, v{vc}, v{vg}")
    A(f"v_lshlrev_b32 v{vT+4}, 4, v{vT+4}")
    A(f"s_lshl_b32 s{sBase}, s{sH}, 19")
    A(f"s_lshl_b32 s{sT}, s{sP}, 16")
    A(f"s_add_u32 s{sBase}, s{sBase}, s{sT}")
    if len(rot) == 2:
        A(f"s_bfe_u32 s{sRot}, s2, {rot[0] | (rot[1].bit_length() << 16):#x}")
    else:
        A(f"s_lshr_b32 s{sRot}, s2, {rot[0]}")
        A(f"s_mul_i32 s{sRot}, s{sRot}, {rot[1]}")
        A(f"s_and_b32 s{sT}, s2, 7")
        A(f"s_mul_i32 s{sT}, s{sT}, {rot[2]}")
        A(f"s_add_u32 s{sRot}, s{sRot}, s{sT}")
        A(f"s_and_b32 s{sRot}, s{sRot}, 15")
    A(f"s_lshl_b32 s{sRot}, s{sRot}, 12")
    A(f"s_lshr_b32 s{sWr}, s{sWr}, 6")
    A("s_cbranch_scc1 L_notloader")

    C("loader: streams omega, K, V, Q into LDS by DMA and publishes a progress count")
    vA = 40; vAq = 44; vAv = 48; vS = 52; vAo = 54
    A(f"v_lshl_add_u32 v{vA}, v{vg}, 8, v{vT+4}")
    for i in range(1, 4):
        A(f"v_xor_b32 v{vA+i}, {64*i}, v{vA}")
    srdc(SC, 1 << 24)
    A(f"s_mov_b32 m0, {LDS_KQ}")
    A(f"s_add_u32 s{sT}, s{sBase}, s{sRot}")
    if lprio: A(f"s_setprio {lprio}")
    A("s_waitcnt lgkmcnt(0)")
    for i in range(4):
        A(f"buffer_load_dwordx4 v{vA+i}, {sr(SC,4)}, s{sT} offen offset:{i*1024} {ld} lds")
    A(f"s_load_dwordx2 {sr(sPQ,2)}, s[0:1], 0")
    A(f"s_load_dwordx2 {sr(sPV,2)}, s[0:1], 16")
    if stamps: A(f"s_load_dwordx2 {sr(SWS,2)}, s[0:1], 48")
    srdc(SOM, 4096)
    A(f"v_lshlrev_b32 v{vT+3}, 4, v{vg}")
    A(f"v_lshl_add_u32 v{vAo}, v{vc}, 8, v{vT+3}")
    for s in range(4):
        A(f"s_mov_b32 m0, {LDS_OM + s*1024 - s*64}")
        A(["s_nop 0", f"s_mov_b32 s{sOff}, 4096", f"s_mov_b32 s{sEnd}, {pre*4096}", f"s_mov_b32 s{sLds}, {LDS_KQ}"][s])
        A(f"buffer_load_dwordx4 v{vAo}, {sr(SOM,4)}, 0 offen offset:{64*s} lds")
    A(f"s_mov_b32 s{sPr}, {2 - G}")
    A(f"s_mov_b32 s{sPh}, 0")
    A(f"v_mov_b32 v{vS}, 0")
    A(f"v_mov_b32 v{vA_fl}, {LDS_FLAG}")
    for i in range(4): A(f"v_mov_b32 v{vAq+i}, v{vA+i}")
    A(f"v_lshlrev_b32 v{vT+5}, 1, v{vg}")
    A(f"v_xor_b32 v{vT+5}, v{vT+5}, v{vc}")
    A(f"v_lshlrev_b32 v{vT+5}, 4, v{vT+5}")
    A(f"v_lshl_add_u32 v{vAv}, v{vg}, 8, v{vT+5}")
    def prep():
        A(f"s_add_u32 m0, s{sLds}, s{sOff}")
        A(f"s_add_u32 s{sT}, s{sRot}, s{sOff}")
        A(f"s_and_b32 s{sT}, s{sT}, 0xffff")
        A(f"s_add_u32 s{sT}, s{sBase}, s{sT}")
    def loads():
        for i in range(4):
            A(f"buffer_load_dwordx4 v{vA+i}, {sr(SC,4)}, s{sT} offen offset:{i*1024} {ld} lds")
    def body(w, end, label, clamp=False):
        A(f"s_waitcnt vmcnt({w})")
        A(f"ds_write_b32 v{vA_fl}, v{vS} offset:4")
        loads()
        A(f"s_add_u32 s{sOff}, s{sOff}, 4096")
        prep()
        A(f"s_add_u32 s{sPr}, s{sPr}, 1")
        if clamp:
            A(f"s_max_i32 s{sPh}, s{sPr}, 33")
            A(f"v_mov_b32 v{vS}, s{sPh}")
        else:
            A(f"v_mov_b32 v{vS}, s{sPr}")
        A(f"s_cmp_lg_u32 s{sOff}, {end}")
        A(f"s_cbranch_scc1 {label}")
    LB("L_lp0")
    prep()
    LB("L_lp")
    body(W, f"s{sEnd}", "L_lp")
    A(f"s_add_u32 s{sPh}, s{sPh}, 1")
    A(f"s_cmp_eq_u32 s{sPh}, 1")
    A("s_cbranch_scc0 L_ph2")
    A("s_waitcnt lgkmcnt(0)")
    A("s_barrier")
    xstamp(1)
    A(f"s_mov_b32 s{sEnd}, 65536")
    A("s_branch L_lp")
    LB("L_ph2")
    A(f"s_cmp_eq_u32 s{sPh}, 2")
    A("s_cbranch_scc0 L_ph3")
    A(f"s_mov_b64 {sr(SC,2)}, {sr(sPV,2)}")
    A(f"s_mov_b32 s{sOff}, 0")
    A(f"s_mov_b32 s{sLds}, {LDS_V}")
    A(f"v_mov_b32 v{vA}, v{vAv}")
    A(f"v_xor_b32 v{vA+1}, 128, v{vAv}")
    A(f"v_mov_b32 v{vA+2}, v{vAv}")
    A(f"v_xor_b32 v{vA+3}, 128, v{vAv}")
    A("s_branch L_lp0")
    LB("L_ph3")
    A(f"s_cmp_eq_u32 s{sPh}, 3")
    A("s_cbranch_scc0 L_ph4")
    A(f"s_mov_b64 {sr(SC,2)}, {sr(sPQ,2)}")
    A(f"s_mov_b32 s{sOff}, 0")
    A(f"s_mov_b32 s{sEnd}, {(G+1)*4096}")
    A(f"s_mov_b32 s{sLds}, {LDS_KQ}")
    for i in range(4): A(f"v_mov_b32 v{vA+i}, v{vAq+i}")
    xstamp(2)
    A("s_barrier")
    xstamp(3)
    A("s_branch L_lp0")
    LB("L_ph4")
    assert G < 14
    A(f"s_add_i32 s{sPr}, s{sPr}, {G - G2}")
    A(f"s_max_i32 s{sPh}, s{sPr}, 33")
    A(f"v_mov_b32 v{vS}, s{sPh}")
    LB("L_lq")
    body(W2, 65536 - gq*4096, "L_lq", G2 > G + 1)
    if lgo:
        A(f"v_mov_b32 v{vS+3}, 1")
        A(f"ds_write_b32 v{vA_fl}, v{vS+3} offset:16")
    if gq:
        LB("L_lr")
        body(W2, 65536, "L_lr")
    xstamp(4)
    if lb3:
        assert lT == 0
        A("s_barrier")
    for k in range(min(G2, 15), -1, -1):
        A(f"v_mov_b32 v{vS+(k&1)}, {49 - k}")
        A(f"s_waitcnt vmcnt({4*k})")
        A(f"ds_write_b32 v{vA_fl}, v{vS+(k&1)} offset:4")
    if stamps:
        for i in range(5, 9): xstamp(i)
        srdc(SWS, WS_BYTES)
        A(f"s_mov_b32 s{sSpin2}, {spin}")
        A("s_branch L_fin")
    else:
        A("s_endpgm")

    LB("L_notloader")
    A(f"s_load_dwordx2 {sr(SO,2)}, s[0:1], 32")
    A(f"s_load_dwordx2 {sr(SDB,2)}, s[0:1], 40")
    A(f"s_load_dwordx2 {sr(SWS,2)}, s[0:1], 48")
    A(f"v_mov_b32 v{vA_fl}, {LDS_FLAG}")
    A(f"v_lshlrev_b32 v{vT+3}, 4, v{vg}")
    A(f"v_and_b32 v{vA_lin}, 63, v0")
    A(f"v_lshlrev_b32 v{vA_lin}, 4, v{vA_lin}")
    A(f"s_mul_i32 s{sKVo}, s{sH}, {HSTRIDE}")
    A(f"v_add_u32 v{vA_phi}, {LDS_PHI}, v{vA_lin}")
    A(f"s_mov_b32 s{sSpin}, {spin*16}")
    A(f"s_mov_b32 s{sSpin2}, {spin}")
    A(f"v_lshl_add_u32 v{vA_z}, v{vg}, 3, v{vA_fl}")
    A(f"v_mov_b32 v{vOne}, 1")
    srdc(SWS, WS_BYTES)
    A(f"s_cmp_eq_u32 s{sWr}, 1")
    A("s_cbranch_scc1 L_helper")

    A(f"s_getpc_b64 {sr(sPhiK,2)}")
    LB("L_pc")
    A(f"s_add_u32 s{sPhiQ}, s{sPhiK}, L_phiq-L_pc")
    A(f"s_addc_u32 s{sPhiQ+1}, s{sPhiK+1}, 0")
    if pf:
        C("pull the rest of the code into the L2 while the first tiles are in flight")
        A(f"v_lshlrev_b32 v{vT+5}, 3, v{vA_lin}")
        A(f"s_cmp_lg_u32 s{sWr}, 9")
        A("s_cbranch_scc1 L_nopf")
        A(f"v_min_u32 v{vT+5}, L_codeend-L_pc-4, v{vT+5}")
        A(f"global_load_dword v164, v{vT+5}, {sr(sPhiK,2)}")
        LB("L_nopf")
    A(f"s_add_u32 s{sPhiK}, s{sPhiK}, L_phik-L_pc")
    A(f"s_addc_u32 s{sPhiK+1}, s{sPhiK+1}, 0")
    A(f"s_sub_u32 s{sW}, s{sWr}, 2")
    A(f"s_lshl_b32 s{sM0}, s{sW}, 12")
    A(f"s_add_u32 s{sT}, s{sM0}, s{sRot}")
    A(f"s_and_b32 s{sT}, s{sT}, 0xffff")
    A(f"s_xor_b32 s{sBase2}, s{sT}, 0x8000")
    A(f"s_add_u32 s{sBase2}, s{sBase}, s{sBase2}")
    A(f"s_add_u32 s{sBase}, s{sBase}, s{sT}")
    A(f"s_add_u32 s{sT}, s{sM0}, {LDS_KQ}")
    A(f"s_lshl_b32 s{sM0}, s{sW}, 13")
    A(f"v_lshl_add_u32 v{vT+4}, v{vc}, 8, v{vT+4}")
    A(f"v_add_u32 v{vA_kr}, s{sT}, v{vT+4}")
    for i in range(1, 4):
        A(f"v_xor_b32 v{vA_kr+i}, {64*i}, v{vA_kr}")
    A(f"s_lshl_b32 s{sT}, s{sW}, 8")
    A(f"s_add_u32 s{sCKo}, s{sKVo}, s{sT}")
    A(f"s_add_u32 s{sCKo}, s{sCKo}, {WS_CHK}")
    A(f"s_add_u32 s{sKVo}, s{sKVo}, s{sM0}")
    if own:
        for i in range(7):
            A(f"s_add_u32 s{sGp+i}, s{sP}, {i+1}")
            A(f"s_and_b32 s{sGp+i}, s{sGp+i}, 7")
            A(f"s_lshl_b32 s{sGp+i}, s{sGp+i}, 10")
            A(f"s_add_u32 s{sGp+i}, s{sGp+i}, s{sKVo}")
    sc = f2u(128.0 ** -0.25)
    A(f"s_mov_b32 s{sScale}, {sc:#x}"); A(f"s_mov_b32 s{sScale+1}, {sc:#x}")
    l2e = f2u(1.4426950408889634)
    A(f"s_mov_b32 s{sL2E}, {l2e:#x}"); A(f"s_mov_b32 s{sL2E+1}, {l2e:#x}")
    A(f"s_mov_b32 s{sQuart}, {f2u(0.25):#x}"); A(f"s_mov_b32 s{sQuart+1}, {f2u(0.25):#x}")
    for r in range(4):
        A(f"s_mov_b32 s{sM[r]}, {(1<<r)|(1<<(20+r)):#x}")
        A(f"s_mov_b32 s{sM[r]+1}, {(1<<(8+r))|(1<<(28+r)):#x}")
    A(f"v_mov_b32 v{vEps}, {f2u(1e-6):#x}"); A(f"v_mov_b32 v{vEps+1}, {f2u(1e-6):#x}")
    A(f"v_mov_b32 v{vNH}, 0xbf00bf00"); A(f"v_mov_b32 v{vNH+1}, 0xbf00bf00")
    A(f"v_mov_b32 v{vXA+1}, 0")
    A(f"s_lshl_b32 s{sT}, s{sW}, 10")
    A(f"v_add_u32 v{vA_phw}, s{sT}, v{vA_phi}")
    A(f"v_lshrrev_b32 v{vT+4}, 2, v{vc}")
    A(f"v_lshl_add_u32 v{vT+4}, v{vg}, 2, v{vT+4}")
    A(f"v_and_b32 v{vT+5}, 7, v{vT+4}")
    A(f"v_xor_b32 v{vT+5}, s{sW}, v{vT+5}")
    A(f"v_lshlrev_b32 v{vT+5}, 5, v{vT+5}")
    A(f"v_lshl_add_u32 v{vT+5}, v{vT+4}, 8, v{vT+5}")
    A(f"v_and_b32 v{vT+7}, 3, v{vc}")
    A(f"v_lshl_add_u32 v{vA_tr}, v{vT+7}, 3, v{vT+5}")
    A(f"s_lshr_b32 s{sT}, s{sW}, 1")
    A(f"v_bfe_u32 v{vT+4}, v{vc}, 1, 2")
    A(f"v_xor_b32 v{vT+4}, s{sT}, v{vT+4}")
    A(f"v_lshlrev_b32 v{vT+4}, 4, v{vT+4}")
    A(f"v_and_b32 v{vT+5}, 1, v{vc}")
    A(f"v_lshl_add_u32 v{vT+4}, v{vT+5}, 3, v{vT+4}")
    A(f"v_lshrrev_b32 v{vT+5}, 3, v{vc}")
    A(f"v_lshl_add_u32 v{vT+4}, v{vT+5}, 6, v{vT+4}")
    A(f"v_lshl_add_u32 v{vT+4}, v{vg}, 10, v{vT+4}")
    A(f"s_lshl_b32 s{sT}, s{sW}, 7")
    A(f"s_add_u32 s{sT}, s{sT}, {LDS_KVT}")
    A(f"v_add_u32 v{vA_kvw}, s{sT}, v{vT+4}")
    A(f"v_lshrrev_b32 v{vT+4}, 2, v{vc}")
    A(f"v_lshlrev_b32 v{vT+4}, 4, v{vT+4}")
    A(f"v_lshl_add_u32 v{vT+4}, v{vc}, 6, v{vT+4}")
    A(f"v_lshl_add_u32 v{vT+4}, v{vg}, 10, v{vT+4}")
    A(f"v_add_u32 v{vA_kvr}, {LDS_KVT}, v{vT+4}")
    for k in range(1, 4):
        A(f"v_xor_b32 v{vA_kvr+k}, {16*k}, v{vA_kvr}")
    A(f"v_lshrrev_b32 v{vA_cs}, 5, v{vA_lin}")
    A(f"v_and_b32 v{vA_cs}, 28, v{vA_cs}")
    A(f"v_lshlrev_b32 v{vT+4}, 4, v{vc}")
    A(f"v_lshl_add_u32 v{vA_o}, v{vg}, 10, v{vT+4}")
    srdc(SO, 1 << 24)
    A("s_waitcnt lgkmcnt(0)")
    A("s_barrier")

    npoll = [0]
    def poll(off, need, sleep=True, extra=None):
        n = npoll[0]; npoll[0] += 1
        LB(f"L_p{n}")
        A(f"ds_read_b32 v{vT}, v{vA_fl} offset:{off}")
        if extra: A(extra)
        A(f"s_sub_u32 s{sSpin}, s{sSpin}, 1")
        A("s_waitcnt lgkmcnt(0)")
        A(f"v_cmp_le_i32 vcc, {need}, v{vT}")
        A(f"s_cbranch_vccnz L_pk{n}")
        if sleep and slp: A(f"s_sleep {slp}")
        A(f"s_cbranch_scc0 L_p{n}")
        A(f"s_mov_b32 s{sSpin}, 0")
        LB(f"L_pk{n}")
    def pollw(base, sleep=True):
        A(f"s_add_u32 s{sNeed}, s{sW}, {base}")
        poll(4, f"s{sNeed}", sleep)
    def rdkq(t):
        for s in range(4):
            A(f"ds_read_b128 {vr(vX+4*s,4)}, v{vA_kr+s} offset:{t*32768}")
    def round4(dst, src):
        for i in range(4):
            A(f"v_cvt_pk_bf16_f32 v{dst+i}, 0, v{src+i}")
    def xred8(r):
        for pat in ("quad_perm:[1,0,3,2]", "quad_perm:[2,3,0,1]", "row_half_mirror"):
            A("s_nop 1")
            A(f"v_xor_b32_dpp v{r}, v{r}, v{r} {pat} row_mask:0xf bank_mask:0xf")
    def call(s): A(f"s_swappc_b64 {sr(sRet,2)}, {sr(s,2)}")

    pollw(2)
    if not fine: stamp()
    for s in range(4):
        A(f"ds_read_b128 {vr(vOM+4*s,4)}, v{vA_phi} offset:{LDS_OM-LDS_PHI+1024*s}")
    rdkq(0)
    call(sPhiK)
    A(f"v_mov_b32 v{vK}, v{vR}")
    A(f"v_mov_b32 v{vK+1}, v{vR+1}")
    pollw(10)
    if not fine: stamp()
    rdkq(1)
    call(sPhiK)
    A(f"ds_write2_b64 v{vA_phw}, {vr(vK,2)}, {vr(vR,2)} offset0:0 offset1:1")
    A("s_waitcnt lgkmcnt(0)")
    A("s_barrier")
    if not fine: stamp()
    for b in range(8):
        A(f"ds_read_b128 {vr(vK+4*b,4)}, v{vA_phi} offset:{1024*b}")
    A(f"ds_read_b64 {vr(vNon,2)}, v{vA_fl} offset:24")
    A(f"s_lshl_b32 s{sT}, s{sP}, 10")
    A(f"s_add_u32 s{sT}, s{sT}, s{sKVo}")
    A(f"s_lshl_b32 s{sNeed}, s{sP}, 5")
    A(f"s_add_u32 s{sNeed}, s{sNeed}, s{sCKo}")
    def kvblocks(b0, b1):
        for b in range(b0, b1):
            A(f"ds_read_b64_tr_b16 {vr(vB+4*b,2)}, v{vA_tr} offset:{4096*b}")
            A(f"ds_read_b64_tr_b16 {vr(vB+4*b+2,2)}, v{vA_tr} offset:{4096*b+32768}")
        for b in range(b0, b1):
            A(f"s_waitcnt lgkmcnt({2*(b1-1-b)})")
            A(f"v_mfma_f32_16x16x32_bf16 {vr(vOwn,4)}, {vr(vK+4*b,4)}, {vr(vB+4*b,4)}, {'0' if b==0 else vr(vOwn,4)}")
    if kvs:
        poll(4, 25 + kvs)
        kvblocks(0, kvs)
    poll(4, 33, sleep=False)
    stamp()
    kvblocks(kvs, 8)
    A(f"v_and_b32 v{vA_c}, 0x70, v{vA_lin}")
    A(f"s_lshl_b32 s{sGo}, s{sP}, 4")
    A(f"v_cmp_eq_u32 vcc, s{sGo}, v{vA_c}")
    A(f"v_lshl_add_u32 v{vA_c}, v{vA_c}, 1, v{vA_cs}")
    A(f"v_xor_b32 v{vNon+1}, v{vNon+1}, v{vNon}")
    A(f"v_cndmask_b32 v{vA_c}, v{vA_c}, v{vNH}, vcc")
    A("s_nop 1")
    A(f"buffer_store_dwordx4 {vr(vOwn,4)}, v{vA_lin}, {sr(SWS,4)}, s{sT} offen sc1")
    A(f"v_xor_b32 v{vT}, v{vOwn}, v{vOwn+1}")
    A(f"v_bitop3_b32 v{vT}, v{vT}, v{vOwn+2}, v{vOwn+3} bitop3:0x96")
    xred8(vT)
    A(f"v_xor_b32 v{vT}, v{vT}, v{vNon}")
    A("s_mov_b32 exec_lo, 0x01010101")
    A("s_mov_b32 exec_hi, 0x01010101")
    A(f"buffer_store_dword v{vT}, v{vA_cs}, {sr(SWS,4)}, s{sNeed} offen sc1")
    A("s_mov_b64 exec, -1")
    if not fine: stamp()
    def den(t):
        A(f"v_mfma_f32_16x16x16_bf16 {vr(vD[t],4)}, {vr(vPHQ[t],2)}, {vr(vZB,2)}, 0")
    def den2(t):
        round4(vD[t], vD[t])
        A(f"v_pk_add_f32 {vr(vD[t],2)}, {vr(vD[t],2)}, {vr(vEps,2)}")
        A(f"v_pk_add_f32 {vr(vD[t]+2,2)}, {vr(vD[t]+2,2)}, {vr(vEps,2)}")
        round4(vD[t], vD[t])
        for i in range(4): A(f"v_rcp_f32 v{vD[t]+i}, v{vD[t]+i}")
    vGa = vK
    def gload(fl):
        for p in range(8):
            if own:
                if p: A(f"buffer_load_dwordx4 {vr(vGa+4*p,4)}, v{vA_lin}, {sr(SWS,4)}, s{sGp+p-1} offen {fl}")
            else:
                A(f"buffer_load_dwordx4 {vr(vGa+4*p,4)}, v{vA_lin}, {sr(SWS,4)}, s{sKVo if p < 4 else sGo} offen offset:{(p%4)*1024} {fl}")
        A(f"buffer_load_dword v{vC}, v{vA_c}, {sr(SWS,4)}, s{sCKo} offen {fl}")
    zx = f"ds_read_b64 {vr(vZB,2)}, v{vA_z} offset:32"
    if qprio:
        A(f"s_cmp_lt_u32 s{sW}, 4")
        A("s_cbranch_scc1 L_np")
        A(f"s_setprio {qprio}")
        LB("L_np")
    A(f"s_add_u32 s{sNeed}, s{sW}, 34")
    A(f"s_mov_b32 s{sRot}, 0")
    LB("L_qa")
    A(f"ds_read2_b32 {vr(vT,2)}, v{vA_fl} offset0:1 offset1:4")
    A(f"s_sub_u32 s{sSpin}, s{sSpin}, 1")
    A("s_waitcnt lgkmcnt(0)")
    if eg:
        A(f"v_cmp_lt_i32 vcc, s{sRot}, v{vT+1}")
        A("s_cbranch_vccnz L_g1")
    A(f"v_cmp_le_i32 vcc, s{sNeed}, v{vT}")
    A("s_cbranch_vccnz L_qak")
    A(f"s_sleep {slp}")
    A("s_cbranch_scc0 L_qa")
    A(f"s_mov_b32 s{sSpin}, 0")
    if eg:
        A("s_branch L_qak")
        LB("L_g1")
        gload(gfl)
        A(f"s_mov_b32 s{sRot}, 1")
        A("s_branch L_qa")
    LB("L_qak")
    rdkq(0)
    call(sPhiQ)
    A(f"v_mov_b32 v{vPHQ[0]}, v{vR}")
    A(f"v_mov_b32 v{vPHQ[0]+1}, v{vR+1}")
    stamp()
    assert lT == 0
    if True:
        if pb:
            assert not eg and not dyn
            C("wait for the go-ahead; the first waves run tile b's feature map meanwhile if it has landed")
            A(f"s_add_u32 s{sNeed}, s{sW}, 42")
            A(f"s_cmp_ge_u32 s{sW}, {pb}")
            A(f"s_cselect_b32 s{sNeed}, 99, s{sNeed}")
            LB("L_w")
            A(f"ds_read2_b32 {vr(vT,2)}, v{vA_fl} offset0:1 offset1:4")
            A(f"s_sub_u32 s{sSpin}, s{sSpin}, 1")
            A("s_waitcnt lgkmcnt(0)")
            A(f"v_cmp_le_i32 vcc, 1, v{vT+1}")
            A("s_cbranch_vccnz L_wk")
            A(f"v_cmp_le_i32 vcc, s{sNeed}, v{vT}")
            A("s_cbranch_vccnz L_wb")
            A("s_cbranch_scc0 L_w")
            A(f"s_mov_b32 s{sSpin}, 0")
            A("s_branch L_wk")
            LB("L_wb")
            rdkq(1)
            call(sPhiQ)
            A(f"s_mov_b32 s{sRot}, 1")
            A(f"s_mov_b32 s{sNeed}, 99")
            A("s_branch L_w")
            LB("L_wk")
        else:
            A(f"s_cmp_lg_u32 s{sRot}, 0")
            A("s_cbranch_scc1 L_g2")
            poll(16, 1, sleep=False)
        gload(gfl)
        LB("L_g2")
        if fine: stamp()
        poll(8, 1, sleep=False, extra=zx)
        den(0)
        A("s_nop 7")
        den2(0)
        if pb:
            A(f"s_cmp_eq_u32 s{sRot}, 0")
            A("s_cbranch_scc1 L_nob")
            den(1)
            A("s_nop 7")
            den2(1)
            LB("L_nob")
        if dyn:
            A(f"ds_read_b32 v{vT}, v{vA_fl} offset:4")
            A(f"s_add_u32 s{sNeed}, s{sW}, 42")
            A(f"s_mov_b32 s{sRot}, 0")
            A("s_waitcnt lgkmcnt(0)")
            A(f"v_cmp_le_i32 vcc, s{sNeed}, v{vT}")
            A("s_cbranch_vccz L_nob")
            rdkq(1)
            call(sPhiQ)
            A(f"s_mov_b32 s{sRot}, 1")
            den(1)
            A("s_nop 7")
            den2(1)
            LB("L_nob")
        if fine: stamp()
        stamp()
    vS_ = vT
    LB("L_gsum")
    for p in range(1, 8):
        A(f"s_waitcnt vmcnt({8 - p if p < 7 else 0})")
        if p == 1:
            if fine: stamp()
        if p == 1:
            g0 = vOwn if own else vGa
            A(f"v_pk_add_f32 {vr(vS_,2)}, {vr(g0,2)}, {vr(vGa+4,2)}")
            A(f"v_pk_add_f32 {vr(vS_+2,2)}, {vr(g0+2,2)}, {vr(vGa+6,2)}")
            A(f"v_xor_b32 v{vC+2}, v{vGa+4}, v{vGa+5}")
            A(f"v_xor_b32 v{vC+1}, v{vGa+6}, v{vGa+7}")
            continue
        else:
            A(f"v_pk_add_f32 {vr(vS_,2)}, {vr(vS_,2)}, {vr(vGa+4*p,2)}")
            A(f"v_pk_add_f32 {vr(vS_+2,2)}, {vr(vS_+2,2)}, {vr(vGa+4*p+2,2)}")
        A(f"v_bitop3_b32 v{vC+2}, v{vC+2}, v{vGa+4*p}, v{vGa+4*p+1} bitop3:0x96")
        A(f"v_bitop3_b32 v{vC+1}, v{vC+1}, v{vGa+4*p+2}, v{vGa+4*p+3} bitop3:0x96")
    A(f"v_bitop3_b32 v{vC}, v{vC}, v{vC+1}, v{vC+2} bitop3:0x96")
    A(f"v_cvt_pk_bf16_f32 v{vT+12}, v{vS_}, v{vS_+1}")
    A(f"v_cvt_pk_bf16_f32 v{vT+13}, v{vS_+2}, v{vS_+3}")
    A(f"v_xor_b32_dpp v{vC}, v{vC}, v{vC} quad_perm:[1,0,3,2] row_mask:0xf bank_mask:0xf")
    A(f"ds_write_b64 v{vA_kvw}, {vr(vT+12,2)}")
    A(f"s_sub_u32 s{sSpin2}, s{sSpin2}, 1")
    A(f"v_xor_b32_dpp v{vC}, v{vC}, v{vC} quad_perm:[2,3,0,1] row_mask:0xf bank_mask:0xf")
    A("s_nop 1")
    A(f"v_xor_b32_dpp v{vC}, v{vC}, v{vC} row_half_mirror row_mask:0xf bank_mask:0xf")
    A(f"v_cmp_ne_u32 vcc, v{vC}, v{vNon+1}")
    A("s_cbranch_vccnz L_regather")
    LB("L_gok")
    if fine: stamp()
    A("s_mov_b64 exec, 1")
    A(f"ds_add_u32 v{vA_fl}, v{vOne}")
    A("s_mov_b64 exec, -1")
    poll(0, 8, sleep=False)
    stamp()
    for k in range(4):
        A(f"ds_read_b128 {vr(vKVB+4*k,4)}, v{vA_kvr+k}")
    vN = [vK, vX]
    def mf(t, dd): return f"v_mfma_f32_16x16x16_bf16 {vr(vN[t]+4*dd,4)}, {vr(vPHQ[t],2)}, {vr(vKVB+2*dd,2)}, 0"
    def rnd(t, dd, r): return f"v_cvt_pk_bf16_f32 v{vN[t]+4*dd+r}, 0, v{vN[t]+4*dd+r}"
    def mul(t, dd, r0): return f"v_pk_mul_f32 {vr(vN[t]+4*dd+r0,2)}, {vr(vN[t]+4*dd+r0,2)}, {vr(vD[t]+r0,2)}"
    def emit_rows(t, r0):
        for r in (r0, r0+1):
            o = vT + 4*r
            for j in range(4):
                A(f"v_cvt_pk_bf16_f32 v{o+j}, v{vN[t]+8*j+r}, v{vN[t]+8*j+4+r}")
            A(f"buffer_store_dwordx4 {vr(o,4)}, v{vA_o}, {sr(SO,4)}, s{sBase+t} offen offset:{256*r} {st if t == 0 else st2}")
    def second_half(t):
        for dd in range(8):
            A(rnd(t, dd, 2)); A(rnd(t, dd, 3))
        for dd in range(8): A(mul(t, dd, 2))
        emit_rows(t, 2)
    if il:
        A("s_waitcnt lgkmcnt(3)"); A(mf(0,0)); A(mf(0,1))
        A("s_waitcnt lgkmcnt(2)"); A(mf(0,2)); A(mf(0,3))
        A("s_waitcnt lgkmcnt(1)"); A(mf(0,4)); A(mf(0,5))
        A("s_waitcnt lgkmcnt(0)")
        A(rnd(0,0,0)); A(rnd(0,0,1)); A(mf(0,6))
        A(rnd(0,1,0)); A(rnd(0,1,1)); A(mf(0,7))
        for dd in range(2, 6): A(rnd(0,dd,0)); A(rnd(0,dd,1))
        A(rnd(0,6,0)); A(rnd(0,6,1)); A(rnd(0,7,0)); A(rnd(0,7,1))
    else:
        for k in range(4):
            A(f"s_waitcnt lgkmcnt({3-k})")
            A(mf(0,2*k)); A(mf(0,2*k+1))
        A("s_nop 0")
        for dd in range(8): A(rnd(0,dd,0)); A(rnd(0,dd,1))
    for dd in range(8): A(mul(0, dd, 0))
    emit_rows(0, 0)
    second_half(0)
    if dyn or pb:
        A(f"s_cmp_lg_u32 s{sRot}, 0")
        A("s_cbranch_scc1 L_j2")
    pollw(42, sleep=False)
    rdkq(1)
    call(sPhiQ)
    A("s_nop 0")
    den(1)
    if il:
        d = vD[1]
        for dd in range(4): A(mf(1,dd))
        A("s_nop 3")
        for i in range(4): A(f"v_cvt_pk_bf16_f32 v{d+i}, 0, v{d+i}")
        A(mf(1,4))
        A(f"v_pk_add_f32 {vr(d,2)}, {vr(d,2)}, {vr(vEps,2)}")
        A(f"v_pk_add_f32 {vr(d+2,2)}, {vr(d+2,2)}, {vr(vEps,2)}")
        A(f"v_cvt_pk_bf16_f32 v{d}, 0, v{d}")
        A(mf(1,5))
        for i in range(1, 4): A(f"v_cvt_pk_bf16_f32 v{d+i}, 0, v{d+i}")
        A(mf(1,6))
        A(f"v_rcp_f32 v{d}, v{d}"); A(f"v_rcp_f32 v{d+1}, v{d+1}")
        A(mf(1,7))
        A(f"v_rcp_f32 v{d+2}, v{d+2}"); A(f"v_rcp_f32 v{d+3}, v{d+3}")
    else:
        for dd in range(8): A(mf(1,dd))
        den2(1)
    if dyn or pb:
        A("s_branch L_j3")
        LB("L_j2")
        for dd in range(8): A(mf(1,dd))
        A("s_nop 0")
        LB("L_j3")
    for dd in range(8): A(rnd(1,dd,0)); A(rnd(1,dd,1))
    for dd in range(8): A(mul(1, dd, 0))
    emit_rows(1, 0)
    second_half(1)
    LB("L_fin")
    if stamps:
        stamp()
        A("s_waitcnt vmcnt(0)")
        stamp(True)
        A("s_waitcnt lgkmcnt(0)")
        assert nst[0] <= 11, nst[0]
        for i in range(12):
            A(f"v_mov_b32 v{vK+i}, s{sSt+2*i}" if i < nst[0] else f"v_mov_b32 v{vK+i}, s{sSpin2}")
        A(f"s_mul_i32 s{sT}, s2, {NW}")
        A(f"s_add_u32 s{sT}, s{sT}, s{sWr}")
        A(f"s_mul_i32 s{sT}, s{sT}, 48")
        A(f"s_add_u32 s{sT}, s{sT}, {WS_STAMP}")
        A("s_mov_b64 exec, 1")
        for i in range(3):
            A(f"buffer_store_dwordx4 {vr(vK+4*i,4)}, off, {sr(SWS,4)}, s{sT} offset:{16*i}")
    LB("L_end")
    A("s_endpgm")

    def phi(isq):
        base = vX
        for s in range(4):
            A(f"s_waitcnt lgkmcnt({3-s})")
            b = base + 4*s
            for i in range(4):
                A(f"v_lshlrev_b32 v{vT+2*i}, 16, v{b+i}")
                A(f"v_and_b32 v{vT+2*i+1}, 0xffff0000, v{b+i}")
            for i in range(4):
                A(f"v_pk_mul_f32 {vr(vT+2*i,2)}, {vr(vT+2*i,2)}, {sr(sScale,2)}")
            for i in range(4):
                A(f"v_cvt_pk_bf16_f32 v{b+i}, v{vT+2*i}, v{vT+2*i+1}")
            if s > 0:
                x = vr(base+4*(s-1), 4); o = vr(vOM+4*(s-1), 4)
                c0 = "0" if s == 1 else vr(vG, 4); c1 = "0" if s == 1 else vr(vP, 4)
                A(f"v_mfma_f32_16x16x32_bf16 {vr(vG,4)}, {x}, {x}, {c0}")
                A(f"v_mfma_f32_16x16x32_bf16 {vr(vP,4)}, {o if isq else x}, {x if isq else o}, {c1}")
        x = vr(base+12, 4); o = vr(vOM+12, 4)
        A(f"v_mfma_f32_16x16x32_bf16 {vr(vG,4)}, {x}, {x}, {vr(vG,4)}")
        A(f"v_mfma_f32_16x16x32_bf16 {vr(vP,4)}, {o if isq else x}, {x if isq else o}, {vr(vP,4)}")
        A("s_nop 6")
        A(f"v_cndmask_b32 v{vT}, 0, v{vG}, {sr(sM[0],2)}")
        for r in range(1, 4):
            A(f"v_cndmask_b32 v{vT}, v{vT}, v{vG+r}, {sr(sM[r],2)}")
        A(f"v_cvt_pk_bf16_f32 v{vXA}, v{vT}, v{vXA+1}")
        round4(vT+4, vP)
        A("s_nop 1")
        a, b = (vr(vNH,2), vr(vXA,2)) if isq else (vr(vXA,2), vr(vNH,2))
        A(f"v_mfma_f32_16x16x16_bf16 {vr(vP,4)}, {a}, {b}, {vr(vT+4,4)}")
        A("s_nop 7")
        round4(vT+8, vP)
        A(f"v_pk_mul_f32 {vr(vT+8,2)}, {vr(vT+8,2)}, {sr(sL2E,2)}")
        A(f"v_pk_mul_f32 {vr(vT+10,2)}, {vr(vT+10,2)}, {sr(sL2E,2)}")
        for i in range(4):
            A(f"v_exp_f32 v{vT+8+i}, v{vT+8+i}")
        A("s_nop 0")
        round4(vT+12, vT+8)
        A(f"v_pk_fma_f32 {vr(vT+12,2)}, {vr(vT+12,2)}, {sr(sQuart,2)}, {vr(vEps,2)}")
        A(f"v_pk_fma_f32 {vr(vT+14,2)}, {vr(vT+14,2)}, {sr(sQuart,2)}, {vr(vEps,2)}")
        A(f"v_cvt_pk_bf16_f32 v{vR}, v{vT+12}, v{vT+13}")
        A(f"v_cvt_pk_bf16_f32 v{vR+1}, v{vT+14}, v{vT+15}")
        A(f"s_setpc_b64 {sr(sRet,2)}")
    LB("L_phik")
    phi(False)
    LB("L_phiq")
    phi(True)

    LB("L_regather")
    A("s_cbranch_scc1 L_gok")
    gload('sc1')
    A("s_branch L_gsum")

    LB("L_helper")
    if hprio: A(f"s_setprio {hprio}")
    A(f"s_memrealtime {sr(sClk,2)}")
    A(f"v_mov_b32 v{vT+8}, 0")
    A(f"v_mov_b32 v{vT+9}, 0")
    A(f"ds_write_b32 v{vA_fl}, v{vT+8}")
    A(f"ds_write_b64 v{vA_fl}, {vr(vT+8,2)} offset:8")
    A(f"ds_write_b32 v{vA_fl}, v{vT+8} offset:16")
    A(f"v_mov_b32 v{vT+12}, 0x3f803f80")
    for i in range(1, 4): A(f"v_mov_b32 v{vT+12+i}, v{vT+12}")
    A(f"v_and_b32 v{vX+2}, 7, v{vc}")
    A(f"v_lshl_add_u32 v{vX}, v{vX+2}, 7, v{vT+3}")
    A(f"v_lshlrev_b32 v{vX+3}, 2, v{vg}")
    A(f"v_lshl_add_u32 v{vX+1}, v{vX+2}, 7, v{vX+3}")
    srdc(SDB, 256)
    A("s_waitcnt lgkmcnt(0)")
    A("s_barrier")
    C("the first few workgroups offer a launch nonce; the first offer to land wins")
    A(f"s_cmp_ge_u32 s2, {nroot}")
    A("s_cbranch_scc1 L_noroot")
    A(f"s_or_b32 s{sClk}, s{sClk}, 0x80000000")
    A(f"v_mov_b32 v{vT+8}, s{sClk}")
    A("s_mov_b64 exec, 1")
    A(f"buffer_atomic_cmpswap {vr(vT+8,2)}, off, {sr(SDB,4)}, 0 sc1")
    A("s_mov_b64 exec, -1")
    LB("L_noroot")
    A(f"s_add_u32 s{sGo}, s{sKVo}, {WS_ZS}")
    A(f"s_lshl_b32 s{sT}, s{sP}, 7")
    A(f"s_add_u32 s{sM0}, s{sT}, s{sGo}")
    A(f"s_mov_b32 s{sK1}, 0x9E3779B1")
    poll(4, nat)
    LB("L_non")
    A(f"buffer_load_dword v{vNon}, off, {sr(SDB,4)}, 0 sc1")
    A(f"s_sub_u32 s{sSpin2}, s{sSpin2}, 1")
    A("s_waitcnt vmcnt(0)")
    A(f"v_cmp_ne_u32 vcc, 0, v{vNon}")
    A("s_cbranch_vccnz L_nonk")
    A("s_cbranch_scc0 L_non")
    A(f"s_mov_b32 s{sSpin2}, 0")
    LB("L_nonk")
    A(f"v_mov_b32 v{vN0}, v{vNon}")
    A(f"v_readfirstlane_b32 s{sG1}, v{vNon}")
    A(f"v_add_u32 v{vX+4}, v{vX+2}, v{vNon}")
    A(f"v_mul_lo_u32 v{vX+4}, v{vX+4}, s{sK1}")
    A(f"v_lshrrev_b32 v{vX+5}, 15, v{vX+4}")
    A(f"v_xor_b32 v{vX+4}, v{vX+4}, v{vX+5}")
    A(f"v_mul_lo_u32 v{vX+4}, v{vX+4}, s{sK1}")
    A(f"v_lshrrev_b32 v{vX+5}, 13, v{vX+4}")
    A(f"v_xor_b32 v{vX+4}, v{vX+4}, v{vX+5}")
    A(f"v_mov_b32 v{vNon+1}, v{vX+4}")
    A(f"v_readlane_b32 s{sT}, v{vX+4}, s{sP}")
    xred8(vNon+1)
    A(f"v_mov_b32 v{vNon}, s{sT}")
    A(f"ds_write_b64 v{vA_fl}, {vr(vNon,2)} offset:24")
    xstamp(1)
    A("s_waitcnt lgkmcnt(0)")
    A("s_barrier")
    for b in range(8):
        A(f"ds_read_b128 {vr(vK+4*b,4)}, v{vA_phi} offset:{1024*b}")
    for b in range(8):
        A(f"s_waitcnt lgkmcnt({7-b})")
        A(f"v_mfma_f32_16x16x32_bf16 {vr(vP,4)}, {vr(vK+4*b,4)}, {vr(vT+12,4)}, {'0' if b==0 else vr(vP,4)}")
    A("s_mov_b32 exec_lo, 0x00010001")
    A("s_mov_b32 exec_hi, 0x00010001")
    A("s_nop 5")
    A(f"buffer_store_dwordx4 {vr(vP,4)}, v{vT+3}, {sr(SWS,4)}, s{sM0} offen sc1")
    A(f"v_bitop3_b32 v{vT}, v{vP}, v{vP+1}, v{vP+2} bitop3:0x96")
    A(f"v_bitop3_b32 v{vT}, v{vT}, v{vP+3}, v{vNon} bitop3:0x96")
    A(f"buffer_store_dword v{vT}, v{vX+3}, {sr(SWS,4)}, s{sM0} offen offset:64 sc1")
    A("s_mov_b64 exec, -1")
    xstamp(2)
    vZg = vK
    def zload():
        A(f"buffer_load_dwordx4 {vr(vZg,4)}, v{vX}, {sr(SWS,4)}, s{sGo} offen sc1")
        A(f"buffer_load_dword v{vZg+10}, v{vX+1}, {sr(SWS,4)}, s{sGo} offen offset:64 sc1")
    sTg, sTP = 40, 48
    A(f"s_add_u32 s{sT}, s{sKVo}, {WS_TAG}")
    A(f"s_add_u32 s{sTP}, s{SWS}, s{sT}")
    A(f"s_addc_u32 s{sTP+1}, s{SWS+1}, 0")
    A(f"s_lshr_b32 s{sG2}, 0x80, s{sP}")
    A(f"s_mov_b32 s{sNeed}, 0")
    A(f"s_lshl_b32 s{sK1}, s{sP}, 2")
    A(f"s_add_u32 s{sT}, s{sT}, s{sK1}")
    poll(4, tat, sleep=False)
    A("s_mov_b64 exec, 1")
    A(f"buffer_store_dword v{vN0}, off, {sr(SWS,4)}, s{sT} sc1")
    A("s_mov_b64 exec, -1")
    LB("L_t")
    A(f"s_load_dwordx8 {sr(sTg,8)}, {sr(sTP,2)}, 0 glc")
    A(f"ds_read_b32 v{vT}, v{vA_fl} offset:4")
    A(f"s_mov_b32 s{sT}, 0")
    A("s_waitcnt lgkmcnt(0)")
    A(f"v_cmp_le_i32 vcc, {zat}, v{vT}")
    A(f"s_cmp_lg_u32 s{sNeed}, 0")
    A("s_cbranch_scc1 L_t1")
    A("s_cbranch_vccz L_t1")
    zload()
    A(f"s_mov_b32 s{sNeed}, 1")
    LB("L_t1")
    for i in range(8):
        A(f"s_cmp_eq_u32 s{sTg+i}, s{sG1}")
        A(f"s_addc_u32 s{sT}, s{sT}, s{sT}")
    A(f"s_or_b32 s{sT}, s{sT}, s{sG2}")
    A(f"s_cmp_eq_u32 s{sT}, 0xff")
    A("s_cbranch_scc1 L_t2")
    if tsl: A(f"s_sleep {tsl}")
    A(f"s_sub_u32 s{sSpin2}, s{sSpin2}, 1")
    A("s_cbranch_scc0 L_t")
    A(f"s_mov_b32 s{sSpin2}, 0")
    LB("L_t2")
    if gmin: poll(4, gmin, sleep=False)
    A(f"ds_write_b32 v{vA_fl}, v{vOne} offset:16")
    xstamp(3)
    A(f"s_cmp_lg_u32 s{sNeed}, 0")
    A("s_cbranch_scc1 L_t3")
    poll(4, zat)
    zload()
    LB("L_t3")
    A("s_waitcnt vmcnt(0)")
    LB("L_zchk")
    A(f"v_bitop3_b32 v{vZg+10}, v{vZg+10}, v{vZg}, v{vZg+1} bitop3:0x96")
    A(f"v_bitop3_b32 v{vZg+10}, v{vZg+10}, v{vZg+2}, v{vZg+3} bitop3:0x96")
    A(f"v_cmp_ne_u32 vcc, v{vZg+10}, v{vX+4}")
    A("s_cbranch_vccnz L_zbad")
    LB("L_zok")
    for i in range(4):
        A(f"v_add_f32_dpp v{vZg+4+i}, v{vZg+i}, v{vZg+i} quad_perm:[1,0,3,2] row_mask:0xf bank_mask:0xf")
    for i in range(4):
        A(f"v_add_f32_dpp v{vZg+i}, v{vZg+4+i}, v{vZg+4+i} quad_perm:[2,3,0,1] row_mask:0xf bank_mask:0xf")
    for i in range(4):
        A(f"v_add_f32_dpp v{vZg+4+i}, v{vZg+i}, v{vZg+i} row_half_mirror row_mask:0xf bank_mask:0xf")
    A(f"v_cvt_pk_bf16_f32 v{vZg+8}, v{vZg+4}, v{vZg+5}")
    A(f"v_cvt_pk_bf16_f32 v{vZg+9}, v{vZg+6}, v{vZg+7}")
    A(f"ds_write_b64 v{vA_z}, {vr(vZg+8,2)} offset:32")
    A(f"ds_write_b32 v{vA_fl}, v{vOne} offset:8")
    xstamp(5)
    xstamp(4); xstamp(6)
    if stamps:
        xstamp(7); xstamp(8)
        A("s_branch L_fin")
    else:
        A("s_endpgm")
    LB("L_zbad")
    A(f"s_sub_u32 s{sSpin2}, s{sSpin2}, 1")
    A("s_cbranch_scc1 L_zok")
    zload()
    A("s_waitcnt vmcnt(0)")
    A("s_branch L_zchk")
    LB("L_codeend")
    return HEADER.format(lds=LDS_TOTAL) + "\n".join(x for x in L if x) + FOOTER.format(vgpr=NV, sgpr=98 if stamps else 72, acc=NV)

if __name__ == '__main__':
    out = sys.argv[1]
    kw = {}
    for a in sys.argv[2:]:
        k, v = a.split('=')
        kw[k] = v if k in ('ld', 'st', 'gfl', 'st2') else (tuple(map(int, v.split(','))) if k == 'rot' else int(v))
    open(out, 'w').write(gen(**kw))
```

```python
import sys, struct

def f2u(x): return struct.unpack('<I', struct.pack('<f', x))[0]

HEADER = """; Linear (random-feature) attention, B=1 H=32 S=2048 D=128 M=16, bf16, one launch.
;
; Wave 0 (loader) streams omega, K, V, Q into LDS by DMA with a bounded window and publishes a landed-tile count.
; Hand-off between workgroups: write-through stores of the partial sums plus check words; a reader accepts what it
;
; @launch grid=(256,1,1) block=(640,1,1) lds={lds}
.amdgcn_target "amdgcn-amd-amdhsa--gfx950"
.text
.globl standalone__linear_kernel_rfa__prompt_kernel
.p2align 8
.type standalone__linear_kernel_rfa__prompt_kernel,@function
standalone__linear_kernel_rfa__prompt_kernel:
"""
FOOTER = """
.section .rodata,"a"
.p2align 6
.amdhsa_kernel standalone__linear_kernel_rfa__prompt_kernel
  .amdhsa_next_free_vgpr {vgpr}
  .amdhsa_next_free_sgpr {sgpr}
  .amdhsa_accum_offset {acc}
  .amdhsa_group_segment_fixed_size 0
  .amdhsa_kernarg_size 56
  .amdhsa_user_sgpr_count 2
  .amdhsa_user_sgpr_kernarg_segment_ptr 1
  .amdhsa_system_sgpr_workgroup_id_x 1
  .amdhsa_float_denorm_mode_32 3
  .amdhsa_float_denorm_mode_16_64 3
.end_amdhsa_kernel
"""

LDS_V, LDS_KQ, LDS_PHI, LDS_KVT, LDS_FLAG, LDS_OM = 0, 65536, 131072, 139264, 143360, 143616
LDS_CHK = LDS_OM
LDS_TOTAL = LDS_OM + 4096
HSTRIDE = 69632
WS_CHK, WS_ZS, WS_TAG = 65536, 67584, 68608
WS_BYTES = 4 << 20
WS_STAMP = 3 << 20
NW = 10

def gen(ld='nt', st='nt', gfl='', stamps=False, W=28, W2=36, WG=5, spin=200000, lprio=3, hprio=2,
        slp=1, pre=5, rot=(4,15), hmap=0, nat=10, zat=33, nroot=8, pf=1, fine=0, mi=4, dena=2, gT=0, gq=0, gprio=0, lT=0, qprio=0, lb3=0, own=1, dyn=0, st2=None, tsl=2, gmin=0, eg=0, tat=34, lgo=0, SW=8, kvs=5, il=1, pb=4, sb=1, ldk=None, ldv=None, ldq=None):
    L = []
    def A(s): L.append("    " + s)
    def C(s): L.append("    ; " + s)
    def LB(s): L.append(s + ":")
    def vr(a, n): return f"v[{a}:{a+n-1}]"
    def sr(a, n): return f"s[{a}:{a+n-1}]"
    G, G2 = W // 4, W2 // 4
    if st2 is None: st2 = st
    ldk = ld if ldk is None else ldk; ldv = ld if ldv is None else ldv; ldq = ld if ldq is None else ldq
    sep = not (ldk == ldv == ldq)
    SC, SOM, SO, SWS, SDB = 4, 8, 12, 16, 20
    sPQ, sPV = 24, 26
    sBase, sBase2, sW, sH, sP, sWr = 28, 29, 30, 31, 32, 33
    sScale, sL2E, sQuart = 34, 36, 38
    sM = [40, 42, 44, 46]
    sHi = 48
    sKVo, sCKo, sGo, sT, sSpin, sM0, sSpin2, sNeed, sRot = 49, 50, 51, 52, 53, 54, 55, 56, 57
    sRet = 58
    sPhiK, sPhiQ = 60, 62
    sOff, sEnd, sLds, sPr, sPh = 34, 35, 36, 37, 38
    sClk = 34
    sO = 40
    sG1, sG2, sK1 = 36, 37, 38
    sGp = 64
    sSt = 72
    vA_cs, vA_fl, vOne, vA_lin, vA_tr, vA_phi, vA_kvw = 0, 1, 4, 5, 6, 7, 8
    vA_z, vA_kvr, vA_o, vA_phw = 9, 10, 14, 15
    vPHQ = [2, 16]
    vR = 16
    vEps, vNH, vXA = 18, 20, 22
    vOM = 24
    vK = 40
    vX = 72
    vC, vOwn, vNon, vN0 = 88, 96, 100, 102
    vT = 104
    vP, vG = 120, 124
    vB = 128
    vKVB, vZB, vD = 128, 144, [148, 152]
    vA_g, vA_c = 156, 157
    vA_kr = 160
    NV = 168
    nst = [0]
    lite = (stamps == 2)
    def stamp(force=False):
        if lite and not force:
            nst[0] += 1
            return
        if stamps:
            A(f"s_memrealtime {sr(sSt + 2*nst[0], 2)}")
            nst[0] += 1
    def stamp_again(k):
        for j in range(k): A(f"s_memrealtime {sr(sSt + 2*(nst[0]-k+j), 2)}")
    def xstamp(i):
        if stamps and not lite: A(f"s_memrealtime {sr(sSt + 2*i, 2)}")
    def srdc(d, n):
        A(f"s_mov_b32 s{d+2}, {n}"); A(f"s_mov_b32 s{d+3}, 0x20000")

    stamp(True)
    A(f"s_load_dwordx2 {sr(SC,2)}, s[0:1], 8   ; k")
    A(f"s_load_dwordx2 {sr(SOM,2)}, s[0:1], 24  ; omega")
    A("s_cmp_ge_u32 s2, 256")
    A("s_cbranch_scc1 L_end")
    A(f"v_readfirstlane_b32 s{sWr}, v0")
    vc, vg = vT + 1, vT + 2
    A(f"v_and_b32 v{vc}, 15, v0")
    A(f"v_bfe_u32 v{vg}, v0, 4, 2")
    if hmap == 0:
        A(f"s_and_b32 s{sH}, s2, 31")
        A(f"s_lshr_b32 s{sP}, s2, 5")
    else:
        A(f"s_lshr_b32 s{sH}, s2, 3")
        A(f"s_and_b32 s{sP}, s2, 7")
    A(f"v_xor_b32 v{vT+4}, v{vc}, v{vg}")
    A(f"v_lshlrev_b32 v{vT+4}, 4, v{vT+4}")
    A(f"s_lshl_b32 s{sBase}, s{sH}, 19")
    A(f"s_lshl_b32 s{sT}, s{sP}, 16")
    A(f"s_add_u32 s{sBase}, s{sBase}, s{sT}")
    if len(rot) == 2:
        A(f"s_bfe_u32 s{sRot}, s2, {rot[0] | (rot[1].bit_length() << 16):#x}")
    else:
        A(f"s_lshr_b32 s{sRot}, s2, {rot[0]}")
        A(f"s_mul_i32 s{sRot}, s{sRot}, {rot[1]}")
        A(f"s_and_b32 s{sT}, s2, 7")
        A(f"s_mul_i32 s{sT}, s{sT}, {rot[2]}")
        A(f"s_add_u32 s{sRot}, s{sRot}, s{sT}")
        A(f"s_and_b32 s{sRot}, s{sRot}, 15")
    A(f"s_lshl_b32 s{sRot}, s{sRot}, 12")
    A(f"s_lshr_b32 s{sWr}, s{sWr}, 6")
    A("s_cbranch_scc1 L_notloader")

    C("loader: streams omega, K, V, Q into LDS by DMA and publishes a progress count")
    C("tile j (16 rows, 4 KiB) of this workgroup's block is read from tile (j + rot) & 15; 16-byte chunks are")
    C("xor-swizzled inside each row so that the later LDS reads are free of bank conflicts")
    vA = 40; vAq = 44; vAv = 48; vS = 52; vAo = 54
    if lprio: A(f"s_setprio {lprio}")
    A(f"v_lshl_add_u32 v{vA}, v{vg}, 8, v{vT+4}")
    for i in range(1, 4):
        A(f"v_xor_b32 v{vA+i}, {64*i}, v{vA}")
    srdc(SC, 1 << 24)
    A(f"s_mov_b32 m0, {LDS_KQ}")
    A(f"s_add_u32 s{sT}, s{sBase}, s{sRot}")
    A("s_waitcnt lgkmcnt(0)")
    for i in range(4):
        A(f"buffer_load_dwordx4 v{vA+i}, {sr(SC,4)}, s{sT} offen offset:{i*1024} {ldk} lds")
    A(f"s_load_dwordx2 {sr(sPQ,2)}, s[0:1], 0")
    A(f"s_load_dwordx2 {sr(sPV,2)}, s[0:1], 16")
    if stamps: A(f"s_load_dwordx2 {sr(SWS,2)}, s[0:1], 48")
    srdc(SOM, 4096)
    A(f"v_lshlrev_b32 v{vT+3}, 4, v{vg}")
    A(f"v_lshl_add_u32 v{vAo}, v{vc}, 8, v{vT+3}")
    for s in range(4):
        A(f"s_mov_b32 m0, {LDS_OM + s*1024 - s*64}")
        A(["s_nop 0", f"s_mov_b32 s{sOff}, 4096", f"s_mov_b32 s{sEnd}, {pre*4096}", f"s_mov_b32 s{sLds}, {LDS_KQ}"][s])
        A(f"buffer_load_dwordx4 v{vAo}, {sr(SOM,4)}, 0 offen offset:{64*s} lds")
    A(f"s_mov_b32 s{sPr}, {2 - G}")
    A(f"s_mov_b32 s{sPh}, 0")
    A(f"v_mov_b32 v{vS}, 0")
    A(f"v_mov_b32 v{vA_fl}, {LDS_FLAG}")
    for i in range(4): A(f"v_mov_b32 v{vAq+i}, v{vA+i}")
    A(f"v_lshlrev_b32 v{vT+5}, 1, v{vg}")
    A(f"v_xor_b32 v{vT+5}, v{vT+5}, v{vc}")
    A(f"v_lshlrev_b32 v{vT+5}, 4, v{vT+5}")
    A(f"v_lshl_add_u32 v{vAv}, v{vg}, 8, v{vT+5}")
    def prep():
        A(f"s_add_u32 m0, s{sLds}, s{sOff}")
        A(f"s_add_u32 s{sT}, s{sRot}, s{sOff}")
        A(f"s_and_b32 s{sT}, s{sT}, 0xffff")
        A(f"s_add_u32 s{sT}, s{sBase}, s{sT}")
    def loads(fl):
        for i in range(4):
            A(f"buffer_load_dwordx4 v{vA+i}, {sr(SC,4)}, s{sT} offen offset:{i*1024} {fl} lds")
    def body(w, end, label, clamp=False, fl=None):
        A(f"s_waitcnt vmcnt({w})")
        A(f"ds_write_b32 v{vA_fl}, v{vS} offset:4")
        loads(ldq if fl is None else fl)
        A(f"s_add_u32 s{sOff}, s{sOff}, 4096")
        prep()
        A(f"s_add_u32 s{sPr}, s{sPr}, 1")
        if clamp:
            A(f"s_max_i32 s{sPh}, s{sPr}, 33")
            A(f"v_mov_b32 v{vS}, s{sPh}")
        else:
            A(f"v_mov_b32 v{vS}, s{sPr}")
        A(f"s_cmp_lg_u32 s{sOff}, {end}")
        A(f"s_cbranch_scc1 {label}")
    LB("L_lp0")
    prep()
    LB("L_lp")
    body(W, f"s{sEnd}", "L_lp", fl=ldk)
    A(f"s_add_u32 s{sPh}, s{sPh}, 1")
    A(f"s_cmp_eq_u32 s{sPh}, 1")
    A("s_cbranch_scc0 L_ph2")
    A("s_waitcnt lgkmcnt(0)")
    A("s_barrier")
    xstamp(1)
    A(f"s_mov_b32 s{sEnd}, 65536")
    A("s_branch L_lp")
    LB("L_ph2")
    A(f"s_cmp_eq_u32 s{sPh}, 2")
    A("s_cbranch_scc0 L_ph3")
    A(f"s_mov_b64 {sr(SC,2)}, {sr(sPV,2)}")
    A(f"s_mov_b32 s{sOff}, 0")
    A(f"s_mov_b32 s{sLds}, {LDS_V}")
    A(f"v_mov_b32 v{vA}, v{vAv}")
    A(f"v_xor_b32 v{vA+1}, 128, v{vAv}")
    A(f"v_mov_b32 v{vA+2}, v{vAv}")
    A(f"v_xor_b32 v{vA+3}, 128, v{vAv}")
    if sep:
        prep()
        LB("L_lv")
        body(W, f"s{sEnd}", "L_lv", fl=ldv)
        A(f"s_mov_b32 s{sPh}, 3")
    else:
        A("s_branch L_lp0")
    LB("L_ph3")
    A(f"s_cmp_eq_u32 s{sPh}, 3")
    A("s_cbranch_scc0 L_ph4")
    A(f"s_mov_b64 {sr(SC,2)}, {sr(sPQ,2)}")
    A(f"s_mov_b32 s{sOff}, 0")
    A(f"s_mov_b32 s{sEnd}, {(G+1)*4096}")
    A(f"s_mov_b32 s{sLds}, {LDS_KQ}")
    for i in range(4): A(f"v_mov_b32 v{vA+i}, v{vAq+i}")
    xstamp(2)
    A("s_barrier")
    xstamp(3)
    if sep:
        prep()
        LB("L_lq1")
        body(W, f"s{sEnd}", "L_lq1", fl=ldq)
    else:
        A("s_branch L_lp0")
    LB("L_ph4")
    assert G < 14
    A(f"s_add_i32 s{sPr}, s{sPr}, {G - G2}")
    A(f"s_max_i32 s{sPh}, s{sPr}, 33")
    A(f"v_mov_b32 v{vS}, s{sPh}")
    LB("L_lq")
    body(W2, 65536 - gq*4096, "L_lq", G2 > G + 1)
    if lgo:
        A(f"v_mov_b32 v{vS+3}, 1")
        A(f"ds_write_b32 v{vA_fl}, v{vS+3} offset:16")
    if gq:
        LB("L_lr")
        body(W2, 65536, "L_lr")
    xstamp(4)
    if lb3:
        assert lT == 0
        A("s_barrier")
    for k in range(min(G2, 15), -1, -1):
        A(f"v_mov_b32 v{vS+(k&1)}, {49 - k}")
        A(f"s_waitcnt vmcnt({4*k})")
        A(f"ds_write_b32 v{vA_fl}, v{vS+(k&1)} offset:4")
    if stamps:
        for i in range(5, 9): xstamp(i)
        srdc(SWS, WS_BYTES)
        A(f"s_mov_b32 s{sSpin2}, {spin}")
        A("s_branch L_fin")
    else:
        A("s_endpgm")

    LB("L_notloader")
    A(f"s_load_dwordx2 {sr(SO,2)}, s[0:1], 32")
    A(f"s_load_dwordx2 {sr(SDB,2)}, s[0:1], 40")
    A(f"s_load_dwordx2 {sr(SWS,2)}, s[0:1], 48")
    A(f"v_mov_b32 v{vA_fl}, {LDS_FLAG}")
    A(f"v_lshlrev_b32 v{vT+3}, 4, v{vg}")
    A(f"v_and_b32 v{vA_lin}, 63, v0")
    A(f"v_lshlrev_b32 v{vA_lin}, 4, v{vA_lin}")
    A(f"s_mul_i32 s{sKVo}, s{sH}, {HSTRIDE}")
    A(f"v_add_u32 v{vA_phi}, {LDS_PHI}, v{vA_lin}")
    A(f"s_mov_b32 s{sSpin}, {spin*16}")
    A(f"s_mov_b32 s{sSpin2}, {spin}")
    A(f"v_lshl_add_u32 v{vA_z}, v{vg}, 3, v{vA_fl}")
    A(f"v_mov_b32 v{vOne}, 1")
    srdc(SWS, WS_BYTES)
    A(f"s_cmp_eq_u32 s{sWr}, 1")
    A("s_cbranch_scc1 L_helper")

    A(f"s_getpc_b64 {sr(sPhiK,2)}")
    LB("L_pc")
    A(f"s_add_u32 s{sPhiQ}, s{sPhiK}, L_phiq-L_pc")
    A(f"s_addc_u32 s{sPhiQ+1}, s{sPhiK+1}, 0")
    if pf:
        C("pull the rest of the code into the L2 while the first tiles are in flight")
        A(f"v_lshlrev_b32 v{vT+5}, 3, v{vA_lin}")
        A(f"s_cmp_lg_u32 s{sWr}, 9")
        A("s_cbranch_scc1 L_nopf")
        A(f"v_min_u32 v{vT+5}, L_codeend-L_pc-4, v{vT+5}")
        A(f"global_load_dword v164, v{vT+5}, {sr(sPhiK,2)}")
        LB("L_nopf")
    A(f"s_add_u32 s{sPhiK}, s{sPhiK}, L_phik-L_pc")
    A(f"s_addc_u32 s{sPhiK+1}, s{sPhiK+1}, 0")
    A(f"s_sub_u32 s{sW}, s{sWr}, 2")
    A(f"s_lshl_b32 s{sM0}, s{sW}, 12")
    A(f"s_add_u32 s{sT}, s{sM0}, s{sRot}")
    A(f"s_and_b32 s{sT}, s{sT}, 0xffff")
    A(f"s_xor_b32 s{sBase2}, s{sT}, 0x8000")
    A(f"s_add_u32 s{sBase2}, s{sBase}, s{sBase2}")
    A(f"s_add_u32 s{sBase}, s{sBase}, s{sT}")
    A(f"s_add_u32 s{sT}, s{sM0}, {LDS_KQ}")
    A(f"s_lshl_b32 s{sM0}, s{sW}, 13")
    A(f"v_lshl_add_u32 v{vT+4}, v{vc}, 8, v{vT+4}")
    A(f"v_add_u32 v{vA_kr}, s{sT}, v{vT+4}")
    for i in range(1, 4):
        A(f"v_xor_b32 v{vA_kr+i}, {64*i}, v{vA_kr}")
    A(f"s_lshl_b32 s{sT}, s{sW}, 8")
    A(f"s_add_u32 s{sCKo}, s{sKVo}, s{sT}")
    A(f"s_add_u32 s{sCKo}, s{sCKo}, {WS_CHK}")
    A(f"s_add_u32 s{sKVo}, s{sKVo}, s{sM0}")
    if own:
        for i in range(7):
            A(f"s_add_u32 s{sGp+i}, s{sP}, {i+1}")
            A(f"s_and_b32 s{sGp+i}, s{sGp+i}, 7")
            A(f"s_lshl_b32 s{sGp+i}, s{sGp+i}, 10")
            A(f"s_add_u32 s{sGp+i}, s{sGp+i}, s{sKVo}")
    sc = f2u(128.0 ** -0.25)
    A(f"s_mov_b32 s{sScale}, {sc:#x}"); A(f"s_mov_b32 s{sScale+1}, {sc:#x}")
    l2e = f2u(1.4426950408889634)
    A(f"s_mov_b32 s{sL2E}, {l2e:#x}"); A(f"s_mov_b32 s{sL2E+1}, {l2e:#x}")
    A(f"s_mov_b32 s{sQuart}, {f2u(0.25):#x}"); A(f"s_mov_b32 s{sQuart+1}, {f2u(0.25):#x}")
    for r in range(4):
        A(f"s_mov_b32 s{sM[r]}, {(1<<r)|(1<<(20+r)):#x}")
        A(f"s_mov_b32 s{sM[r]+1}, {(1<<(8+r))|(1<<(28+r)):#x}")
    A(f"v_mov_b32 v{vEps}, 0x35860000"); A(f"v_mov_b32 v{vEps+1}, 0x35860000")
    A(f"v_mov_b32 v{vNH}, 0xbf00bf00"); A(f"v_mov_b32 v{vNH+1}, 0xbf00bf00")
    A(f"v_mov_b32 v{vXA+1}, 0")
    A(f"s_lshl_b32 s{sT}, s{sW}, 10")
    A(f"v_add_u32 v{vA_phw}, s{sT}, v{vA_phi}")
    A(f"v_lshrrev_b32 v{vT+4}, 2, v{vc}")
    A(f"v_lshl_add_u32 v{vT+4}, v{vg}, 2, v{vT+4}")
    A(f"v_and_b32 v{vT+5}, 7, v{vT+4}")
    A(f"v_xor_b32 v{vT+5}, s{sW}, v{vT+5}")
    A(f"v_lshlrev_b32 v{vT+5}, 5, v{vT+5}")
    A(f"v_lshl_add_u32 v{vT+5}, v{vT+4}, 8, v{vT+5}")
    A(f"v_and_b32 v{vT+7}, 3, v{vc}")
    A(f"v_lshl_add_u32 v{vA_tr}, v{vT+7}, 3, v{vT+5}")
    A(f"s_lshr_b32 s{sT}, s{sW}, 1")
    A(f"v_bfe_u32 v{vT+4}, v{vc}, 1, 2")
    A(f"v_xor_b32 v{vT+4}, s{sT}, v{vT+4}")
    A(f"v_lshlrev_b32 v{vT+4}, 4, v{vT+4}")
    A(f"v_and_b32 v{vT+5}, 1, v{vc}")
    A(f"v_lshl_add_u32 v{vT+4}, v{vT+5}, 3, v{vT+4}")
    A(f"v_lshrrev_b32 v{vT+5}, 3, v{vc}")
    A(f"v_lshl_add_u32 v{vT+4}, v{vT+5}, 6, v{vT+4}")
    A(f"v_lshl_add_u32 v{vT+4}, v{vg}, 10, v{vT+4}")
    A(f"s_lshl_b32 s{sT}, s{sW}, 7")
    A(f"s_add_u32 s{sT}, s{sT}, {LDS_KVT}")
    A(f"v_add_u32 v{vA_kvw}, s{sT}, v{vT+4}")
    A(f"v_lshrrev_b32 v{vT+4}, 2, v{vc}")
    A(f"v_lshlrev_b32 v{vT+4}, 4, v{vT+4}")
    A(f"v_lshl_add_u32 v{vT+4}, v{vc}, 6, v{vT+4}")
    A(f"v_lshl_add_u32 v{vT+4}, v{vg}, 10, v{vT+4}")
    A(f"v_add_u32 v{vA_kvr}, {LDS_KVT}, v{vT+4}")
    for k in range(1, 4):
        A(f"v_xor_b32 v{vA_kvr+k}, {16*k}, v{vA_kvr}")
    A(f"v_lshrrev_b32 v{vA_cs}, 5, v{vA_lin}")
    A(f"v_and_b32 v{vA_cs}, 28, v{vA_cs}")
    A(f"v_lshlrev_b32 v{vT+4}, 4, v{vc}")
    A(f"v_lshl_add_u32 v{vA_o}, v{vg}, 10, v{vT+4}")
    srdc(SO, 1 << 24)
    A("s_waitcnt lgkmcnt(0)")
    A("s_barrier")

    npoll = [0]
    def poll(off, need, sleep=True, extra=None):
        n = npoll[0]; npoll[0] += 1
        LB(f"L_p{n}")
        A(f"ds_read_b32 v{vT}, v{vA_fl} offset:{off}")
        if extra: A(extra)
        A(f"s_sub_u32 s{sSpin}, s{sSpin}, 1")
        A("s_waitcnt lgkmcnt(0)")
        A(f"v_cmp_le_i32 vcc, {need}, v{vT}")
        A(f"s_cbranch_vccnz L_pk{n}")
        if sleep and slp: A(f"s_sleep {slp}")
        A(f"s_cbranch_scc0 L_p{n}")
        A(f"s_mov_b32 s{sSpin}, 0")
        LB(f"L_pk{n}")
    def pollw(base, sleep=True):
        A(f"s_add_u32 s{sNeed}, s{sW}, {base}")
        poll(4, f"s{sNeed}", sleep)
    def rdkq(t):
        for s in range(4):
            A(f"ds_read_b128 {vr(vX+4*s,4)}, v{vA_kr+s} offset:{t*32768}")
    def round4(dst, src):
        for i in range(4):
            A(f"v_cvt_pk_bf16_f32 v{dst+i}, 0, v{src+i}")
    def xred8(r):
        for pat in ("quad_perm:[1,0,3,2]", "quad_perm:[2,3,0,1]", "row_half_mirror"):
            A("s_nop 1")
            A(f"v_add_u32_dpp v{r}, v{r}, v{r} {pat} row_mask:0xf bank_mask:0xf")
    def call(s): A(f"s_swappc_b64 {sr(sRet,2)}, {sr(s,2)}")

    C("---- K phase: phi_k of this wave's two key tiles -> LDS")
    pollw(2)
    if not fine: stamp()
    for s in range(4):
        A(f"ds_read_b128 {vr(vOM+4*s,4)}, v{vA_phi} offset:{LDS_OM-LDS_PHI+1024*s}")
    rdkq(0)
    call(sPhiK)
    A(f"v_mov_b32 v{vK}, v{vR}")
    A(f"v_mov_b32 v{vK+1}, v{vR+1}")
    pollw(10)
    if not fine: stamp()
    rdkq(1)
    call(sPhiK)
    A(f"ds_write2_b64 v{vA_phw}, {vr(vK,2)}, {vr(vR,2)} offset0:0 offset1:1")
    A("s_waitcnt lgkmcnt(0)")
    A("s_barrier")
    if not fine: stamp()
    for b in range(8):
        A(f"ds_read_b128 {vr(vK+4*b,4)}, v{vA_phi} offset:{1024*b}")
    A(f"ds_read_b64 {vr(vNon,2)}, v{vA_fl} offset:24")
    A(f"s_lshl_b32 s{sT}, s{sP}, 10")
    A(f"s_add_u32 s{sT}, s{sT}, s{sKVo}")
    A(f"s_lshl_b32 s{sNeed}, s{sP}, 5")
    A(f"s_add_u32 s{sNeed}, s{sNeed}, s{sCKo}")
    C("---- partial kv[16 features][16 columns of this wave] over the 256 keys, then publish data and check words")
    def kvblocks(b0, b1):
        for b in range(b0, b1):
            A(f"ds_read_b64_tr_b16 {vr(vB+4*b,2)}, v{vA_tr} offset:{4096*b}")
            A(f"ds_read_b64_tr_b16 {vr(vB+4*b+2,2)}, v{vA_tr} offset:{4096*b+32768}")
        for b in range(b0, b1):
            A(f"s_waitcnt lgkmcnt({2*(b1-1-b)})")
            A(f"v_mfma_f32_16x16x32_bf16 {vr(vOwn,4)}, {vr(vK+4*b,4)}, {vr(vB+4*b,4)}, {'0' if b==0 else vr(vOwn,4)}")
    if kvs:
        poll(4, 25 + kvs)
        kvblocks(0, kvs)
    poll(4, 33, sleep=False)
    stamp()
    kvblocks(kvs, 8)
    A(f"v_and_b32 v{vA_c}, 0x70, v{vA_lin}")
    A(f"s_lshl_b32 s{sGo}, s{sP}, 4")
    A(f"v_cmp_eq_u32 vcc, s{sGo}, v{vA_c}")
    A(f"v_lshl_add_u32 v{vA_c}, v{vA_c}, 1, v{vA_cs}")
    A(f"v_sub_u32 v{vNon+1}, v{vNon+1}, v{vNon}")
    A(f"v_cndmask_b32 v{vA_c}, v{vA_c}, v{vNH}, vcc")
    A("s_nop 1")
    A(f"buffer_store_dwordx4 {vr(vOwn,4)}, v{vA_lin}, {sr(SWS,4)}, s{sT} offen sc1")
    A(f"v_add_u32 v{vT}, v{vOwn}, v{vOwn+1}")
    A(f"v_add3_u32 v{vT}, v{vT}, v{vOwn+2}, v{vOwn+3}")
    xred8(vT)
    A(f"v_sub_u32 v{vT}, v{vNon}, v{vT}")
    A("s_mov_b32 exec_lo, 0x01010101")
    A("s_mov_b32 exec_hi, 0x01010101")
    A(f"buffer_store_dword v{vT}, v{vA_cs}, {sr(SWS,4)}, s{sNeed} offen sc1")
    A("s_mov_b64 exec, -1")
    if not fine: stamp()
    def den(t):
        A(f"v_mfma_f32_16x16x16_bf16 {vr(vD[t],4)}, {vr(vPHQ[t],2)}, {vr(vZB,2)}, 0")
    def den2(t):
        round4(vD[t], vD[t])
        A(f"v_pk_add_f32 {vr(vD[t],2)}, {vr(vD[t],2)}, {vr(vEps,2)}")
        A(f"v_pk_add_f32 {vr(vD[t]+2,2)}, {vr(vD[t]+2,2)}, {vr(vEps,2)}")
        round4(vD[t], vD[t])
        for i in range(4): A(f"v_rcp_f32 v{vD[t]+i}, v{vD[t]+i}")
    vGa = vK
    def gload(fl):
        for p in range(8):
            if own:
                if p: A(f"buffer_load_dwordx4 {vr(vGa+4*p,4)}, v{vA_lin}, {sr(SWS,4)}, s{sGp+p-1} offen {fl}")
            else:
                A(f"buffer_load_dwordx4 {vr(vGa+4*p,4)}, v{vA_lin}, {sr(SWS,4)}, s{sKVo if p < 4 else sGo} offen offset:{(p%4)*1024} {fl}")
        A(f"buffer_load_dword v{vC}, v{vA_c}, {sr(SWS,4)}, s{sCKo} offen {fl}")
    zx = f"ds_read_b64 {vr(vZB,2)}, v{vA_z} offset:32"
    if qprio:
        A(f"s_cmp_lt_u32 s{sW}, 4")
        A("s_cbranch_scc1 L_np")
        A(f"s_setprio {qprio}")
        LB("L_np")
    C("---- Q phase")
    A(f"s_add_u32 s{sNeed}, s{sW}, 34")
    A(f"s_mov_b32 s{sRot}, 0")
    LB("L_qa")
    A(f"ds_read2_b32 {vr(vT,2)}, v{vA_fl} offset0:1 offset1:4")
    A(f"s_sub_u32 s{sSpin}, s{sSpin}, 1")
    A("s_waitcnt lgkmcnt(0)")
    if eg:
        A(f"v_cmp_lt_i32 vcc, s{sRot}, v{vT+1}")
        A("s_cbranch_vccnz L_g1")
    A(f"v_cmp_le_i32 vcc, s{sNeed}, v{vT}")
    A("s_cbranch_vccnz L_qak")
    A(f"s_sleep {slp}")
    A("s_cbranch_scc0 L_qa")
    A(f"s_mov_b32 s{sSpin}, 0")
    if eg:
        A("s_branch L_qak")
        LB("L_g1")
        gload(gfl)
        A(f"s_mov_b32 s{sRot}, 1")
        A("s_branch L_qa")
    LB("L_qak")
    rdkq(0)
    call(sPhiQ)
    A(f"v_mov_b32 v{vPHQ[0]}, v{vR}")
    A(f"v_mov_b32 v{vPHQ[0]+1}, v{vR+1}")
    stamp()
    assert lT == 0
    if True:
        if pb:
            assert not eg and not dyn
            C("wait for the go-ahead; the first waves run tile b's feature map meanwhile if it has landed")
            A(f"s_add_u32 s{sNeed}, s{sW}, 42")
            A(f"s_cmp_ge_u32 s{sW}, {pb}")
            A(f"s_cselect_b32 s{sNeed}, 99, s{sNeed}")
            LB("L_w")
            A(f"ds_read2_b32 {vr(vT,2)}, v{vA_fl} offset0:1 offset1:4")
            A(f"s_sub_u32 s{sSpin}, s{sSpin}, 1")
            A("s_waitcnt lgkmcnt(0)")
            A(f"v_cmp_le_i32 vcc, 1, v{vT+1}")
            A("s_cbranch_vccnz L_wk")
            A(f"v_cmp_le_i32 vcc, s{sNeed}, v{vT}")
            A("s_cbranch_vccnz L_wb")
            A("s_cbranch_scc0 L_w")
            A(f"s_mov_b32 s{sSpin}, 0")
            A("s_branch L_wk")
            LB("L_wb")
            rdkq(1)
            call(sPhiQ)
            A(f"s_mov_b32 s{sRot}, 1")
            A(f"s_mov_b32 s{sNeed}, 99")
            A("s_branch L_w")
            LB("L_wk")
        else:
            A(f"s_cmp_lg_u32 s{sRot}, 0")
            A("s_cbranch_scc1 L_g2")
            poll(16, 1, sleep=False)
        gload(gfl)
        LB("L_g2")
        if fine: stamp()
        poll(8, 1, sleep=False, extra=zx)
        den(0)
        A("s_nop 7")
        den2(0)
        if pb:
            A(f"s_cmp_eq_u32 s{sRot}, 0")
            A("s_cbranch_scc1 L_nob")
            den(1)
            A("s_nop 7")
            den2(1)
            LB("L_nob")
        if dyn:
            A(f"ds_read_b32 v{vT}, v{vA_fl} offset:4")
            A(f"s_add_u32 s{sNeed}, s{sW}, 42")
            A(f"s_mov_b32 s{sRot}, 0")
            A("s_waitcnt lgkmcnt(0)")
            A(f"v_cmp_le_i32 vcc, s{sNeed}, v{vT}")
            A("s_cbranch_vccz L_nob")
            rdkq(1)
            call(sPhiQ)
            A(f"s_mov_b32 s{sRot}, 1")
            den(1)
            A("s_nop 7")
            den2(1)
            LB("L_nob")
        if fine: stamp()
        stamp()
    vS_ = vT
    C("---- sum of the eight partials (own one from registers); verify the seven that were loaded")
    LB("L_gsum")
    for p in range(1, 8):
        A(f"s_waitcnt vmcnt({8 - p if p < 7 else 0})")
        if p == 1:
            if fine: stamp()
        if p == 1:
            g0 = vOwn if own else vGa
            A(f"v_pk_add_f32 {vr(vS_,2)}, {vr(g0,2)}, {vr(vGa+4,2)}")
            A(f"v_pk_add_f32 {vr(vS_+2,2)}, {vr(g0+2,2)}, {vr(vGa+6,2)}")
            A(f"v_add_u32 v{vC+2}, v{vGa+4}, v{vGa+5}")
            A(f"v_add_u32 v{vC+1}, v{vGa+6}, v{vGa+7}")
            continue
        else:
            A(f"v_pk_add_f32 {vr(vS_,2)}, {vr(vS_,2)}, {vr(vGa+4*p,2)}")
            A(f"v_pk_add_f32 {vr(vS_+2,2)}, {vr(vS_+2,2)}, {vr(vGa+4*p+2,2)}")
        A(f"v_add3_u32 v{vC+2}, v{vC+2}, v{vGa+4*p}, v{vGa+4*p+1}")
        A(f"v_add3_u32 v{vC+1}, v{vC+1}, v{vGa+4*p+2}, v{vGa+4*p+3}")
    A(f"v_add3_u32 v{vC}, v{vC}, v{vC+1}, v{vC+2}")
    A(f"v_cvt_pk_bf16_f32 v{vT+12}, v{vS_}, v{vS_+1}")
    A(f"v_cvt_pk_bf16_f32 v{vT+13}, v{vS_+2}, v{vS_+3}")
    A(f"v_add_u32_dpp v{vC}, v{vC}, v{vC} quad_perm:[1,0,3,2] row_mask:0xf bank_mask:0xf")
    A(f"ds_write_b64 v{vA_kvw}, {vr(vT+12,2)}")
    A(f"s_sub_u32 s{sSpin2}, s{sSpin2}, 1")
    A(f"v_add_u32_dpp v{vC}, v{vC}, v{vC} quad_perm:[2,3,0,1] row_mask:0xf bank_mask:0xf")
    A("s_nop 1")
    A(f"v_add_u32_dpp v{vC}, v{vC}, v{vC} row_half_mirror row_mask:0xf bank_mask:0xf")
    A(f"v_cmp_ne_u32 vcc, v{vC}, v{vNon+1}")
    A("s_cbranch_vccnz L_regather")
    LB("L_gok")
    if fine: stamp()
    if sb:
        A("s_waitcnt lgkmcnt(0)")
        A("s_barrier")
    else:
        A("s_mov_b64 exec, 1")
        A(f"ds_add_u32 v{vA_fl}, v{vOne}")
        A("s_mov_b64 exec, -1")
        poll(0, 8, sleep=False)
    stamp()
    for k in range(4):
        A(f"ds_read_b128 {vr(vKVB+4*k,4)}, v{vA_kvr+k}")
    vN = [vK, vX]
    C("---- numerators, division, stores (tile a, then tile b)")
    def mf(t, dd): return f"v_mfma_f32_16x16x16_bf16 {vr(vN[t]+4*dd,4)}, {vr(vPHQ[t],2)}, {vr(vKVB+2*dd,2)}, 0"
    def rnd(t, dd, r): return f"v_cvt_pk_bf16_f32 v{vN[t]+4*dd+r}, 0, v{vN[t]+4*dd+r}"
    def mul(t, dd, r0): return f"v_pk_mul_f32 {vr(vN[t]+4*dd+r0,2)}, {vr(vN[t]+4*dd+r0,2)}, {vr(vD[t]+r0,2)}"
    def emit_rows(t, r0):
        for r in (r0, r0+1):
            o = vT + 4*r
            for j in range(4):
                A(f"v_cvt_pk_bf16_f32 v{o+j}, v{vN[t]+8*j+r}, v{vN[t]+8*j+4+r}")
            A(f"buffer_store_dwordx4 {vr(o,4)}, v{vA_o}, {sr(SO,4)}, s{sBase+t} offen offset:{256*r} {st if t == 0 else st2}")
    def second_half(t):
        for dd in range(8):
            A(rnd(t, dd, 2)); A(rnd(t, dd, 3))
        for dd in range(8): A(mul(t, dd, 2))
        emit_rows(t, 2)
    if il:
        A("s_waitcnt lgkmcnt(3)"); A(mf(0,0)); A(mf(0,1))
        A("s_waitcnt lgkmcnt(2)"); A(mf(0,2)); A(mf(0,3))
        A("s_waitcnt lgkmcnt(1)"); A(mf(0,4)); A(mf(0,5))
        A("s_waitcnt lgkmcnt(0)")
        A(rnd(0,0,0)); A(rnd(0,0,1)); A(mf(0,6))
        A(rnd(0,1,0)); A(rnd(0,1,1)); A(mf(0,7))
        for dd in range(2, 6): A(rnd(0,dd,0)); A(rnd(0,dd,1))
        A(rnd(0,6,0)); A(rnd(0,6,1)); A(rnd(0,7,0)); A(rnd(0,7,1))
    else:
        for k in range(4):
            A(f"s_waitcnt lgkmcnt({3-k})")
            A(mf(0,2*k)); A(mf(0,2*k+1))
        A("s_nop 0")
        for dd in range(8): A(rnd(0,dd,0)); A(rnd(0,dd,1))
    for dd in range(8): A(mul(0, dd, 0))
    emit_rows(0, 0)
    second_half(0)
    if dyn or pb:
        A(f"s_cmp_lg_u32 s{sRot}, 0")
        A("s_cbranch_scc1 L_j2")
    pollw(42, sleep=False)
    rdkq(1)
    call(sPhiQ)
    A("s_nop 0")
    den(1)
    if il:
        d = vD[1]
        for dd in range(4): A(mf(1,dd))
        A("s_nop 3")
        for i in range(4): A(f"v_cvt_pk_bf16_f32 v{d+i}, 0, v{d+i}")
        A(mf(1,4))
        A(f"v_pk_add_f32 {vr(d,2)}, {vr(d,2)}, {vr(vEps,2)}")
        A(f"v_pk_add_f32 {vr(d+2,2)}, {vr(d+2,2)}, {vr(vEps,2)}")
        A(f"v_cvt_pk_bf16_f32 v{d}, 0, v{d}")
        A(mf(1,5))
        for i in range(1, 4): A(f"v_cvt_pk_bf16_f32 v{d+i}, 0, v{d+i}")
        A(mf(1,6))
        A(f"v_rcp_f32 v{d}, v{d}"); A(f"v_rcp_f32 v{d+1}, v{d+1}")
        A(mf(1,7))
        A(f"v_rcp_f32 v{d+2}, v{d+2}"); A(f"v_rcp_f32 v{d+3}, v{d+3}")
    else:
        for dd in range(8): A(mf(1,dd))
        den2(1)
    if dyn or pb:
        A("s_branch L_j3")
        LB("L_j2")
        for dd in range(8): A(mf(1,dd))
        A("s_nop 0")
        LB("L_j3")
    for dd in range(8): A(rnd(1,dd,0)); A(rnd(1,dd,1))
    for dd in range(8): A(mul(1, dd, 0))
    emit_rows(1, 0)
    second_half(1)
    LB("L_fin")
    if stamps:
        stamp()
        A("s_waitcnt vmcnt(0)")
        stamp(True)
        A("s_waitcnt lgkmcnt(0)")
        assert nst[0] <= 11, nst[0]
        for i in range(12):
            A(f"v_mov_b32 v{vK+i}, s{sSt+2*i}" if i < nst[0] else f"v_mov_b32 v{vK+i}, s{sSpin2}")
        A(f"s_mul_i32 s{sT}, s2, {NW}")
        A(f"s_add_u32 s{sT}, s{sT}, s{sWr}")
        A(f"s_mul_i32 s{sT}, s{sT}, 48")
        A(f"s_add_u32 s{sT}, s{sT}, {WS_STAMP}")
        A("s_mov_b64 exec, 1")
        for i in range(3):
            A(f"buffer_store_dwordx4 {vr(vK+4*i,4)}, off, {sr(SWS,4)}, s{sT} offset:{16*i}")
    LB("L_end")
    A("s_endpgm")

    def phi(isq):
        base = vX
        for s in range(4):
            A(f"s_waitcnt lgkmcnt({3-s})")
            b = base + 4*s
            for i in range(4):
                A(f"v_lshlrev_b32 v{vT+2*i}, 16, v{b+i}")
                A(f"v_and_b32 v{vT+2*i+1}, 0xffff0000, v{b+i}")
            for i in range(4):
                A(f"v_pk_mul_f32 {vr(vT+2*i,2)}, {vr(vT+2*i,2)}, {sr(sScale,2)}")
            for i in range(4):
                A(f"v_cvt_pk_bf16_f32 v{b+i}, v{vT+2*i}, v{vT+2*i+1}")
            if s > 0:
                x = vr(base+4*(s-1), 4); o = vr(vOM+4*(s-1), 4)
                c0 = "0" if s == 1 else vr(vG, 4); c1 = "0" if s == 1 else vr(vP, 4)
                A(f"v_mfma_f32_16x16x32_bf16 {vr(vG,4)}, {x}, {x}, {c0}")
                A(f"v_mfma_f32_16x16x32_bf16 {vr(vP,4)}, {o if isq else x}, {x if isq else o}, {c1}")
        x = vr(base+12, 4); o = vr(vOM+12, 4)
        A(f"v_mfma_f32_16x16x32_bf16 {vr(vG,4)}, {x}, {x}, {vr(vG,4)}")
        A(f"v_mfma_f32_16x16x32_bf16 {vr(vP,4)}, {o if isq else x}, {x if isq else o}, {vr(vP,4)}")
        A("s_nop 6")
        A(f"v_cndmask_b32 v{vT}, 0, v{vG}, {sr(sM[0],2)}")
        for r in range(1, 4):
            A(f"v_cndmask_b32 v{vT}, v{vT}, v{vG+r}, {sr(sM[r],2)}")
        A(f"v_cvt_pk_bf16_f32 v{vXA}, v{vT}, v{vXA+1}")
        round4(vT+4, vP)
        A("s_nop 1")
        a, b = (vr(vNH,2), vr(vXA,2)) if isq else (vr(vXA,2), vr(vNH,2))
        A(f"v_mfma_f32_16x16x16_bf16 {vr(vP,4)}, {a}, {b}, {vr(vT+4,4)}")
        A("s_nop 7")
        round4(vT+8, vP)
        A(f"v_pk_mul_f32 {vr(vT+8,2)}, {vr(vT+8,2)}, {sr(sL2E,2)}")
        A(f"v_pk_mul_f32 {vr(vT+10,2)}, {vr(vT+10,2)}, {sr(sL2E,2)}")
        for i in range(4):
            A(f"v_exp_f32 v{vT+8+i}, v{vT+8+i}")
        A("s_nop 0")
        round4(vT+12, vT+8)
        A(f"v_pk_fma_f32 {vr(vT+12,2)}, {vr(vT+12,2)}, {sr(sQuart,2)}, {vr(vEps,2)}")
        A(f"v_pk_fma_f32 {vr(vT+14,2)}, {vr(vT+14,2)}, {sr(sQuart,2)}, {vr(vEps,2)}")
        A(f"v_cvt_pk_bf16_f32 v{vR}, v{vT+12}, v{vT+13}")
        A(f"v_cvt_pk_bf16_f32 v{vR+1}, v{vT+14}, v{vT+15}")
        A(f"s_setpc_b64 {sr(sRet,2)}")
    C("---- feature map of one 16-row tile: v72..87 raw rows -> v16,17 packed phi (key and query forms)")
    LB("L_phik")
    phi(False)
    LB("L_phiq")
    phi(True)

    C("---- some partial had not arrived when it was read: read again")
    LB("L_regather")
    A("s_cbranch_scc1 L_gok")
    gload('sc1')
    A("s_branch L_gsum")

    C("---- helper wave")
    LB("L_helper")
    if hprio: A(f"s_setprio {hprio}")
    A(f"s_memrealtime {sr(sClk,2)}")
    A(f"v_mov_b32 v{vT+8}, 0")
    A(f"v_mov_b32 v{vT+9}, 0")
    A(f"ds_write_b32 v{vA_fl}, v{vT+8}")
    A(f"ds_write_b64 v{vA_fl}, {vr(vT+8,2)} offset:8")
    A(f"ds_write_b32 v{vA_fl}, v{vT+8} offset:16")
    A(f"v_mov_b32 v{vT+12}, 0x3f803f80")
    for i in range(1, 4): A(f"v_mov_b32 v{vT+12+i}, v{vT+12}")
    A(f"v_and_b32 v{vX+2}, 7, v{vc}")
    A(f"v_lshl_add_u32 v{vX}, v{vX+2}, 7, v{vT+3}")
    A(f"v_lshlrev_b32 v{vX+3}, 2, v{vg}")
    A(f"v_lshl_add_u32 v{vX+1}, v{vX+2}, 7, v{vX+3}")
    srdc(SDB, 256)
    A("s_waitcnt lgkmcnt(0)")
    A("s_barrier")
    C("the first few workgroups offer a launch nonce; the first offer to land wins")
    A(f"s_cmp_ge_u32 s2, {nroot}")
    A("s_cbranch_scc1 L_noroot")
    A(f"s_or_b32 s{sClk}, s{sClk}, 0x80000000")
    A(f"v_mov_b32 v{vT+8}, s{sClk}")
    A("s_mov_b64 exec, 1")
    A(f"buffer_atomic_cmpswap {vr(vT+8,2)}, off, {sr(SDB,4)}, 0 sc1")
    A("s_mov_b64 exec, -1")
    LB("L_noroot")
    A(f"s_add_u32 s{sGo}, s{sKVo}, {WS_ZS}")
    A(f"s_lshl_b32 s{sT}, s{sP}, 7")
    A(f"s_add_u32 s{sM0}, s{sT}, s{sGo}")
    A(f"s_mov_b32 s{sK1}, 0x9E3779B1")
    poll(4, nat)
    LB("L_non")
    A(f"buffer_load_dword v{vNon}, off, {sr(SDB,4)}, 0 sc1")
    A(f"s_sub_u32 s{sSpin2}, s{sSpin2}, 1")
    A("s_waitcnt vmcnt(0)")
    A(f"v_cmp_ne_u32 vcc, 0, v{vNon}")
    A("s_cbranch_vccnz L_nonk")
    A("s_cbranch_scc0 L_non")
    A(f"s_mov_b32 s{sSpin2}, 0")
    LB("L_nonk")
    A(f"v_mov_b32 v{vN0}, v{vNon}")
    A(f"v_readfirstlane_b32 s{sG1}, v{vNon}")
    A(f"v_add_u32 v{vX+4}, v{vX+2}, v{vNon}")
    A(f"v_mul_lo_u32 v{vX+4}, v{vX+4}, s{sK1}")
    A(f"v_lshrrev_b32 v{vX+5}, 15, v{vX+4}")
    A(f"v_xor_b32 v{vX+4}, v{vX+4}, v{vX+5}")
    A(f"v_mul_lo_u32 v{vX+4}, v{vX+4}, s{sK1}")
    A(f"v_lshrrev_b32 v{vX+5}, 13, v{vX+4}")
    A(f"v_xor_b32 v{vX+4}, v{vX+4}, v{vX+5}")
    A(f"v_mov_b32 v{vNon+1}, v{vX+4}")
    A(f"v_readlane_b32 s{sT}, v{vX+4}, s{sP}")
    xred8(vNon+1)
    A(f"v_mov_b32 v{vNon}, s{sT}")
    A(f"ds_write_b64 v{vA_fl}, {vr(vNon,2)} offset:24")
    xstamp(1)
    A("s_waitcnt lgkmcnt(0)")
    A("s_barrier")
    for b in range(8):
        A(f"ds_read_b128 {vr(vK+4*b,4)}, v{vA_phi} offset:{1024*b}")
    for b in range(8):
        A(f"s_waitcnt lgkmcnt({7-b})")
        A(f"v_mfma_f32_16x16x32_bf16 {vr(vP,4)}, {vr(vK+4*b,4)}, {vr(vT+12,4)}, {'0' if b==0 else vr(vP,4)}")
    A("s_mov_b32 exec_lo, 0x00010001")
    A("s_mov_b32 exec_hi, 0x00010001")
    A("s_nop 5")
    A(f"buffer_store_dwordx4 {vr(vP,4)}, v{vT+3}, {sr(SWS,4)}, s{sM0} offen sc1")
    A(f"v_add3_u32 v{vT}, v{vP}, v{vP+1}, v{vP+2}")
    A(f"v_add_u32 v{vT}, v{vT}, v{vP+3}")
    A(f"v_sub_u32 v{vT}, v{vNon}, v{vT}")
    A(f"buffer_store_dword v{vT}, v{vX+3}, {sr(SWS,4)}, s{sM0} offen offset:64 sc1")
    A("s_mov_b64 exec, -1")
    xstamp(2)
    vZg = vK
    def zload():
        A(f"buffer_load_dwordx4 {vr(vZg,4)}, v{vX}, {sr(SWS,4)}, s{sGo} offen sc1")
        A(f"buffer_load_dword v{vZg+10}, v{vX+1}, {sr(SWS,4)}, s{sGo} offen offset:64 sc1")
    C("a word per workgroup says that its partials are about to be stored; a hint for when to read, nothing relies on it")
    sTg, sTP = 40, 48
    A(f"s_add_u32 s{sT}, s{sKVo}, {WS_TAG}")
    A(f"s_add_u32 s{sTP}, s{SWS}, s{sT}")
    A(f"s_addc_u32 s{sTP+1}, s{SWS+1}, 0")
    A(f"s_lshr_b32 s{sG2}, 0x80, s{sP}")
    A(f"s_mov_b32 s{sNeed}, 0")
    A(f"s_lshl_b32 s{sK1}, s{sP}, 2")
    A(f"s_add_u32 s{sT}, s{sT}, s{sK1}")
    poll(4, tat, sleep=False)
    A("s_mov_b64 exec, 1")
    A(f"buffer_store_dword v{vN0}, off, {sr(SWS,4)}, s{sT} sc1")
    A("s_mov_b64 exec, -1")
    LB("L_t")
    A(f"s_load_dwordx8 {sr(sTg,8)}, {sr(sTP,2)}, 0 glc")
    A(f"ds_read_b32 v{vT}, v{vA_fl} offset:4")
    A(f"s_mov_b32 s{sT}, 0")
    A("s_waitcnt lgkmcnt(0)")
    A(f"v_cmp_le_i32 vcc, {zat}, v{vT}")
    A(f"s_cmp_lg_u32 s{sNeed}, 0")
    A("s_cbranch_scc1 L_t1")
    A("s_cbranch_vccz L_t1")
    zload()
    A(f"s_mov_b32 s{sNeed}, 1")
    LB("L_t1")
    for i in range(8):
        A(f"s_cmp_eq_u32 s{sTg+i}, s{sG1}")
        A(f"s_addc_u32 s{sT}, s{sT}, s{sT}")
    A(f"s_or_b32 s{sT}, s{sT}, s{sG2}")
    A(f"s_cmp_eq_u32 s{sT}, 0xff")
    A("s_cbranch_scc1 L_t2")
    if tsl: A(f"s_sleep {tsl}")
    A(f"s_sub_u32 s{sSpin2}, s{sSpin2}, 1")
    A("s_cbranch_scc0 L_t")
    A(f"s_mov_b32 s{sSpin2}, 0")
    LB("L_t2")
    if gmin: poll(4, gmin, sleep=False)
    A(f"ds_write_b32 v{vA_fl}, v{vOne} offset:16")
    xstamp(3)
    A(f"s_cmp_lg_u32 s{sNeed}, 0")
    A("s_cbranch_scc1 L_t3")
    poll(4, zat)
    zload()
    LB("L_t3")
    A("s_waitcnt vmcnt(0)")
    LB("L_zchk")
    A(f"v_add3_u32 v{vZg+10}, v{vZg+10}, v{vZg}, v{vZg+1}")
    A(f"v_add3_u32 v{vZg+10}, v{vZg+10}, v{vZg+2}, v{vZg+3}")
    A(f"v_cmp_ne_u32 vcc, v{vZg+10}, v{vX+4}")
    A("s_cbranch_vccnz L_zbad")
    LB("L_zok")
    for i in range(4):
        A(f"v_add_f32_dpp v{vZg+4+i}, v{vZg+i}, v{vZg+i} quad_perm:[1,0,3,2] row_mask:0xf bank_mask:0xf")
    for i in range(4):
        A(f"v_add_f32_dpp v{vZg+i}, v{vZg+4+i}, v{vZg+4+i} quad_perm:[2,3,0,1] row_mask:0xf bank_mask:0xf")
    for i in range(4):
        A(f"v_add_f32_dpp v{vZg+4+i}, v{vZg+i}, v{vZg+i} row_half_mirror row_mask:0xf bank_mask:0xf")
    A(f"v_cvt_pk_bf16_f32 v{vZg+8}, v{vZg+4}, v{vZg+5}")
    A(f"v_cvt_pk_bf16_f32 v{vZg+9}, v{vZg+6}, v{vZg+7}")
    A(f"ds_write_b64 v{vA_z}, {vr(vZg+8,2)} offset:32")
    A(f"ds_write_b32 v{vA_fl}, v{vOne} offset:8")
    xstamp(5)
    xstamp(4); xstamp(6)
    if stamps:
        xstamp(7); xstamp(8)
        A("s_branch L_fin")
    else:
        A("s_endpgm")
    LB("L_zbad")
    A(f"s_sub_u32 s{sSpin2}, s{sSpin2}, 1")
    A("s_cbranch_scc1 L_zok")
    zload()
    A("s_waitcnt vmcnt(0)")
    A("s_branch L_zchk")
    LB("L_codeend")
    return HEADER.format(lds=LDS_TOTAL) + "\n".join(x for x in L if x) + FOOTER.format(vgpr=NV, sgpr=98 if stamps else 72, acc=NV)

if __name__ == '__main__':
    out = sys.argv[1]
    kw = {}
    for a in sys.argv[2:]:
        k, v = a.split('=')
        kw[k] = v if k in ('ld', 'st', 'gfl', 'st2', 'ldk', 'ldv', 'ldq') else (tuple(map(int, v.split(','))) if k == 'rot' else int(v))
    open(out, 'w').write(gen(**kw))
```

```python
import sys, struct

def f2u(x): return struct.unpack('<I', struct.pack('<f', x))[0]

HEADER = """; Linear (random-feature) attention, B=1 H=32 S=2048 D=128 M=16, bf16, one launch.
;
; Wave 0 (loader) streams omega, K, V, Q into LDS by DMA with a bounded window and publishes a landed-tile count.
; Hand-off between workgroups: write-through stores of the partial sums plus check words; a reader accepts what it
;
; @launch grid=(256,1,1) block=(576,1,1) lds={lds}
.amdgcn_target "amdgcn-amd-amdhsa--gfx950"
.text
.globl standalone__linear_kernel_rfa__prompt_kernel
.p2align 8
.type standalone__linear_kernel_rfa__prompt_kernel,@function
standalone__linear_kernel_rfa__prompt_kernel:
"""
FOOTER = """
.section .rodata,"a"
.p2align 6
.amdhsa_kernel standalone__linear_kernel_rfa__prompt_kernel
  .amdhsa_next_free_vgpr {vgpr}
  .amdhsa_next_free_sgpr {sgpr}
  .amdhsa_accum_offset {acc}
  .amdhsa_group_segment_fixed_size 0
  .amdhsa_kernarg_size 56
  .amdhsa_user_sgpr_count 2
  .amdhsa_user_sgpr_kernarg_segment_ptr 1
  .amdhsa_system_sgpr_workgroup_id_x 1
  .amdhsa_float_denorm_mode_32 3
  .amdhsa_float_denorm_mode_16_64 3
.end_amdhsa_kernel
"""

LDS_V, LDS_KQ, LDS_PHI, LDS_KVT, LDS_FLAG, LDS_OM = 0, 65536, 131072, 139264, 143360, 143616
LDS_TOTAL = LDS_OM + 4096
HSTRIDE = 69632
WS_CHK, WS_ZS = 65536, 67584
WS_BYTES = 4 << 20
WS_STAMP = 3 << 20
NW = 9

def gen(ld='nt', st='nt', gfl='', stamps=False, W=28, W2=36, spin=200000, lprio=3, slp=1, pre=2, rot=(3,15), hmap=0,
        nroot=8, pf=1, fine=0, kvs=5, pb=4, gat=45, nw=4, zw=0, zg=0, pfw=1):
    L = []
    def A(s): L.append("    " + s)
    def C(s): L.append("    ; " + s)
    def LB(s): L.append(s + ":")
    def vr(a, n): return f"v[{a}:{a+n-1}]"
    def sr(a, n): return f"s[{a}:{a+n-1}]"
    G, G2 = W // 4, W2 // 4
    SC, SOM, SO, SWS, SDB = 4, 8, 12, 16, 20
    sPQ, sPV = 24, 26
    sClk, sZo = 24, 26
    sBase, sBase2, sW, sH, sP, sWr = 28, 29, 30, 31, 32, 33
    sScale, sL2E, sQuart = 34, 36, 38
    sM = [40, 42, 44, 46]
    sK1 = 48
    sKVo, sCKo, sT2, sT, sSpin, sM0, sSpin2, sNeed, sRot = 49, 50, 51, 52, 53, 54, 55, 56, 57
    sRet = 58
    sPhiK, sPhiQ = 60, 62
    sOff, sEnd, sLds, sPr, sPh = 34, 35, 36, 37, 38
    sGp = 64
    sSt = 72
    vA_cs, vA_fl, vNv, vA_lin, vA_tr, vA_phi, vA_kvw = 0, 1, 4, 5, 6, 7, 8
    vA_z, vA_kvr, vA_o, vA_phw = 9, 10, 14, 15
    vPHQ = [2, 16]
    vR = 16
    vEps, vNH, vXA = 18, 20, 22
    vOM = 24
    vK = 40
    vX = 72
    vC, vZg, vOwn, vNon = 88, 92, 96, 100
    vT = 104
    vP, vG = 120, 124
    vB = 128
    vKVB, vZB, vD = 128, 144, [148, 152]
    vA_c = 157
    vA_kr = 160
    vA_zc, vG16, vA_zl = 165, 166, 167
    NV = 168
    nst = [0]
    lite = (stamps == 2)
    def stamp(force=False):
        if lite and not force:
            nst[0] += 1
            return
        if stamps:
            A(f"s_memrealtime {sr(sSt + 2*nst[0], 2)}")
            nst[0] += 1
    def xstamp(i):
        if stamps and not lite: A(f"s_memrealtime {sr(sSt + 2*i, 2)}")
    def srdc(d, n):
        A(f"s_mov_b32 s{d+2}, {n}"); A(f"s_mov_b32 s{d+3}, 0x20000")

    stamp(True)
    A(f"s_load_dwordx2 {sr(SC,2)}, s[0:1], 8   ; k")
    A(f"s_load_dwordx2 {sr(SOM,2)}, s[0:1], 24  ; omega")
    A("s_cmp_ge_u32 s2, 256")
    A("s_cbranch_scc1 L_end")
    A(f"v_readfirstlane_b32 s{sWr}, v0")
    vc, vg = vT + 1, vT + 2
    A(f"v_and_b32 v{vc}, 15, v0")
    A(f"v_bfe_u32 v{vg}, v0, 4, 2")
    if hmap == 0:
        A(f"s_and_b32 s{sH}, s2, 31")
        A(f"s_lshr_b32 s{sP}, s2, 5")
    else:
        A(f"s_lshr_b32 s{sH}, s2, 3")
        A(f"s_and_b32 s{sP}, s2, 7")
    A(f"v_xor_b32 v{vT+4}, v{vc}, v{vg}")
    A(f"v_lshlrev_b32 v{vT+4}, 4, v{vT+4}")
    A(f"s_lshl_b32 s{sBase}, s{sH}, 19")
    A(f"s_lshl_b32 s{sT}, s{sP}, 16")
    A(f"s_add_u32 s{sBase}, s{sBase}, s{sT}")
    A(f"s_bfe_u32 s{sRot}, s2, {rot[0] | (rot[1].bit_length() << 16):#x}")
    A(f"s_lshl_b32 s{sRot}, s{sRot}, 12")
    A(f"s_lshr_b32 s{sWr}, s{sWr}, 6")
    A("s_cbranch_scc1 L_main")

    C("---- loader: streams omega, K, V, Q into LDS by DMA and publishes a landed-tile count")
    C("tile j (16 rows, 4 KiB) of this workgroup's block is read from tile (j + rot) & 15; 16-byte chunks are")
    C("xor-swizzled inside each row so that the later LDS reads are free of bank conflicts")
    vA = 40; vAq = 44; vAv = 48; vS = 52; vAo = 54
    if lprio: A(f"s_setprio {lprio}")
    A(f"v_lshl_add_u32 v{vA}, v{vg}, 8, v{vT+4}")
    for i in range(1, 4):
        A(f"v_xor_b32 v{vA+i}, {64*i}, v{vA}")
    srdc(SC, 1 << 24)
    A(f"s_mov_b32 m0, {LDS_KQ}")
    A(f"s_add_u32 s{sT}, s{sBase}, s{sRot}")
    A("s_waitcnt lgkmcnt(0)")
    def loads():
        for i in range(4):
            A(f"buffer_load_dwordx4 v{vA+i}, {sr(SC,4)}, s{sT} offen offset:{i*1024} {ld} lds")
    loads()
    A(f"s_load_dwordx2 {sr(sPQ,2)}, s[0:1], 0")
    A(f"s_load_dwordx2 {sr(sPV,2)}, s[0:1], 16")
    if stamps: A(f"s_load_dwordx2 {sr(SWS,2)}, s[0:1], 48")
    srdc(SOM, 4096)
    A(f"v_lshlrev_b32 v{vT+3}, 4, v{vg}")
    A(f"v_lshl_add_u32 v{vAo}, v{vc}, 8, v{vT+3}")
    for s in range(4):
        A(f"s_mov_b32 m0, {LDS_OM + s*1024 - s*64}")
        A(["s_nop 0", f"s_mov_b32 s{sOff}, 4096", f"s_mov_b32 s{sEnd}, {pre*4096}", f"s_mov_b32 s{sLds}, {LDS_KQ}"][s])
        A(f"buffer_load_dwordx4 v{vAo}, {sr(SOM,4)}, 0 offen offset:{64*s} lds")
    A(f"s_mov_b32 s{sPr}, {2 - G}")
    A(f"s_mov_b32 s{sPh}, 0")
    A(f"v_mov_b32 v{vS}, 0")
    A(f"v_mov_b32 v{vA_fl}, {LDS_FLAG}")
    A(f"ds_write_b32 v{vA_fl}, v{vS} offset:8")
    for i in range(4): A(f"v_mov_b32 v{vAq+i}, v{vA+i}")
    A(f"v_lshlrev_b32 v{vT+5}, 1, v{vg}")
    A(f"v_xor_b32 v{vT+5}, v{vT+5}, v{vc}")
    A(f"v_lshlrev_b32 v{vT+5}, 4, v{vT+5}")
    A(f"v_lshl_add_u32 v{vAv}, v{vg}, 8, v{vT+5}")
    def prep():
        A(f"s_add_u32 m0, s{sLds}, s{sOff}")
        A(f"s_add_u32 s{sT}, s{sRot}, s{sOff}")
        A(f"s_and_b32 s{sT}, s{sT}, 0xffff")
        A(f"s_add_u32 s{sT}, s{sBase}, s{sT}")
    def body(w, end, label, clamp=False):
        A(f"s_waitcnt vmcnt({w})")
        A(f"ds_write_b32 v{vA_fl}, v{vS}")
        loads()
        A(f"s_add_u32 s{sOff}, s{sOff}, 4096")
        prep()
        A(f"s_add_u32 s{sPr}, s{sPr}, 1")
        if clamp:
            A(f"s_max_i32 s{sPh}, s{sPr}, 33")
            A(f"v_mov_b32 v{vS}, s{sPh}")
        else:
            A(f"v_mov_b32 v{vS}, s{sPr}")
        A(f"s_cmp_lg_u32 s{sOff}, {end}")
        A(f"s_cbranch_scc1 {label}")
    LB("L_lp0")
    prep()
    LB("L_lp")
    body(W, f"s{sEnd}", "L_lp")
    A(f"s_add_u32 s{sPh}, s{sPh}, 1")
    A(f"s_cmp_eq_u32 s{sPh}, 1")
    A("s_cbranch_scc0 L_ph2")
    A("s_waitcnt lgkmcnt(0)")
    A("s_barrier")
    xstamp(1)
    A(f"s_mov_b32 s{sEnd}, 65536")
    A("s_branch L_lp")
    LB("L_ph2")
    A(f"s_cmp_eq_u32 s{sPh}, 2")
    A("s_cbranch_scc0 L_ph3")
    A(f"s_mov_b64 {sr(SC,2)}, {sr(sPV,2)}")
    A(f"s_mov_b32 s{sOff}, 0")
    A(f"s_mov_b32 s{sLds}, {LDS_V}")
    A(f"v_mov_b32 v{vA}, v{vAv}")
    A(f"v_xor_b32 v{vA+1}, 128, v{vAv}")
    A(f"v_mov_b32 v{vA+2}, v{vAv}")
    A(f"v_xor_b32 v{vA+3}, 128, v{vAv}")
    A("s_branch L_lp0")
    LB("L_ph3")
    A(f"s_cmp_eq_u32 s{sPh}, 3")
    A("s_cbranch_scc0 L_ph4")
    A(f"s_mov_b64 {sr(SC,2)}, {sr(sPQ,2)}")
    A(f"s_mov_b32 s{sOff}, 0")
    A(f"s_mov_b32 s{sEnd}, {(G+1)*4096}")
    A(f"s_mov_b32 s{sLds}, {LDS_KQ}")
    for i in range(4): A(f"v_mov_b32 v{vA+i}, v{vAq+i}")
    xstamp(2)
    A("s_barrier")
    xstamp(3)
    A("s_branch L_lp0")
    LB("L_ph4")
    assert G < 14
    A(f"s_add_i32 s{sPr}, s{sPr}, {G - G2}")
    A(f"s_max_i32 s{sPh}, s{sPr}, 33")
    A(f"v_mov_b32 v{vS}, s{sPh}")
    LB("L_lq")
    body(W2, 65536, "L_lq", G2 > G + 1)
    xstamp(4)
    for k in range(min(G2, 15), -1, -1):
        A(f"v_mov_b32 v{vS+(k&1)}, {49 - k}")
        A(f"s_waitcnt vmcnt({4*k})")
        A(f"ds_write_b32 v{vA_fl}, v{vS+(k&1)}")
    if stamps:
        for i in range(5, 9): xstamp(i)
        srdc(SWS, WS_BYTES)
        A(f"s_mov_b32 s{sSpin2}, {spin}")
        A("s_branch L_fin")
    else:
        A("s_endpgm")

    C("---- main waves")
    LB("L_main")
    A(f"s_load_dwordx2 {sr(SO,2)}, s[0:1], 32")
    A(f"s_load_dwordx2 {sr(SDB,2)}, s[0:1], 40")
    A(f"s_load_dwordx2 {sr(SWS,2)}, s[0:1], 48")
    A(f"s_memrealtime {sr(sClk,2)}")
    A(f"s_getpc_b64 {sr(sPhiK,2)}")
    LB("L_pc")
    if pf:
        C("pull the rest of the code into the L2 while the first tiles are in flight")
        A(f"s_cmp_lg_u32 s{sWr}, {pfw}")
        A("s_cbranch_scc1 L_nopf")
        A(f"v_and_b32 v{vT+5}, 63, v0")
        A(f"v_lshlrev_b32 v{vT+5}, 7, v{vT+5}")
        A(f"v_min_u32 v{vT+5}, L_codeend-L_pc-4, v{vT+5}")
        A(f"global_load_dword v164, v{vT+5}, {sr(sPhiK,2)}")
        LB("L_nopf")
    A("s_barrier   ; B0")
    A(f"v_mov_b32 v{vA_fl}, {LDS_FLAG}")
    A(f"v_lshlrev_b32 v{vG16}, 4, v{vg}")
    A(f"v_and_b32 v{vA_lin}, 63, v0")
    A(f"v_lshlrev_b32 v{vA_lin}, 4, v{vA_lin}")
    A(f"s_mul_i32 s{sKVo}, s{sH}, {HSTRIDE}")
    A(f"v_add_u32 v{vA_phi}, {LDS_PHI}, v{vA_lin}")
    A(f"s_mov_b32 s{sSpin}, {spin*16}")
    A(f"s_mov_b32 s{sSpin2}, {spin}")
    srdc(SWS, WS_BYTES); srdc(SDB, 256); srdc(SO, 1 << 24)
    A(f"s_add_u32 s{sPhiQ}, s{sPhiK}, L_phiq-L_pc")
    A(f"s_addc_u32 s{sPhiQ+1}, s{sPhiK+1}, 0")
    A(f"s_add_u32 s{sPhiK}, s{sPhiK}, L_phik-L_pc")
    A(f"s_addc_u32 s{sPhiK+1}, s{sPhiK+1}, 0")
    A(f"s_sub_u32 s{sW}, s{sWr}, 1")
    A(f"s_lshl_b32 s{sM0}, s{sW}, 12")
    A(f"s_add_u32 s{sT}, s{sM0}, s{sRot}")
    A(f"s_and_b32 s{sT}, s{sT}, 0xffff")
    A(f"s_xor_b32 s{sBase2}, s{sT}, 0x8000")
    A(f"s_add_u32 s{sBase2}, s{sBase}, s{sBase2}")
    A(f"s_add_u32 s{sBase}, s{sBase}, s{sT}")
    A(f"s_add_u32 s{sT}, s{sM0}, {LDS_KQ}")
    A(f"s_lshl_b32 s{sM0}, s{sW}, 13")
    A(f"v_lshl_add_u32 v{vT+4}, v{vc}, 8, v{vT+4}")
    A(f"v_add_u32 v{vA_kr}, s{sT}, v{vT+4}")
    for i in range(1, 4):
        A(f"v_xor_b32 v{vA_kr+i}, {64*i}, v{vA_kr}")
    A(f"s_add_u32 s{sZo}, s{sKVo}, {WS_ZS}")
    A(f"s_lshl_b32 s{sT}, s{sW}, 8")
    A(f"s_add_u32 s{sCKo}, s{sKVo}, s{sT}")
    A(f"s_add_u32 s{sCKo}, s{sCKo}, {WS_CHK}")
    A(f"s_add_u32 s{sKVo}, s{sKVo}, s{sM0}")
    for i in range(7):
        A(f"s_add_u32 s{sGp+i}, s{sP}, {i+1}")
        A(f"s_and_b32 s{sGp+i}, s{sGp+i}, 7")
        A(f"s_lshl_b32 s{sGp+i}, s{sGp+i}, 10")
        A(f"s_add_u32 s{sGp+i}, s{sGp+i}, s{sKVo}")
    sc = f2u(128.0 ** -0.25)
    A(f"s_mov_b32 s{sScale}, {sc:#x}"); A(f"s_mov_b32 s{sScale+1}, {sc:#x}")
    l2e = f2u(1.4426950408889634)
    A(f"s_mov_b32 s{sL2E}, {l2e:#x}"); A(f"s_mov_b32 s{sL2E+1}, {l2e:#x}")
    A(f"s_mov_b32 s{sQuart}, {f2u(0.25):#x}"); A(f"s_mov_b32 s{sQuart+1}, {f2u(0.25):#x}")
    for r in range(4):
        A(f"s_mov_b32 s{sM[r]}, {(1<<r)|(1<<(20+r)):#x}")
        A(f"s_mov_b32 s{sM[r]+1}, {(1<<(8+r))|(1<<(28+r)):#x}")
    A(f"s_mov_b32 s{sK1}, 0x9E3779B1")
    A(f"v_mov_b32 v{vEps}, 0x35860000"); A(f"v_mov_b32 v{vEps+1}, 0x35860000")
    A(f"v_mov_b32 v{vNH}, 0xbf00bf00"); A(f"v_mov_b32 v{vNH+1}, 0xbf00bf00")
    A(f"v_mov_b32 v{vXA+1}, 0")
    A(f"s_lshl_b32 s{sT}, s{sW}, 10")
    A(f"v_add_u32 v{vA_phw}, s{sT}, v{vA_phi}")
    A(f"v_lshrrev_b32 v{vT+4}, 2, v{vc}")
    A(f"v_lshl_add_u32 v{vT+4}, v{vg}, 2, v{vT+4}")
    A(f"v_and_b32 v{vT+5}, 7, v{vT+4}")
    A(f"v_xor_b32 v{vT+5}, s{sW}, v{vT+5}")
    A(f"v_lshlrev_b32 v{vT+5}, 5, v{vT+5}")
    A(f"v_lshl_add_u32 v{vT+5}, v{vT+4}, 8, v{vT+5}")
    A(f"v_and_b32 v{vT+7}, 3, v{vc}")
    A(f"v_lshl_add_u32 v{vA_tr}, v{vT+7}, 3, v{vT+5}")
    A(f"s_lshr_b32 s{sT}, s{sW}, 1")
    A(f"v_bfe_u32 v{vT+4}, v{vc}, 1, 2")
    A(f"v_xor_b32 v{vT+4}, s{sT}, v{vT+4}")
    A(f"v_lshlrev_b32 v{vT+4}, 4, v{vT+4}")
    A(f"v_and_b32 v{vT+5}, 1, v{vc}")
    A(f"v_lshl_add_u32 v{vT+4}, v{vT+5}, 3, v{vT+4}")
    A(f"v_lshrrev_b32 v{vT+5}, 3, v{vc}")
    A(f"v_lshl_add_u32 v{vT+4}, v{vT+5}, 6, v{vT+4}")
    A(f"v_lshl_add_u32 v{vT+4}, v{vg}, 10, v{vT+4}")
    A(f"s_lshl_b32 s{sT}, s{sW}, 7")
    A(f"s_add_u32 s{sT}, s{sT}, {LDS_KVT}")
    A(f"v_add_u32 v{vA_kvw}, s{sT}, v{vT+4}")
    A(f"v_lshrrev_b32 v{vT+4}, 2, v{vc}")
    A(f"v_lshlrev_b32 v{vT+4}, 4, v{vT+4}")
    A(f"v_lshl_add_u32 v{vT+4}, v{vc}, 6, v{vT+4}")
    A(f"v_lshl_add_u32 v{vT+4}, v{vg}, 10, v{vT+4}")
    A(f"v_add_u32 v{vA_kvr}, {LDS_KVT}, v{vT+4}")
    for k in range(1, 4):
        A(f"v_xor_b32 v{vA_kvr+k}, {16*k}, v{vA_kvr}")
    A(f"v_lshrrev_b32 v{vA_cs}, 5, v{vA_lin}")
    A(f"v_and_b32 v{vA_cs}, 28, v{vA_cs}")
    A(f"v_lshlrev_b32 v{vT+4}, 4, v{vc}")
    A(f"v_lshl_add_u32 v{vA_o}, v{vg}, 10, v{vT+4}")
    A(f"v_and_b32 v{vNv}, 7, v{vc}")
    A(f"v_lshl_add_u32 v{vA_z}, v{vNv}, 7, v{vG16}")
    A(f"v_lshlrev_b32 v{vT+4}, 2, v{vg}")
    A(f"v_lshl_add_u32 v{vA_zc}, v{vNv}, 7, v{vT+4}")
    A(f"v_lshl_add_u32 v{vA_zl}, v{vg}, 3, v{vA_fl}")
    A("s_waitcnt lgkmcnt(0)")
    C("the first few workgroups offer a launch nonce; the first offer to land wins")
    A(f"s_lshl_b32 s{sT}, s2, 3")
    A(f"s_add_u32 s{sT}, s{sT}, s{sW}")
    A(f"s_and_b32 s{sT}, s{sT}, {(~((nroot-1) << 3)) & 0xffffffff:#x}")
    A("s_cbranch_scc1 L_noroot")
    A(f"s_or_b32 s{sClk}, s{sClk}, 0x80000000")
    A(f"v_mov_b32 v{vXA}, s{sClk}")
    A("s_mov_b64 exec, 1")
    A(f"buffer_atomic_cmpswap {vr(vXA,2)}, off, {sr(SDB,4)}, 0 sc1")
    A("s_mov_b64 exec, -1")
    LB("L_noroot")

    npoll = [0]
    def poll(need, sleep=True):
        n = npoll[0]; npoll[0] += 1
        LB(f"L_p{n}")
        A(f"ds_read_b32 v{vT}, v{vA_fl}")
        A(f"s_sub_u32 s{sSpin}, s{sSpin}, 1")
        A("s_waitcnt lgkmcnt(0)")
        A(f"v_cmp_le_i32 vcc, {need}, v{vT}")
        A(f"s_cbranch_vccnz L_pk{n}")
        if sleep and slp: A(f"s_sleep {slp}")
        A(f"s_cbranch_scc0 L_p{n}")
        A(f"s_mov_b32 s{sSpin}, 0")
        LB(f"L_pk{n}")
    def pollw(base, sleep=True):
        A(f"s_add_u32 s{sNeed}, s{sW}, {base}")
        poll(f"s{sNeed}", sleep)
    def rdkq(t):
        for s in range(4):
            A(f"ds_read_b128 {vr(vX+4*s,4)}, v{vA_kr+s} offset:{t*32768}")
    def round4(dst, src):
        for i in range(4):
            A(f"v_cvt_pk_bf16_f32 v{dst+i}, 0, v{src+i}")
    def red8(r):
        for pat in ("quad_perm:[1,0,3,2]", "quad_perm:[2,3,0,1]", "row_half_mirror"):
            A("s_nop 1")
            A(f"v_add_u32_dpp v{r}, v{r}, v{r} {pat} row_mask:0xf bank_mask:0xf")
    def call(s): A(f"s_swappc_b64 {sr(sRet,2)}, {sr(s,2)}")

    C("---- K phase: phi_k of this wave's two key tiles -> LDS")
    pollw(2)
    if not fine: stamp()
    for s in range(4):
        A(f"ds_read_b128 {vr(vOM+4*s,4)}, v{vA_phi} offset:{LDS_OM-LDS_PHI+1024*s}")
    rdkq(0)
    call(sPhiK)
    A(f"v_mov_b32 v{vK}, v{vR}")
    A(f"v_mov_b32 v{vK+1}, v{vR+1}")
    A(f"s_cmp_lg_u32 s{sW}, {nw}")
    A("s_cbranch_scc1 L_nn1")
    A(f"buffer_load_dword v{vNon}, off, {sr(SDB,4)}, 0 sc1")
    LB("L_nn1")
    pollw(10)
    if not fine: stamp()
    rdkq(1)
    call(sPhiK)
    A(f"ds_write2_b64 v{vA_phw}, {vr(vK,2)}, {vr(vR,2)} offset0:0 offset1:1")
    A(f"s_cmp_lg_u32 s{sW}, {nw}")
    A("s_cbranch_scc1 L_nn2")
    LB("L_non")
    A(f"s_sub_u32 s{sSpin2}, s{sSpin2}, 1")
    A("s_waitcnt vmcnt(0)")
    A(f"v_cmp_ne_u32 vcc, 0, v{vNon}")
    A("s_cbranch_vccnz L_nonk")
    A(f"buffer_load_dword v{vNon}, off, {sr(SDB,4)}, 0 sc1")
    A("s_cbranch_scc0 L_non")
    A(f"s_mov_b32 s{sSpin2}, 0")
    A("s_waitcnt vmcnt(0)")
    LB("L_nonk")
    A(f"ds_write_b32 v{vA_fl}, v{vNon} offset:4")
    LB("L_nn2")
    A("s_waitcnt lgkmcnt(0)")
    A("s_barrier   ; B1")
    if not fine: stamp()
    A(f"ds_read_b32 v{vNon}, v{vA_fl} offset:4")
    for b in range(8):
        A(f"ds_read_b128 {vr(vK+4*b,4)}, v{vA_phi} offset:{1024*b}")
    C("per-slot nonces: lane & 7 -> v4, own -> v100, expected sum of the other seven -> v101")
    A("s_waitcnt lgkmcnt(8)")
    A(f"v_add_u32 v{vNv}, v{vNv}, v{vNon}")
    A(f"v_mul_lo_u32 v{vNv}, v{vNv}, s{sK1}")
    A(f"v_lshrrev_b32 v{vT}, 15, v{vNv}")
    A(f"v_xor_b32 v{vNv}, v{vNv}, v{vT}")
    A(f"v_mul_lo_u32 v{vNv}, v{vNv}, s{sK1}")
    A(f"v_lshrrev_b32 v{vT}, 13, v{vNv}")
    A(f"v_xor_b32 v{vNv}, v{vNv}, v{vT}")
    A(f"v_mov_b32 v{vNon+1}, v{vNv}")
    A(f"v_readlane_b32 s{sT}, v{vNv}, s{sP}")
    red8(vNon+1)
    A(f"v_mov_b32 v{vNon}, s{sT}")
    A(f"v_sub_u32 v{vNon+1}, v{vNon+1}, v{vNon}")
    A(f"s_cmp_lg_u32 s{sW}, {zw}")
    A("s_cbranch_scc1 L_nz")
    C("z of this workgroup's keys")
    A(f"v_mov_b32 v{vT+12}, 0x3f803f80")
    for i in range(1, 4): A(f"v_mov_b32 v{vT+12+i}, v{vT+12}")
    A(f"s_lshl_b32 s{sT}, s{sP}, 7")
    A(f"s_add_u32 s{sT}, s{sT}, s{sZo}")
    A("s_waitcnt lgkmcnt(0)")
    for b in range(8):
        A(f"v_mfma_f32_16x16x32_bf16 {vr(vP,4)}, {vr(vK+4*b,4)}, {vr(vT+12,4)}, {'0' if b==0 else vr(vP,4)}")
    A(f"v_lshrrev_b32 v{vT+1}, 2, v{vG16}")
    A("s_mov_b32 exec_lo, 0x00010001")
    A("s_mov_b32 exec_hi, 0x00010001")
    A("s_nop 4")
    A(f"buffer_store_dwordx4 {vr(vP,4)}, v{vG16}, {sr(SWS,4)}, s{sT} offen sc1")
    A(f"v_add3_u32 v{vT}, v{vP}, v{vP+1}, v{vP+2}")
    A(f"v_add_u32 v{vT}, v{vT}, v{vP+3}")
    A(f"v_sub_u32 v{vT}, v{vNon}, v{vT}")
    A(f"buffer_store_dword v{vT}, v{vT+1}, {sr(SWS,4)}, s{sT} offen offset:64 sc1")
    A("s_mov_b64 exec, -1")
    LB("L_nz")
    A(f"s_lshl_b32 s{sT}, s{sP}, 10")
    A(f"s_add_u32 s{sT}, s{sT}, s{sKVo}")
    A(f"s_lshl_b32 s{sT2}, s{sP}, 5")
    A(f"s_add_u32 s{sT2}, s{sT2}, s{sCKo}")
    C("---- partial kv[16 features][16 columns of this wave] over the 256 keys, then publish data and check words")
    def kvblocks(b0, b1):
        for b in range(b0, b1):
            A(f"ds_read_b64_tr_b16 {vr(vB+4*b,2)}, v{vA_tr} offset:{4096*b}")
            A(f"ds_read_b64_tr_b16 {vr(vB+4*b+2,2)}, v{vA_tr} offset:{4096*b+32768}")
        for b in range(b0, b1):
            A(f"s_waitcnt lgkmcnt({2*(b1-1-b)})")
            A(f"v_mfma_f32_16x16x32_bf16 {vr(vOwn,4)}, {vr(vK+4*b,4)}, {vr(vB+4*b,4)}, {'0' if b==0 else vr(vOwn,4)}")
    poll(25 + kvs)
    kvblocks(0, kvs)
    poll(33, sleep=False)
    stamp()
    kvblocks(kvs, 8)
    A(f"v_and_b32 v{vA_c}, 0x70, v{vA_lin}")
    A(f"s_lshl_b32 s{sNeed}, s{sP}, 4")
    A(f"v_cmp_eq_u32 vcc, s{sNeed}, v{vA_c}")
    A(f"v_lshl_add_u32 v{vA_c}, v{vA_c}, 1, v{vA_cs}")
    A("s_nop 0")
    A(f"v_cndmask_b32 v{vA_c}, v{vA_c}, v{vNH}, vcc")
    A("s_nop 1")
    A(f"buffer_store_dwordx4 {vr(vOwn,4)}, v{vA_lin}, {sr(SWS,4)}, s{sT} offen sc1")
    A(f"v_add_u32 v{vT}, v{vOwn}, v{vOwn+1}")
    A(f"v_add3_u32 v{vT}, v{vT}, v{vOwn+2}, v{vOwn+3}")
    red8(vT)
    A(f"v_sub_u32 v{vT}, v{vNon}, v{vT}")
    A("s_mov_b32 exec_lo, 0x01010101")
    A("s_mov_b32 exec_hi, 0x01010101")
    A(f"buffer_store_dword v{vT}, v{vA_cs}, {sr(SWS,4)}, s{sT2} offen sc1")
    A("s_mov_b64 exec, -1")
    def zload():
        A(f"buffer_load_dwordx4 {vr(vZg,4)}, v{vA_z}, {sr(SWS,4)}, s{sZo} offen sc1")
        A(f"buffer_load_dword v{vC+3}, v{vA_zc}, {sr(SWS,4)}, s{sZo} offen offset:64 sc1")
    if not fine: stamp()
    C("---- Q phase")
    def den(t):
        A(f"v_mfma_f32_16x16x16_bf16 {vr(vD[t],4)}, {vr(vPHQ[t],2)}, {vr(vZB,2)}, 0")
    def den2(t):
        round4(vD[t], vD[t])
        A(f"v_pk_add_f32 {vr(vD[t],2)}, {vr(vD[t],2)}, {vr(vEps,2)}")
        A(f"v_pk_add_f32 {vr(vD[t]+2,2)}, {vr(vD[t]+2,2)}, {vr(vEps,2)}")
        round4(vD[t], vD[t])
        for i in range(4): A(f"v_rcp_f32 v{vD[t]+i}, v{vD[t]+i}")
    vGa = vK
    def gload(fl):
        for p in range(1, 8):
            A(f"buffer_load_dwordx4 {vr(vGa+4*p,4)}, v{vA_lin}, {sr(SWS,4)}, s{sGp+p-1} offen {fl}")
        A(f"buffer_load_dword v{vC}, v{vA_c}, {sr(SWS,4)}, s{sCKo} offen {fl}")
    pollw(34)
    rdkq(0)
    call(sPhiQ)
    A(f"v_mov_b32 v{vPHQ[0]}, v{vR}")
    A(f"v_mov_b32 v{vPHQ[0]+1}, v{vR+1}")
    A(f"s_cmp_lg_u32 s{sW}, {zg}")
    A("s_cbranch_scc1 L_nzl")
    zload()
    LB("L_nzl")
    stamp()
    C("the partials are read when most of Q has landed; the first waves run tile b's feature map meanwhile")
    A(f"s_mov_b32 s{sRot}, 0")
    A(f"s_cmp_ge_u32 s{sW}, {pb}")
    A("s_cbranch_scc1 L_nb")
    pollw(42, sleep=False)
    rdkq(1)
    call(sPhiQ)
    A(f"s_mov_b32 s{sRot}, 1")
    LB("L_nb")
    A(f"s_cmp_lg_u32 s{sW}, {zg}")
    A("s_cbranch_scc1 L_nzr")
    C("one wave sums the head's eight z and hands the result to the others")
    A("s_waitcnt vmcnt(0)")
    LB("L_zchk")
    A(f"v_add3_u32 v{vC+3}, v{vC+3}, v{vZg}, v{vZg+1}")
    for i in range(4):
        A(f"v_add_f32_dpp v{vT+i}, v{vZg+i}, v{vZg+i} quad_perm:[1,0,3,2] row_mask:0xf bank_mask:0xf")
    A(f"v_add3_u32 v{vC+3}, v{vC+3}, v{vZg+2}, v{vZg+3}")
    for i in range(4):
        A(f"v_add_f32_dpp v{vT+4+i}, v{vT+i}, v{vT+i} quad_perm:[2,3,0,1] row_mask:0xf bank_mask:0xf")
    A(f"v_cmp_ne_u32 vcc, v{vC+3}, v{vNv}")
    for i in range(4):
        A(f"v_add_f32_dpp v{vT+i}, v{vT+4+i}, v{vT+4+i} row_half_mirror row_mask:0xf bank_mask:0xf")
    A("s_cbranch_vccnz L_zbad")
    LB("L_zok")
    A(f"v_cvt_pk_bf16_f32 v{vZB}, v{vT}, v{vT+1}")
    A(f"v_cvt_pk_bf16_f32 v{vZB+1}, v{vT+2}, v{vT+3}")
    A(f"v_mov_b32 v{vT+4}, 1")
    A(f"ds_write_b64 v{vA_zl}, {vr(vZB,2)} offset:32")
    A(f"ds_write_b32 v{vA_fl}, v{vT+4} offset:8")
    LB("L_nzr")
    poll(gat, sleep=False)
    gload(gfl)
    if fine: stamp()
    LB("L_pz")
    A(f"ds_read_b32 v{vT}, v{vA_fl} offset:8")
    A(f"ds_read_b64 {vr(vZB,2)}, v{vA_zl} offset:32")
    A(f"s_sub_u32 s{sSpin}, s{sSpin}, 1")
    A("s_waitcnt lgkmcnt(0)")
    A(f"v_cmp_le_i32 vcc, 1, v{vT}")
    A("s_cbranch_vccnz L_pzk")
    A("s_cbranch_scc0 L_pz")
    A(f"s_mov_b32 s{sSpin}, 0")
    LB("L_pzk")
    den(0)
    A(f"s_cmp_eq_u32 s{sRot}, 0")
    A("s_cbranch_scc1 L_nob")
    den(1)
    A("s_nop 7")
    den2(1)
    LB("L_nob")
    A("s_nop 5")
    den2(0)
    if fine: stamp()
    stamp()
    vS_ = vT
    C("---- sum of the eight partials (own one from registers); verify the seven that were loaded")
    LB("L_gsum")
    for p in range(1, 8):
        A(f"s_waitcnt vmcnt({8 - p if p < 7 else 0})")
        if p == 1:
            if fine: stamp()
            A(f"v_pk_add_f32 {vr(vS_,2)}, {vr(vOwn,2)}, {vr(vGa+4,2)}")
            A(f"v_pk_add_f32 {vr(vS_+2,2)}, {vr(vOwn+2,2)}, {vr(vGa+6,2)}")
            A(f"v_add_u32 v{vC+2}, v{vGa+4}, v{vGa+5}")
            A(f"v_add_u32 v{vC+1}, v{vGa+6}, v{vGa+7}")
            continue
        A(f"v_pk_add_f32 {vr(vS_,2)}, {vr(vS_,2)}, {vr(vGa+4*p,2)}")
        A(f"v_pk_add_f32 {vr(vS_+2,2)}, {vr(vS_+2,2)}, {vr(vGa+4*p+2,2)}")
        A(f"v_add3_u32 v{vC+2}, v{vC+2}, v{vGa+4*p}, v{vGa+4*p+1}")
        A(f"v_add3_u32 v{vC+1}, v{vC+1}, v{vGa+4*p+2}, v{vGa+4*p+3}")
    A(f"v_add3_u32 v{vC}, v{vC}, v{vC+1}, v{vC+2}")
    A(f"v_cvt_pk_bf16_f32 v{vT+12}, v{vS_}, v{vS_+1}")
    A(f"v_cvt_pk_bf16_f32 v{vT+13}, v{vS_+2}, v{vS_+3}")
    A(f"v_add_u32_dpp v{vC}, v{vC}, v{vC} quad_perm:[1,0,3,2] row_mask:0xf bank_mask:0xf")
    A(f"ds_write_b64 v{vA_kvw}, {vr(vT+12,2)}")
    A(f"s_sub_u32 s{sSpin2}, s{sSpin2}, 1")
    A(f"v_add_u32_dpp v{vC}, v{vC}, v{vC} quad_perm:[2,3,0,1] row_mask:0xf bank_mask:0xf")
    A("s_nop 1")
    A(f"v_add_u32_dpp v{vC}, v{vC}, v{vC} row_half_mirror row_mask:0xf bank_mask:0xf")
    A(f"v_cmp_ne_u32 vcc, v{vC}, v{vNon+1}")
    A("s_cbranch_vccnz L_regather")
    LB("L_gok")
    if fine: stamp()
    A("s_waitcnt lgkmcnt(0)")
    A("s_barrier")
    stamp()
    for k in range(4):
        A(f"ds_read_b128 {vr(vKVB+4*k,4)}, v{vA_kvr+k}")
    vN = [vK, vX]
    C("---- numerators, division, stores (tile a, then tile b)")
    def mf(t, dd): return f"v_mfma_f32_16x16x16_bf16 {vr(vN[t]+4*dd,4)}, {vr(vPHQ[t],2)}, {vr(vKVB+2*dd,2)}, 0"
    def rnd(t, dd, r): return f"v_cvt_pk_bf16_f32 v{vN[t]+4*dd+r}, 0, v{vN[t]+4*dd+r}"
    def mul(t, dd, r0): return f"v_pk_mul_f32 {vr(vN[t]+4*dd+r0,2)}, {vr(vN[t]+4*dd+r0,2)}, {vr(vD[t]+r0,2)}"
    def emit_rows(t, r0):
        for r in (r0, r0+1):
            o = vT + 4*r
            for j in range(4):
                A(f"v_cvt_pk_bf16_f32 v{o+j}, v{vN[t]+8*j+r}, v{vN[t]+8*j+4+r}")
            A(f"buffer_store_dwordx4 {vr(o,4)}, v{vA_o}, {sr(SO,4)}, s{sBase+t} offen offset:{256*r} {st}")
    def second_half(t):
        for dd in range(8):
            A(rnd(t, dd, 2)); A(rnd(t, dd, 3))
        for dd in range(8): A(mul(t, dd, 2))
        emit_rows(t, 2)
    A("s_waitcnt lgkmcnt(3)"); A(mf(0,0)); A(mf(0,1))
    A("s_waitcnt lgkmcnt(2)"); A(mf(0,2)); A(mf(0,3))
    A("s_waitcnt lgkmcnt(1)"); A(mf(0,4)); A(mf(0,5))
    A("s_waitcnt lgkmcnt(0)")
    A(rnd(0,0,0)); A(rnd(0,0,1)); A(mf(0,6))
    A(rnd(0,1,0)); A(rnd(0,1,1)); A(mf(0,7))
    for dd in range(2, 8): A(rnd(0,dd,0)); A(rnd(0,dd,1))
    for dd in range(8): A(mul(0, dd, 0))
    emit_rows(0, 0)
    second_half(0)
    A(f"s_cmp_lg_u32 s{sRot}, 0")
    A("s_cbranch_scc1 L_j2")
    pollw(42, sleep=False)
    rdkq(1)
    call(sPhiQ)
    A("s_nop 0")
    den(1)
    d = vD[1]
    for dd in range(4): A(mf(1,dd))
    A("s_nop 3")
    for i in range(4): A(f"v_cvt_pk_bf16_f32 v{d+i}, 0, v{d+i}")
    A(mf(1,4))
    A(f"v_pk_add_f32 {vr(d,2)}, {vr(d,2)}, {vr(vEps,2)}")
    A(f"v_pk_add_f32 {vr(d+2,2)}, {vr(d+2,2)}, {vr(vEps,2)}")
    A(f"v_cvt_pk_bf16_f32 v{d}, 0, v{d}")
    A(mf(1,5))
    for i in range(1, 4): A(f"v_cvt_pk_bf16_f32 v{d+i}, 0, v{d+i}")
    A(mf(1,6))
    A(f"v_rcp_f32 v{d}, v{d}"); A(f"v_rcp_f32 v{d+1}, v{d+1}")
    A(mf(1,7))
    A(f"v_rcp_f32 v{d+2}, v{d+2}"); A(f"v_rcp_f32 v{d+3}, v{d+3}")
    A("s_branch L_j3")
    LB("L_j2")
    for dd in range(8): A(mf(1,dd))
    A("s_nop 0")
    LB("L_j3")
    for dd in range(8): A(rnd(1,dd,0)); A(rnd(1,dd,1))
    for dd in range(8): A(mul(1, dd, 0))
    emit_rows(1, 0)
    second_half(1)
    LB("L_fin")
    if stamps:
        stamp()
        A("s_waitcnt vmcnt(0)")
        stamp(True)
        A("s_waitcnt lgkmcnt(0)")
        assert nst[0] <= 11, nst[0]
        for i in range(12):
            A(f"v_mov_b32 v{vK+i}, s{sSt+2*i}" if i < nst[0] else f"v_mov_b32 v{vK+i}, s{sSpin2}")
        A(f"s_mul_i32 s{sT}, s2, {NW}")
        A(f"s_add_u32 s{sT}, s{sT}, s{sWr}")
        A(f"s_mul_i32 s{sT}, s{sT}, 48")
        A(f"s_add_u32 s{sT}, s{sT}, {WS_STAMP}")
        A("s_mov_b64 exec, 1")
        for i in range(3):
            A(f"buffer_store_dwordx4 {vr(vK+4*i,4)}, off, {sr(SWS,4)}, s{sT} offset:{16*i}")
    LB("L_end")
    A("s_endpgm")

    def phi(isq):
        base = vX
        for s in range(4):
            A(f"s_waitcnt lgkmcnt({3-s})")
            b = base + 4*s
            for i in range(4):
                A(f"v_lshlrev_b32 v{vT+2*i}, 16, v{b+i}")
                A(f"v_and_b32 v{vT+2*i+1}, 0xffff0000, v{b+i}")
            for i in range(4):
                A(f"v_pk_mul_f32 {vr(vT+2*i,2)}, {vr(vT+2*i,2)}, {sr(sScale,2)}")
            for i in range(4):
                A(f"v_cvt_pk_bf16_f32 v{b+i}, v{vT+2*i}, v{vT+2*i+1}")
            if s > 0:
                x = vr(base+4*(s-1), 4); o = vr(vOM+4*(s-1), 4)
                c0 = "0" if s == 1 else vr(vG, 4); c1 = "0" if s == 1 else vr(vP, 4)
                A(f"v_mfma_f32_16x16x32_bf16 {vr(vG,4)}, {x}, {x}, {c0}")
                A(f"v_mfma_f32_16x16x32_bf16 {vr(vP,4)}, {o if isq else x}, {x if isq else o}, {c1}")
        x = vr(base+12, 4); o = vr(vOM+12, 4)
        A(f"v_mfma_f32_16x16x32_bf16 {vr(vG,4)}, {x}, {x}, {vr(vG,4)}")
        A(f"v_mfma_f32_16x16x32_bf16 {vr(vP,4)}, {o if isq else x}, {x if isq else o}, {vr(vP,4)}")
        A("s_nop 6")
        A(f"v_cndmask_b32 v{vT}, 0, v{vG}, {sr(sM[0],2)}")
        for r in range(1, 4):
            A(f"v_cndmask_b32 v{vT}, v{vT}, v{vG+r}, {sr(sM[r],2)}")
        A(f"v_cvt_pk_bf16_f32 v{vXA}, v{vT}, v{vXA+1}")
        round4(vT+4, vP)
        A("s_nop 1")
        a, b = (vr(vNH,2), vr(vXA,2)) if isq else (vr(vXA,2), vr(vNH,2))
        A(f"v_mfma_f32_16x16x16_bf16 {vr(vP,4)}, {a}, {b}, {vr(vT+4,4)}")
        A("s_nop 7")
        round4(vT+8, vP)
        A(f"v_pk_mul_f32 {vr(vT+8,2)}, {vr(vT+8,2)}, {sr(sL2E,2)}")
        A(f"v_pk_mul_f32 {vr(vT+10,2)}, {vr(vT+10,2)}, {sr(sL2E,2)}")
        for i in range(4):
            A(f"v_exp_f32 v{vT+8+i}, v{vT+8+i}")
        A("s_nop 0")
        round4(vT+12, vT+8)
        A(f"v_pk_fma_f32 {vr(vT+12,2)}, {vr(vT+12,2)}, {sr(sQuart,2)}, {vr(vEps,2)}")
        A(f"v_pk_fma_f32 {vr(vT+14,2)}, {vr(vT+14,2)}, {sr(sQuart,2)}, {vr(vEps,2)}")
        A(f"v_cvt_pk_bf16_f32 v{vR}, v{vT+12}, v{vT+13}")
        A(f"v_cvt_pk_bf16_f32 v{vR+1}, v{vT+14}, v{vT+15}")
        A(f"s_setpc_b64 {sr(sRet,2)}")
    C("---- feature map of one 16-row tile: v72..87 raw rows -> v16,17 packed phi (key and query forms)")
    LB("L_phik")
    phi(False)
    LB("L_phiq")
    phi(True)
    C("---- something had not arrived when it was read: read again")
    LB("L_regather")
    A("s_cbranch_scc1 L_gok")
    gload('sc1')
    A("s_branch L_gsum")
    LB("L_zbad")
    A(f"s_sub_u32 s{sSpin2}, s{sSpin2}, 1")
    A("s_cbranch_scc1 L_zgive")
    zload()
    A("s_waitcnt vmcnt(0)")
    A("s_branch L_zchk")
    LB("L_zgive")
    A(f"s_mov_b32 s{sSpin2}, 0")
    A("s_branch L_zok")
    LB("L_codeend")
    return HEADER.format(lds=LDS_TOTAL) + "\n".join(x for x in L if x) + FOOTER.format(vgpr=NV, sgpr=98 if stamps else 72, acc=NV)

if __name__ == '__main__':
    out = sys.argv[1]
    kw = {}
    for a in sys.argv[2:]:
        k, v = a.split('=')
        kw[k] = v if k in ('ld', 'st', 'gfl') else (tuple(map(int, v.split(','))) if k == 'rot' else int(v))
    open(out, 'w').write(gen(**kw))
```

```python
import sys, struct

def f2u(x): return struct.unpack('<I', struct.pack('<f', x))[0]

HEADER = """; Linear (random-feature) attention, B=1 H=32 S=2048 D=128 M=16, bf16, one launch.
;
; Wave 0 (loader) streams omega, K, V, Q into LDS by DMA with a bounded window and publishes a landed-tile count.
; Hand-off between workgroups: write-through stores of the partial sums plus check words; a reader accepts what it
;
; @launch grid=(256,1,1) block=(576,1,1) lds={lds}
.amdgcn_target "amdgcn-amd-amdhsa--gfx950"
.text
.globl standalone__linear_kernel_rfa__prompt_kernel
.p2align 8
.type standalone__linear_kernel_rfa__prompt_kernel,@function
standalone__linear_kernel_rfa__prompt_kernel:
"""
FOOTER = """
.section .rodata,"a"
.p2align 6
.amdhsa_kernel standalone__linear_kernel_rfa__prompt_kernel
  .amdhsa_next_free_vgpr {vgpr}
  .amdhsa_next_free_sgpr {sgpr}
  .amdhsa_accum_offset {acc}
  .amdhsa_group_segment_fixed_size 0
  .amdhsa_kernarg_size 56
  .amdhsa_user_sgpr_count 2
  .amdhsa_user_sgpr_kernarg_segment_ptr 1
  .amdhsa_system_sgpr_workgroup_id_x 1
  .amdhsa_float_denorm_mode_32 3
  .amdhsa_float_denorm_mode_16_64 3
.end_amdhsa_kernel
"""

LDS_V, LDS_KQ, LDS_PHI, LDS_KVT, LDS_FLAG, LDS_OM = 0, 65536, 131072, 139264, 143360, 143616
LDS_TOTAL = LDS_OM + 4096
HSTRIDE = 69632
WS_CHK, WS_ZS = 65536, 67584
WS_BYTES = 4 << 20
WS_STAMP = 3 << 20
NW = 9

def gen(ld='nt', st='nt', gfl='', stamps=False, W=28, W2=36, spin=200000, lprio=3, slp=1, pre=2, rot=(3,15), hmap=0,
        nroot=8, pf=1, fine=0, kvs=5, pb=4, gat=45, nw=4, zw=0, zg=0, pfw=1):
    L = []
    def A(s): L.append("    " + s)
    def C(s): L.append("    ; " + s)
    def LB(s): L.append(s + ":")
    def vr(a, n): return f"v[{a}:{a+n-1}]"
    def sr(a, n): return f"s[{a}:{a+n-1}]"
    G, G2 = W // 4, W2 // 4
    SC, SOM, SO, SWS, SDB = 4, 8, 12, 16, 20
    sPQ, sPV = 24, 26
    sClk, sZo = 24, 26
    sBase, sBase2, sW, sH, sP, sWr = 28, 29, 30, 31, 32, 33
    sScale, sL2E, sQuart = 34, 36, 38
    sM = [40, 42, 44, 46]
    sK1 = 48
    sKVo, sCKo, sT2, sT, sSpin, sM0, sSpin2, sNeed, sRot = 49, 50, 51, 52, 53, 54, 55, 56, 57
    sRet = 58
    sPhiK, sPhiQ = 60, 62
    sOff, sEnd, sLds, sPr, sPh = 34, 35, 36, 37, 38
    sGp = 64
    sSt = 72
    vA_cs, vA_fl, vNv, vA_lin, vA_tr, vA_phi, vA_kvw = 0, 1, 4, 5, 6, 7, 8
    vA_z, vA_kvr, vA_o, vA_phw = 9, 10, 14, 15
    vPHQ = [2, 16]
    vR = 16
    vEps, vNH, vXA = 18, 20, 22
    vOM = 24
    vK = 40
    vX = 72
    vC, vZg, vOwn, vNon = 88, 92, 96, 100
    vT = 104
    vP, vG = 120, 124
    vB = 128
    vKVB, vZB, vD = 128, 144, [148, 152]
    vA_c = 157
    vA_kr = 160
    vA_zc, vG16, vA_zl = 165, 166, 167
    NV = 168
    nst = [0]
    lite = (stamps == 2)
    def stamp(force=False):
        if lite and not force:
            nst[0] += 1
            return
        if stamps:
            A(f"s_memrealtime {sr(sSt + 2*nst[0], 2)}")
            nst[0] += 1
    def xstamp(i):
        if stamps and not lite: A(f"s_memrealtime {sr(sSt + 2*i, 2)}")
    def srdc(d, n):
        A(f"s_mov_b32 s{d+2}, {n}"); A(f"s_mov_b32 s{d+3}, 0x20000")

    stamp(True)
    A(f"s_load_dwordx2 {sr(SC,2)}, s[0:1], 8   ; k")
    A(f"s_load_dwordx2 {sr(SOM,2)}, s[0:1], 24  ; omega")
    A("s_cmp_ge_u32 s2, 256")
    A("s_cbranch_scc1 L_end")
    A(f"v_readfirstlane_b32 s{sWr}, v0")
    vc, vg = vT + 1, vT + 2
    A(f"v_and_b32 v{vc}, 15, v0")
    A(f"v_bfe_u32 v{vg}, v0, 4, 2")
    if hmap == 0:
        A(f"s_and_b32 s{sH}, s2, 31")
        A(f"s_lshr_b32 s{sP}, s2, 5")
    else:
        A(f"s_lshr_b32 s{sH}, s2, 3")
        A(f"s_and_b32 s{sP}, s2, 7")
    A(f"v_xor_b32 v{vT+4}, v{vc}, v{vg}")
    A(f"v_lshlrev_b32 v{vT+4}, 4, v{vT+4}")
    A(f"s_lshl_b32 s{sBase}, s{sH}, 19")
    A(f"s_lshl_b32 s{sT}, s{sP}, 16")
    A(f"s_add_u32 s{sBase}, s{sBase}, s{sT}")
    A(f"s_bfe_u32 s{sRot}, s2, {rot[0] | (rot[1].bit_length() << 16):#x}")
    A(f"s_lshl_b32 s{sRot}, s{sRot}, 12")
    A(f"s_lshr_b32 s{sWr}, s{sWr}, 6")
    A("s_cbranch_scc1 L_main")

    C("---- loader: streams omega, K, V, Q into LDS by DMA and publishes a landed-tile count")
    C("tile j (16 rows, 4 KiB) of this workgroup's block is read from tile (j + rot) & 15; 16-byte chunks are")
    C("xor-swizzled inside each row so that the later LDS reads are free of bank conflicts")
    vA = 40; vAq = 44; vAv = 48; vS = 52; vAo = 54
    if lprio: A(f"s_setprio {lprio}")
    A(f"v_lshl_add_u32 v{vA}, v{vg}, 8, v{vT+4}")
    for i in range(1, 4):
        A(f"v_xor_b32 v{vA+i}, {64*i}, v{vA}")
    srdc(SC, 1 << 24)
    A(f"s_mov_b32 m0, {LDS_KQ}")
    A(f"s_add_u32 s{sT}, s{sBase}, s{sRot}")
    A("s_waitcnt lgkmcnt(0)")
    def loads():
        for i in range(4):
            A(f"buffer_load_dwordx4 v{vA+i}, {sr(SC,4)}, s{sT} offen offset:{i*1024} {ld} lds")
    loads()
    A(f"s_load_dwordx2 {sr(sPQ,2)}, s[0:1], 0")
    A(f"s_load_dwordx2 {sr(sPV,2)}, s[0:1], 16")
    if stamps: A(f"s_load_dwordx2 {sr(SWS,2)}, s[0:1], 48")
    srdc(SOM, 4096)
    A(f"v_lshlrev_b32 v{vT+3}, 4, v{vg}")
    A(f"v_lshl_add_u32 v{vAo}, v{vc}, 8, v{vT+3}")
    for s in range(4):
        A(f"s_mov_b32 m0, {LDS_OM + s*1024 - s*64}")
        A(["s_nop 0", f"s_mov_b32 s{sOff}, 4096", f"s_mov_b32 s{sEnd}, {pre*4096}", f"s_mov_b32 s{sLds}, {LDS_KQ}"][s])
        A(f"buffer_load_dwordx4 v{vAo}, {sr(SOM,4)}, 0 offen offset:{64*s} lds")
    A(f"s_mov_b32 s{sPr}, {2 - G}")
    A(f"s_mov_b32 s{sPh}, 0")
    A(f"v_mov_b32 v{vS}, 0")
    A(f"v_mov_b32 v{vA_fl}, {LDS_FLAG}")
    A(f"ds_write_b32 v{vA_fl}, v{vS} offset:8")
    for i in range(4): A(f"v_mov_b32 v{vAq+i}, v{vA+i}")
    A(f"v_lshlrev_b32 v{vT+5}, 1, v{vg}")
    A(f"v_xor_b32 v{vT+5}, v{vT+5}, v{vc}")
    A(f"v_lshlrev_b32 v{vT+5}, 4, v{vT+5}")
    A(f"v_lshl_add_u32 v{vAv}, v{vg}, 8, v{vT+5}")
    def prep():
        A(f"s_add_u32 m0, s{sLds}, s{sOff}")
        A(f"s_add_u32 s{sT}, s{sRot}, s{sOff}")
        A(f"s_and_b32 s{sT}, s{sT}, 0xffff")
        A(f"s_add_u32 s{sT}, s{sBase}, s{sT}")
    def body(w, end, label, clamp=False):
        A(f"s_waitcnt vmcnt({w})")
        A(f"ds_write_b32 v{vA_fl}, v{vS}")
        loads()
        A(f"s_add_u32 s{sOff}, s{sOff}, 4096")
        prep()
        A(f"s_add_u32 s{sPr}, s{sPr}, 1")
        if clamp:
            A(f"s_max_i32 s{sPh}, s{sPr}, 33")
            A(f"v_mov_b32 v{vS}, s{sPh}")
        else:
            A(f"v_mov_b32 v{vS}, s{sPr}")
        A(f"s_cmp_lg_u32 s{sOff}, {end}")
        A(f"s_cbranch_scc1 {label}")
    LB("L_lp0")
    prep()
    LB("L_lp")
    body(W, f"s{sEnd}", "L_lp")
    A(f"s_add_u32 s{sPh}, s{sPh}, 1")
    A(f"s_cmp_eq_u32 s{sPh}, 1")
    A("s_cbranch_scc0 L_ph2")
    A("s_waitcnt lgkmcnt(0)")
    A("s_barrier")
    xstamp(1)
    A(f"s_mov_b32 s{sEnd}, 65536")
    A("s_branch L_lp")
    LB("L_ph2")
    A(f"s_cmp_eq_u32 s{sPh}, 2")
    A("s_cbranch_scc0 L_ph3")
    A(f"s_mov_b64 {sr(SC,2)}, {sr(sPV,2)}")
    A(f"s_mov_b32 s{sOff}, 0")
    A(f"s_mov_b32 s{sLds}, {LDS_V}")
    A(f"v_mov_b32 v{vA}, v{vAv}")
    A(f"v_xor_b32 v{vA+1}, 128, v{vAv}")
    A(f"v_mov_b32 v{vA+2}, v{vAv}")
    A(f"v_xor_b32 v{vA+3}, 128, v{vAv}")
    A("s_branch L_lp0")
    LB("L_ph3")
    A(f"s_cmp_eq_u32 s{sPh}, 3")
    A("s_cbranch_scc0 L_ph4")
    A(f"s_mov_b64 {sr(SC,2)}, {sr(sPQ,2)}")
    A(f"s_mov_b32 s{sOff}, 0")
    A(f"s_mov_b32 s{sEnd}, {(G+1)*4096}")
    A(f"s_mov_b32 s{sLds}, {LDS_KQ}")
    for i in range(4): A(f"v_mov_b32 v{vA+i}, v{vAq+i}")
    xstamp(2)
    A("s_barrier")
    xstamp(3)
    A("s_branch L_lp0")
    LB("L_ph4")
    assert G < 14
    A(f"s_add_i32 s{sPr}, s{sPr}, {G - G2}")
    A(f"s_max_i32 s{sPh}, s{sPr}, 33")
    A(f"v_mov_b32 v{vS}, s{sPh}")
    LB("L_lq")
    body(W2, 65536, "L_lq", G2 > G + 1)
    xstamp(4)
    for k in range(min(G2, 15), -1, -1):
        A(f"v_mov_b32 v{vS+(k&1)}, {49 - k}")
        A(f"s_waitcnt vmcnt({4*k})")
        A(f"ds_write_b32 v{vA_fl}, v{vS+(k&1)}")
    if stamps:
        for i in range(5, 9): xstamp(i)
        srdc(SWS, WS_BYTES)
        A(f"s_mov_b32 s{sSpin2}, {spin}")
        A("s_branch L_fin")
    else:
        A("s_endpgm")

    C("---- main waves")
    LB("L_main")
    A(f"s_load_dwordx2 {sr(SO,2)}, s[0:1], 32")
    A(f"s_load_dwordx2 {sr(SDB,2)}, s[0:1], 40")
    A(f"s_load_dwordx2 {sr(SWS,2)}, s[0:1], 48")
    A(f"s_memrealtime {sr(sClk,2)}")
    A(f"s_getpc_b64 {sr(sPhiK,2)}")
    LB("L_pc")
    if pf:
        C("pull the rest of the code into the L2 while the first tiles are in flight")
        A(f"s_cmp_lg_u32 s{sWr}, {pfw}")
        A("s_cbranch_scc1 L_nopf")
        A(f"v_and_b32 v{vT+5}, 63, v0")
        A(f"v_lshlrev_b32 v{vT+5}, 7, v{vT+5}")
        A(f"v_min_u32 v{vT+5}, L_codeend-L_pc-4, v{vT+5}")
        A(f"global_load_dword v164, v{vT+5}, {sr(sPhiK,2)}")
        LB("L_nopf")
    A("s_barrier   ; B0")
    A(f"v_mov_b32 v{vA_fl}, {LDS_FLAG}")
    A(f"v_lshlrev_b32 v{vG16}, 4, v{vg}")
    A(f"v_and_b32 v{vA_lin}, 63, v0")
    A(f"v_lshlrev_b32 v{vA_lin}, 4, v{vA_lin}")
    A(f"s_mul_i32 s{sKVo}, s{sH}, {HSTRIDE}")
    A(f"v_add_u32 v{vA_phi}, {LDS_PHI}, v{vA_lin}")
    A(f"s_mov_b32 s{sSpin}, {spin*16}")
    A(f"s_mov_b32 s{sSpin2}, {spin}")
    srdc(SWS, WS_BYTES); srdc(SDB, 256); srdc(SO, 1 << 24)
    A(f"s_add_u32 s{sPhiQ}, s{sPhiK}, L_phiq-L_pc")
    A(f"s_addc_u32 s{sPhiQ+1}, s{sPhiK+1}, 0")
    A(f"s_add_u32 s{sPhiK}, s{sPhiK}, L_phik-L_pc")
    A(f"s_addc_u32 s{sPhiK+1}, s{sPhiK+1}, 0")
    A(f"s_sub_u32 s{sW}, s{sWr}, 1")
    A(f"s_lshl_b32 s{sM0}, s{sW}, 12")
    A(f"s_add_u32 s{sT}, s{sM0}, s{sRot}")
    A(f"s_and_b32 s{sT}, s{sT}, 0xffff")
    A(f"s_xor_b32 s{sBase2}, s{sT}, 0x8000")
    A(f"s_add_u32 s{sBase2}, s{sBase}, s{sBase2}")
    A(f"s_add_u32 s{sBase}, s{sBase}, s{sT}")
    A(f"s_add_u32 s{sT}, s{sM0}, {LDS_KQ}")
    A(f"s_lshl_b32 s{sM0}, s{sW}, 13")
    A(f"v_lshl_add_u32 v{vT+4}, v{vc}, 8, v{vT+4}")
    A(f"v_add_u32 v{vA_kr}, s{sT}, v{vT+4}")
    for i in range(1, 4):
        A(f"v_xor_b32 v{vA_kr+i}, {64*i}, v{vA_kr}")
    A(f"s_add_u32 s{sZo}, s{sKVo}, {WS_ZS}")
    A(f"s_lshl_b32 s{sT}, s{sW}, 8")
    A(f"s_add_u32 s{sCKo}, s{sKVo}, s{sT}")
    A(f"s_add_u32 s{sCKo}, s{sCKo}, {WS_CHK}")
    A(f"s_add_u32 s{sKVo}, s{sKVo}, s{sM0}")
    for i in range(7):
        A(f"s_add_u32 s{sGp+i}, s{sP}, {i+1}")
        A(f"s_and_b32 s{sGp+i}, s{sGp+i}, 7")
        A(f"s_lshl_b32 s{sGp+i}, s{sGp+i}, 10")
        A(f"s_add_u32 s{sGp+i}, s{sGp+i}, s{sKVo}")
    sc = f2u(128.0 ** -0.25)
    A(f"s_mov_b32 s{sScale}, {sc:#x}"); A(f"s_mov_b32 s{sScale+1}, {sc:#x}")
    l2e = f2u(1.4426950408889634)
    A(f"s_mov_b32 s{sL2E}, {l2e:#x}"); A(f"s_mov_b32 s{sL2E+1}, {l2e:#x}")
    A(f"s_mov_b32 s{sQuart}, {f2u(0.25):#x}"); A(f"s_mov_b32 s{sQuart+1}, {f2u(0.25):#x}")
    for r in range(4):
        A(f"s_mov_b32 s{sM[r]}, {(1<<r)|(1<<(20+r)):#x}")
        A(f"s_mov_b32 s{sM[r]+1}, {(1<<(8+r))|(1<<(28+r)):#x}")
    A(f"s_mov_b32 s{sK1}, 0x9E3779B1")
    A(f"v_mov_b32 v{vEps}, 0x35860000"); A(f"v_mov_b32 v{vEps+1}, 0x35860000")
    A(f"v_mov_b32 v{vNH}, 0xbf00bf00"); A(f"v_mov_b32 v{vNH+1}, 0xbf00bf00")
    A(f"v_mov_b32 v{vXA+1}, 0")
    A(f"s_lshl_b32 s{sT}, s{sW}, 10")
    A(f"v_add_u32 v{vA_phw}, s{sT}, v{vA_phi}")
    A(f"v_lshrrev_b32 v{vT+4}, 2, v{vc}")
    A(f"v_lshl_add_u32 v{vT+4}, v{vg}, 2, v{vT+4}")
    A(f"v_and_b32 v{vT+5}, 7, v{vT+4}")
    A(f"v_xor_b32 v{vT+5}, s{sW}, v{vT+5}")
    A(f"v_lshlrev_b32 v{vT+5}, 5, v{vT+5}")
    A(f"v_lshl_add_u32 v{vT+5}, v{vT+4}, 8, v{vT+5}")
    A(f"v_and_b32 v{vT+7}, 3, v{vc}")
    A(f"v_lshl_add_u32 v{vA_tr}, v{vT+7}, 3, v{vT+5}")
    A(f"s_lshr_b32 s{sT}, s{sW}, 1")
    A(f"v_bfe_u32 v{vT+4}, v{vc}, 1, 2")
    A(f"v_xor_b32 v{vT+4}, s{sT}, v{vT+4}")
    A(f"v_lshlrev_b32 v{vT+4}, 4, v{vT+4}")
    A(f"v_and_b32 v{vT+5}, 1, v{vc}")
    A(f"v_lshl_add_u32 v{vT+4}, v{vT+5}, 3, v{vT+4}")
    A(f"v_lshrrev_b32 v{vT+5}, 3, v{vc}")
    A(f"v_lshl_add_u32 v{vT+4}, v{vT+5}, 6, v{vT+4}")
    A(f"v_lshl_add_u32 v{vT+4}, v{vg}, 10, v{vT+4}")
    A(f"s_lshl_b32 s{sT}, s{sW}, 7")
    A(f"s_add_u32 s{sT}, s{sT}, {LDS_KVT}")
    A(f"v_add_u32 v{vA_kvw}, s{sT}, v{vT+4}")
    A(f"v_lshrrev_b32 v{vT+4}, 2, v{vc}")
    A(f"v_lshlrev_b32 v{vT+4}, 4, v{vT+4}")
    A(f"v_lshl_add_u32 v{vT+4}, v{vc}, 6, v{vT+4}")
    A(f"v_lshl_add_u32 v{vT+4}, v{vg}, 10, v{vT+4}")
    A(f"v_add_u32 v{vA_kvr}, {LDS_KVT}, v{vT+4}")
    for k in range(1, 4):
        A(f"v_xor_b32 v{vA_kvr+k}, {16*k}, v{vA_kvr}")
    A(f"v_lshrrev_b32 v{vA_cs}, 5, v{vA_lin}")
    A(f"v_and_b32 v{vA_cs}, 28, v{vA_cs}")
    A(f"v_lshlrev_b32 v{vT+4}, 4, v{vc}")
    A(f"v_lshl_add_u32 v{vA_o}, v{vg}, 10, v{vT+4}")
    A(f"v_and_b32 v{vNv}, 7, v{vc}")
    A(f"v_lshl_add_u32 v{vA_z}, v{vNv}, 7, v{vG16}")
    A(f"v_lshlrev_b32 v{vT+4}, 2, v{vg}")
    A(f"v_lshl_add_u32 v{vA_zc}, v{vNv}, 7, v{vT+4}")
    A(f"v_lshl_add_u32 v{vA_zl}, v{vg}, 3, v{vA_fl}")
    A("s_waitcnt lgkmcnt(0)")
    C("the first few workgroups offer a launch nonce; the first offer to land wins")
    A(f"s_lshl_b32 s{sT}, s2, 3")
    A(f"s_add_u32 s{sT}, s{sT}, s{sW}")
    A(f"s_and_b32 s{sT}, s{sT}, {(~((nroot-1) << 3)) & 0xffffffff:#x}")
    A("s_cbranch_scc1 L_noroot")
    A(f"s_or_b32 s{sClk}, s{sClk}, 0x80000000")
    A(f"v_mov_b32 v{vXA}, s{sClk}")
    A("s_mov_b64 exec, 1")
    A(f"buffer_atomic_cmpswap {vr(vXA,2)}, off, {sr(SDB,4)}, 0 sc1")
    A("s_mov_b64 exec, -1")
    LB("L_noroot")

    npoll = [0]
    def poll(need, sleep=True):
        n = npoll[0]; npoll[0] += 1
        LB(f"L_p{n}")
        A(f"ds_read_b32 v{vT}, v{vA_fl}")
        A(f"s_sub_u32 s{sSpin}, s{sSpin}, 1")
        A("s_waitcnt lgkmcnt(0)")
        A(f"v_cmp_le_i32 vcc, {need}, v{vT}")
        A(f"s_cbranch_vccnz L_pk{n}")
        if sleep and slp: A(f"s_sleep {slp}")
        A(f"s_cbranch_scc0 L_p{n}")
        A(f"s_mov_b32 s{sSpin}, 0")
        LB(f"L_pk{n}")
    def pollw(base, sleep=True):
        A(f"s_add_u32 s{sNeed}, s{sW}, {base}")
        poll(f"s{sNeed}", sleep)
    def rdkq(t):
        for s in range(4):
            A(f"ds_read_b128 {vr(vX+4*s,4)}, v{vA_kr+s} offset:{t*32768}")
    def round4(dst, src):
        for i in range(4):
            A(f"v_cvt_pk_bf16_f32 v{dst+i}, 0, v{src+i}")
    def red8(r):
        for pat in ("quad_perm:[1,0,3,2]", "quad_perm:[2,3,0,1]", "row_half_mirror"):
            A("s_nop 1")
            A(f"v_add_u32_dpp v{r}, v{r}, v{r} {pat} row_mask:0xf bank_mask:0xf")
    def call(s): A(f"s_swappc_b64 {sr(sRet,2)}, {sr(s,2)}")

    C("---- K phase: phi_k of this wave's two key tiles -> LDS")
    pollw(2)
    if not fine: stamp()
    for s in range(4):
        A(f"ds_read_b128 {vr(vOM+4*s,4)}, v{vA_phi} offset:{LDS_OM-LDS_PHI+1024*s}")
    rdkq(0)
    call(sPhiK)
    A(f"v_mov_b32 v{vK}, v{vR}")
    A(f"v_mov_b32 v{vK+1}, v{vR+1}")
    A(f"s_cmp_lg_u32 s{sW}, {nw}")
    A("s_cbranch_scc1 L_nn1")
    A(f"buffer_load_dword v{vNon}, off, {sr(SDB,4)}, 0 sc1")
    LB("L_nn1")
    pollw(10)
    if not fine: stamp()
    rdkq(1)
    call(sPhiK)
    A(f"ds_write2_b64 v{vA_phw}, {vr(vK,2)}, {vr(vR,2)} offset0:0 offset1:1")
    A(f"s_cmp_lg_u32 s{sW}, {nw}")
    A("s_cbranch_scc1 L_nn2")
    LB("L_non")
    A(f"s_sub_u32 s{sSpin2}, s{sSpin2}, 1")
    A("s_waitcnt vmcnt(0)")
    A(f"v_cmp_ne_u32 vcc, 0, v{vNon}")
    A("s_cbranch_vccnz L_nonk")
    A(f"buffer_load_dword v{vNon}, off, {sr(SDB,4)}, 0 sc1")
    A("s_cbranch_scc0 L_non")
    A(f"s_mov_b32 s{sSpin2}, 0")
    A("s_waitcnt vmcnt(0)")
    LB("L_nonk")
    A(f"ds_write_b32 v{vA_fl}, v{vNon} offset:4")
    LB("L_nn2")
    A("s_waitcnt lgkmcnt(0)")
    A("s_barrier   ; B1")
    if not fine: stamp()
    A(f"ds_read_b32 v{vNon}, v{vA_fl} offset:4")
    for b in range(8):
        A(f"ds_read_b128 {vr(vK+4*b,4)}, v{vA_phi} offset:{1024*b}")
    C("per-slot nonces: lane & 7 -> v4, own -> v100, expected sum of the other seven -> v101")
    A("s_waitcnt lgkmcnt(8)")
    A(f"v_add_u32 v{vNv}, v{vNv}, v{vNon}")
    A(f"v_mul_lo_u32 v{vNv}, v{vNv}, s{sK1}")
    A(f"v_lshrrev_b32 v{vT}, 15, v{vNv}")
    A(f"v_xor_b32 v{vNv}, v{vNv}, v{vT}")
    A(f"v_mul_lo_u32 v{vNv}, v{vNv}, s{sK1}")
    A(f"v_lshrrev_b32 v{vT}, 13, v{vNv}")
    A(f"v_xor_b32 v{vNv}, v{vNv}, v{vT}")
    A(f"v_mov_b32 v{vNon+1}, v{vNv}")
    A(f"v_readlane_b32 s{sT}, v{vNv}, s{sP}")
    red8(vNon+1)
    A(f"v_mov_b32 v{vNon}, s{sT}")
    A(f"v_sub_u32 v{vNon+1}, v{vNon+1}, v{vNon}")
    A(f"s_cmp_lg_u32 s{sW}, {zw}")
    A("s_cbranch_scc1 L_nz")
    C("z of this workgroup's keys")
    A(f"v_mov_b32 v{vT+12}, 0x3f803f80")
    for i in range(1, 4): A(f"v_mov_b32 v{vT+12+i}, v{vT+12}")
    A(f"s_lshl_b32 s{sT}, s{sP}, 7")
    A(f"s_add_u32 s{sT}, s{sT}, s{sZo}")
    A("s_waitcnt lgkmcnt(0)")
    for b in range(8):
        A(f"v_mfma_f32_16x16x32_bf16 {vr(vP,4)}, {vr(vK+4*b,4)}, {vr(vT+12,4)}, {'0' if b==0 else vr(vP,4)}")
    A(f"v_lshrrev_b32 v{vT+1}, 2, v{vG16}")
    A("s_mov_b32 exec_lo, 0x00010001")
    A("s_mov_b32 exec_hi, 0x00010001")
    A("s_nop 4")
    A(f"buffer_store_dwordx4 {vr(vP,4)}, v{vG16}, {sr(SWS,4)}, s{sT} offen sc1")
    A(f"v_add3_u32 v{vT}, v{vP}, v{vP+1}, v{vP+2}")
    A(f"v_add_u32 v{vT}, v{vT}, v{vP+3}")
    A(f"v_sub_u32 v{vT}, v{vNon}, v{vT}")
    A(f"buffer_store_dword v{vT}, v{vT+1}, {sr(SWS,4)}, s{sT} offen offset:64 sc1")
    A("s_mov_b64 exec, -1")
    LB("L_nz")
    A(f"s_lshl_b32 s{sT}, s{sP}, 10")
    A(f"s_add_u32 s{sT}, s{sT}, s{sKVo}")
    A(f"s_lshl_b32 s{sT2}, s{sP}, 5")
    A(f"s_add_u32 s{sT2}, s{sT2}, s{sCKo}")
    C("---- partial kv[16 features][16 columns of this wave] over the 256 keys, then publish data and check words")
    def kvblocks(b0, b1):
        for b in range(b0, b1):
            A(f"ds_read_b64_tr_b16 {vr(vB+4*b,2)}, v{vA_tr} offset:{4096*b}")
            A(f"ds_read_b64_tr_b16 {vr(vB+4*b+2,2)}, v{vA_tr} offset:{4096*b+32768}")
        for b in range(b0, b1):
            A(f"s_waitcnt lgkmcnt({2*(b1-1-b)})")
            A(f"v_mfma_f32_16x16x32_bf16 {vr(vOwn,4)}, {vr(vK+4*b,4)}, {vr(vB+4*b,4)}, {'0' if b==0 else vr(vOwn,4)}")
    poll(25 + kvs)
    kvblocks(0, kvs)
    poll(33, sleep=False)
    stamp()
    kvblocks(kvs, 8)
    A(f"v_and_b32 v{vA_c}, 0x70, v{vA_lin}")
    A(f"s_lshl_b32 s{sNeed}, s{sP}, 4")
    A(f"v_cmp_eq_u32 vcc, s{sNeed}, v{vA_c}")
    A(f"v_lshl_add_u32 v{vA_c}, v{vA_c}, 1, v{vA_cs}")
    A("s_nop 0")
    A(f"v_cndmask_b32 v{vA_c}, v{vA_c}, v{vNH}, vcc")
    A("s_nop 1")
    A(f"buffer_store_dwordx4 {vr(vOwn,4)}, v{vA_lin}, {sr(SWS,4)}, s{sT} offen sc1")
    A(f"v_add_u32 v{vT}, v{vOwn}, v{vOwn+1}")
    A(f"v_add3_u32 v{vT}, v{vT}, v{vOwn+2}, v{vOwn+3}")
    red8(vT)
    A(f"v_sub_u32 v{vT}, v{vNon}, v{vT}")
    A("s_mov_b32 exec_lo, 0x01010101")
    A("s_mov_b32 exec_hi, 0x01010101")
    A(f"buffer_store_dword v{vT}, v{vA_cs}, {sr(SWS,4)}, s{sT2} offen sc1")
    A("s_mov_b64 exec, -1")
    def zload():
        A(f"buffer_load_dwordx4 {vr(vZg,4)}, v{vA_z}, {sr(SWS,4)}, s{sZo} offen sc1")
        A(f"buffer_load_dword v{vC+3}, v{vA_zc}, {sr(SWS,4)}, s{sZo} offen offset:64 sc1")
    if not fine: stamp()
    C("---- Q phase")
    def den(t):
        A(f"v_mfma_f32_16x16x16_bf16 {vr(vD[t],4)}, {vr(vPHQ[t],2)}, {vr(vZB,2)}, 0")
    def den2(t):
        round4(vD[t], vD[t])
        A(f"v_pk_add_f32 {vr(vD[t],2)}, {vr(vD[t],2)}, {vr(vEps,2)}")
        A(f"v_pk_add_f32 {vr(vD[t]+2,2)}, {vr(vD[t]+2,2)}, {vr(vEps,2)}")
        round4(vD[t], vD[t])
        for i in range(4): A(f"v_rcp_f32 v{vD[t]+i}, v{vD[t]+i}")
    vGa = vK
    def gload(fl):
        for p in range(1, 8):
            A(f"buffer_load_dwordx4 {vr(vGa+4*p,4)}, v{vA_lin}, {sr(SWS,4)}, s{sGp+p-1} offen {fl}")
        A(f"buffer_load_dword v{vC}, v{vA_c}, {sr(SWS,4)}, s{sCKo} offen {fl}")
    pollw(34)
    rdkq(0)
    call(sPhiQ)
    A(f"v_mov_b32 v{vPHQ[0]}, v{vR}")
    A(f"v_mov_b32 v{vPHQ[0]+1}, v{vR+1}")
    A(f"s_cmp_lg_u32 s{sW}, {zg}")
    A("s_cbranch_scc1 L_nzl")
    zload()
    LB("L_nzl")
    stamp()
    C("the partials are read when most of Q has landed; the first waves run tile b's feature map meanwhile")
    A(f"s_mov_b32 s{sRot}, 0")
    A(f"s_cmp_ge_u32 s{sW}, {pb}")
    A("s_cbranch_scc1 L_nb")
    pollw(42, sleep=False)
    rdkq(1)
    call(sPhiQ)
    A(f"s_mov_b32 s{sRot}, 1")
    LB("L_nb")
    A(f"s_cmp_lg_u32 s{sW}, {zg}")
    A("s_cbranch_scc1 L_nzr")
    C("one wave sums the head's eight z and hands the result to the others")
    A("s_waitcnt vmcnt(0)")
    LB("L_zchk")
    A(f"v_add3_u32 v{vC+3}, v{vC+3}, v{vZg}, v{vZg+1}")
    for i in range(4):
        A(f"v_add_f32_dpp v{vT+i}, v{vZg+i}, v{vZg+i} quad_perm:[1,0,3,2] row_mask:0xf bank_mask:0xf")
    A(f"v_add3_u32 v{vC+3}, v{vC+3}, v{vZg+2}, v{vZg+3}")
    for i in range(4):
        A(f"v_add_f32_dpp v{vT+4+i}, v{vT+i}, v{vT+i} quad_perm:[2,3,0,1] row_mask:0xf bank_mask:0xf")
    A(f"v_cmp_ne_u32 vcc, v{vC+3}, v{vNv}")
    for i in range(4):
        A(f"v_add_f32_dpp v{vT+i}, v{vT+4+i}, v{vT+4+i} row_half_mirror row_mask:0xf bank_mask:0xf")
    A("s_cbranch_vccnz L_zbad")
    LB("L_zok")
    A(f"v_cvt_pk_bf16_f32 v{vZB}, v{vT}, v{vT+1}")
    A(f"v_cvt_pk_bf16_f32 v{vZB+1}, v{vT+2}, v{vT+3}")
    A(f"v_mov_b32 v{vT+4}, 1")
    A(f"ds_write_b64 v{vA_zl}, {vr(vZB,2)} offset:32")
    A(f"ds_write_b32 v{vA_fl}, v{vT+4} offset:8")
    LB("L_nzr")
    poll(gat, sleep=False)
    gload(gfl)
    if fine: stamp()
    LB("L_pz")
    A(f"ds_read_b32 v{vT}, v{vA_fl} offset:8")
    A(f"ds_read_b64 {vr(vZB,2)}, v{vA_zl} offset:32")
    A(f"s_sub_u32 s{sSpin}, s{sSpin}, 1")
    A("s_waitcnt lgkmcnt(0)")
    A(f"v_cmp_le_i32 vcc, 1, v{vT}")
    A("s_cbranch_vccnz L_pzk")
    A("s_cbranch_scc0 L_pz")
    A(f"s_mov_b32 s{sSpin}, 0")
    LB("L_pzk")
    den(0)
    A(f"s_cmp_eq_u32 s{sRot}, 0")
    A("s_cbranch_scc1 L_nob")
    den(1)
    A("s_nop 7")
    den2(1)
    LB("L_nob")
    A("s_nop 5")
    den2(0)
    if fine: stamp()
    stamp()
    vS_ = vT
    C("---- sum of the eight partials (own one from registers); verify the seven that were loaded")
    LB("L_gsum")
    for p in range(1, 8):
        A(f"s_waitcnt vmcnt({8 - p if p < 7 else 0})")
        if p == 1:
            if fine: stamp()
            A(f"v_pk_add_f32 {vr(vS_,2)}, {vr(vOwn,2)}, {vr(vGa+4,2)}")
            A(f"v_pk_add_f32 {vr(vS_+2,2)}, {vr(vOwn+2,2)}, {vr(vGa+6,2)}")
            A(f"v_add_u32 v{vC+2}, v{vGa+4}, v{vGa+5}")
            A(f"v_add_u32 v{vC+1}, v{vGa+6}, v{vGa+7}")
            continue
        A(f"v_pk_add_f32 {vr(vS_,2)}, {vr(vS_,2)}, {vr(vGa+4*p,2)}")
        A(f"v_pk_add_f32 {vr(vS_+2,2)}, {vr(vS_+2,2)}, {vr(vGa+4*p+2,2)}")
        A(f"v_add3_u32 v{vC+2}, v{vC+2}, v{vGa+4*p}, v{vGa+4*p+1}")
        A(f"v_add3_u32 v{vC+1}, v{vC+1}, v{vGa+4*p+2}, v{vGa+4*p+3}")
    A(f"v_add3_u32 v{vC}, v{vC}, v{vC+1}, v{vC+2}")
    A(f"v_cvt_pk_bf16_f32 v{vT+12}, v{vS_}, v{vS_+1}")
    A(f"v_cvt_pk_bf16_f32 v{vT+13}, v{vS_+2}, v{vS_+3}")
    A(f"v_add_u32_dpp v{vC}, v{vC}, v{vC} quad_perm:[1,0,3,2] row_mask:0xf bank_mask:0xf")
    A(f"ds_write_b64 v{vA_kvw}, {vr(vT+12,2)}")
    A(f"s_sub_u32 s{sSpin2}, s{sSpin2}, 1")
    A(f"v_add_u32_dpp v{vC}, v{vC}, v{vC} quad_perm:[2,3,0,1] row_mask:0xf bank_mask:0xf")
    A("s_nop 1")
    A(f"v_add_u32_dpp v{vC}, v{vC}, v{vC} row_half_mirror row_mask:0xf bank_mask:0xf")
    A(f"v_cmp_ne_u32 vcc, v{vC}, v{vNon+1}")
    A("s_cbranch_vccnz L_regather")
    LB("L_gok")
    if fine: stamp()
    A("s_waitcnt lgkmcnt(0)")
    A("s_barrier")
    stamp()
    for k in range(4):
        A(f"ds_read_b128 {vr(vKVB+4*k,4)}, v{vA_kvr+k}")
    C("the loader has ended before B3 opened, so every Q tile is in LDS")
    rdkq(1)
    vN = [vK, vX]
    C("---- numerators, division, stores (tile a, then tile b)")
    def mf(t, dd): return f"v_mfma_f32_16x16x16_bf16 {vr(vN[t]+4*dd,4)}, {vr(vPHQ[t],2)}, {vr(vKVB+2*dd,2)}, 0"
    def rnd(t, dd, r): return f"v_cvt_pk_bf16_f32 v{vN[t]+4*dd+r}, 0, v{vN[t]+4*dd+r}"
    def mul(t, dd, r0): return f"v_pk_mul_f32 {vr(vN[t]+4*dd+r0,2)}, {vr(vN[t]+4*dd+r0,2)}, {vr(vD[t]+r0,2)}"
    def emit_rows(t, r0):
        for r in (r0, r0+1):
            o = vT + 4*r
            for j in range(4):
                A(f"v_cvt_pk_bf16_f32 v{o+j}, v{vN[t]+8*j+r}, v{vN[t]+8*j+4+r}")
            A(f"buffer_store_dwordx4 {vr(o,4)}, v{vA_o}, {sr(SO,4)}, s{sBase+t} offen offset:{256*r} {st}")
    def second_half(t):
        for dd in range(8):
            A(rnd(t, dd, 2)); A(rnd(t, dd, 3))
        for dd in range(8): A(mul(t, dd, 2))
        emit_rows(t, 2)
    A("s_waitcnt lgkmcnt(7)"); A(mf(0,0)); A(mf(0,1))
    A("s_waitcnt lgkmcnt(6)"); A(mf(0,2)); A(mf(0,3))
    A("s_waitcnt lgkmcnt(5)"); A(mf(0,4)); A(mf(0,5))
    A("s_waitcnt lgkmcnt(4)")
    A(rnd(0,0,0)); A(rnd(0,0,1)); A(mf(0,6))
    A(rnd(0,1,0)); A(rnd(0,1,1)); A(mf(0,7))
    for dd in range(2, 8): A(rnd(0,dd,0)); A(rnd(0,dd,1))
    for dd in range(8): A(mul(0, dd, 0))
    emit_rows(0, 0)
    second_half(0)
    A(f"s_cmp_lg_u32 s{sRot}, 0")
    A("s_cbranch_scc1 L_j2")
    call(sPhiQ)
    A("s_nop 0")
    den(1)
    d = vD[1]
    for dd in range(4): A(mf(1,dd))
    A("s_nop 3")
    for i in range(4): A(f"v_cvt_pk_bf16_f32 v{d+i}, 0, v{d+i}")
    A(mf(1,4))
    A(f"v_pk_add_f32 {vr(d,2)}, {vr(d,2)}, {vr(vEps,2)}")
    A(f"v_pk_add_f32 {vr(d+2,2)}, {vr(d+2,2)}, {vr(vEps,2)}")
    A(f"v_cvt_pk_bf16_f32 v{d}, 0, v{d}")
    A(mf(1,5))
    for i in range(1, 4): A(f"v_cvt_pk_bf16_f32 v{d+i}, 0, v{d+i}")
    A(mf(1,6))
    A(f"v_rcp_f32 v{d}, v{d}"); A(f"v_rcp_f32 v{d+1}, v{d+1}")
    A(mf(1,7))
    A(f"v_rcp_f32 v{d+2}, v{d+2}"); A(f"v_rcp_f32 v{d+3}, v{d+3}")
    A("s_branch L_j3")
    LB("L_j2")
    A("s_waitcnt lgkmcnt(0)")
    for dd in range(8): A(mf(1,dd))
    A("s_nop 0")
    LB("L_j3")
    for dd in range(8): A(rnd(1,dd,0)); A(rnd(1,dd,1))
    for dd in range(8): A(mul(1, dd, 0))
    emit_rows(1, 0)
    second_half(1)
    LB("L_fin")
    if stamps:
        stamp()
        A("s_waitcnt vmcnt(0)")
        stamp(True)
        A("s_waitcnt lgkmcnt(0)")
        assert nst[0] <= 11, nst[0]
        for i in range(12):
            A(f"v_mov_b32 v{vK+i}, s{sSt+2*i}" if i < nst[0] else f"v_mov_b32 v{vK+i}, s{sSpin2}")
        A(f"s_mul_i32 s{sT}, s2, {NW}")
        A(f"s_add_u32 s{sT}, s{sT}, s{sWr}")
        A(f"s_mul_i32 s{sT}, s{sT}, 48")
        A(f"s_add_u32 s{sT}, s{sT}, {WS_STAMP}")
        A("s_mov_b64 exec, 1")
        for i in range(3):
            A(f"buffer_store_dwordx4 {vr(vK+4*i,4)}, off, {sr(SWS,4)}, s{sT} offset:{16*i}")
    LB("L_end")
    A("s_endpgm")

    def phi(isq):
        base = vX
        for s in range(4):
            A(f"s_waitcnt lgkmcnt({3-s})")
            b = base + 4*s
            for i in range(4):
                A(f"v_lshlrev_b32 v{vT+2*i}, 16, v{b+i}")
                A(f"v_and_b32 v{vT+2*i+1}, 0xffff0000, v{b+i}")
            for i in range(4):
                A(f"v_pk_mul_f32 {vr(vT+2*i,2)}, {vr(vT+2*i,2)}, {sr(sScale,2)}")
            for i in range(4):
                A(f"v_cvt_pk_bf16_f32 v{b+i}, v{vT+2*i}, v{vT+2*i+1}")
            if s > 0:
                x = vr(base+4*(s-1), 4); o = vr(vOM+4*(s-1), 4)
                c0 = "0" if s == 1 else vr(vG, 4); c1 = "0" if s == 1 else vr(vP, 4)
                A(f"v_mfma_f32_16x16x32_bf16 {vr(vG,4)}, {x}, {x}, {c0}")
                A(f"v_mfma_f32_16x16x32_bf16 {vr(vP,4)}, {o if isq else x}, {x if isq else o}, {c1}")
        x = vr(base+12, 4); o = vr(vOM+12, 4)
        A(f"v_mfma_f32_16x16x32_bf16 {vr(vG,4)}, {x}, {x}, {vr(vG,4)}")
        A(f"v_mfma_f32_16x16x32_bf16 {vr(vP,4)}, {o if isq else x}, {x if isq else o}, {vr(vP,4)}")
        A("s_nop 6")
        A(f"v_cndmask_b32 v{vT}, 0, v{vG}, {sr(sM[0],2)}")
        for r in range(1, 4):
            A(f"v_cndmask_b32 v{vT}, v{vT}, v{vG+r}, {sr(sM[r],2)}")
        A(f"v_cvt_pk_bf16_f32 v{vXA}, v{vT}, v{vXA+1}")
        round4(vT+4, vP)
        A("s_nop 1")
        a, b = (vr(vNH,2), vr(vXA,2)) if isq else (vr(vXA,2), vr(vNH,2))
        A(f"v_mfma_f32_16x16x16_bf16 {vr(vP,4)}, {a}, {b}, {vr(vT+4,4)}")
        A("s_nop 7")
        round4(vT+8, vP)
        A(f"v_pk_mul_f32 {vr(vT+8,2)}, {vr(vT+8,2)}, {sr(sL2E,2)}")
        A(f"v_pk_mul_f32 {vr(vT+10,2)}, {vr(vT+10,2)}, {sr(sL2E,2)}")
        for i in range(4):
            A(f"v_exp_f32 v{vT+8+i}, v{vT+8+i}")
        A("s_nop 0")
        round4(vT+12, vT+8)
        A(f"v_pk_fma_f32 {vr(vT+12,2)}, {vr(vT+12,2)}, {sr(sQuart,2)}, {vr(vEps,2)}")
        A(f"v_pk_fma_f32 {vr(vT+14,2)}, {vr(vT+14,2)}, {sr(sQuart,2)}, {vr(vEps,2)}")
        A(f"v_cvt_pk_bf16_f32 v{vR}, v{vT+12}, v{vT+13}")
        A(f"v_cvt_pk_bf16_f32 v{vR+1}, v{vT+14}, v{vT+15}")
        A(f"s_setpc_b64 {sr(sRet,2)}")
    C("---- feature map of one 16-row tile: v72..87 raw rows -> v16,17 packed phi (key and query forms)")
    LB("L_phik")
    phi(False)
    LB("L_phiq")
    phi(True)
    C("---- something had not arrived when it was read: read again")
    LB("L_regather")
    A("s_cbranch_scc1 L_gok")
    gload('sc1')
    A("s_branch L_gsum")
    LB("L_zbad")
    A(f"s_sub_u32 s{sSpin2}, s{sSpin2}, 1")
    A("s_cbranch_scc1 L_zgive")
    zload()
    A("s_waitcnt vmcnt(0)")
    A("s_branch L_zchk")
    LB("L_zgive")
    A(f"s_mov_b32 s{sSpin2}, 0")
    A("s_branch L_zok")
    LB("L_codeend")
    return HEADER.format(lds=LDS_TOTAL) + "\n".join(x for x in L if x) + FOOTER.format(vgpr=NV, sgpr=98 if stamps else 72, acc=NV)

if __name__ == '__main__':
    out = sys.argv[1]
    kw = {}
    for a in sys.argv[2:]:
        k, v = a.split('=')
        kw[k] = v if k in ('ld', 'st', 'gfl') else (tuple(map(int, v.split(','))) if k == 'rot' else int(v))
    open(out, 'w').write(gen(**kw))
```

```python
import sys, struct

def f2u(x): return struct.unpack('<I', struct.pack('<f', x))[0]

HEADER = """; Linear (random-feature) attention, B=1 H=32 S=2048 D=128 M=16, bf16, one launch.
;
; Wave 0 (loader) streams omega, K, V, Q into LDS by DMA with a bounded window and publishes a landed-tile count.
; Hand-off between workgroups: write-through stores of the partial sums plus check words; a reader accepts what it
;
; @launch grid=(256,1,1) block=(576,1,1) lds={lds}
.amdgcn_target "amdgcn-amd-amdhsa--gfx950"
.text
.globl standalone__linear_kernel_rfa__prompt_kernel
.p2align 8
.type standalone__linear_kernel_rfa__prompt_kernel,@function
standalone__linear_kernel_rfa__prompt_kernel:
"""
FOOTER = """
.section .rodata,"a"
.p2align 6
.amdhsa_kernel standalone__linear_kernel_rfa__prompt_kernel
  .amdhsa_next_free_vgpr {vgpr}
  .amdhsa_next_free_sgpr {sgpr}
  .amdhsa_accum_offset {acc}
  .amdhsa_group_segment_fixed_size 0
  .amdhsa_kernarg_size 56
  .amdhsa_user_sgpr_count 2
  .amdhsa_user_sgpr_kernarg_segment_ptr 1
  .amdhsa_system_sgpr_workgroup_id_x 1
  .amdhsa_float_denorm_mode_32 3
  .amdhsa_float_denorm_mode_16_64 3
.end_amdhsa_kernel
"""

LDS_V, LDS_KQ, LDS_PHI, LDS_KVT, LDS_FLAG, LDS_OM = 0, 65536, 131072, 139264, 143360, 143616
LDS_TOTAL = LDS_OM + 4096
HSTRIDE = 69632
WS_CHK, WS_ZS = 65536, 67584
WS_BYTES = 4 << 20
WS_STAMP = 3 << 20
NW = 9

def gen(ld='nt', st='nt', gfl='', stamps=False, W=28, W2=36, spin=200000, lprio=3, slp=1, pre=2, rot=(4,15), hmap=2,
        nroot=8, pf=1, fine=0, kvs=5, pb=4, gat=45, nw=4, zw=0, zg=0, pfw=1):
    L = []
    def A(s): L.append("    " + s)
    def C(s): L.append("    ; " + s)
    def LB(s): L.append(s + ":")
    def vr(a, n): return f"v[{a}:{a+n-1}]"
    def sr(a, n): return f"s[{a}:{a+n-1}]"
    G, G2 = W // 4, W2 // 4
    SC, SOM, SO, SWS, SDB = 4, 8, 12, 16, 20
    sPQ, sPV = 24, 26
    sClk, sZo = 24, 26
    sBase, sBase2, sW, sH, sP, sWr = 28, 29, 30, 31, 32, 33
    sScale, sL2E, sQuart = 34, 36, 38
    sM = [40, 42, 44, 46]
    sK1 = 48
    sKVo, sCKo, sT2, sT, sSpin, sM0, sSpin2, sNeed, sRot = 49, 50, 51, 52, 53, 54, 55, 56, 57
    sRet = 58
    sPhiK, sPhiQ = 60, 62
    sOff, sEnd, sLds, sPr, sPh = 34, 35, 36, 37, 38
    sGp = 64
    sSt = 72
    vA_cs, vA_fl, vNv, vA_lin, vA_tr, vA_phi, vA_kvw = 0, 1, 4, 5, 6, 7, 8
    vA_z, vA_kvr, vA_o, vA_phw = 9, 10, 14, 15
    vPHQ = [2, 16]
    vR = 16
    vEps, vNH, vXA = 18, 20, 22
    vOM = 24
    vK = 40
    vX = 72
    vC, vZg, vOwn, vNon = 88, 92, 96, 100
    vT = 104
    vP, vG = 120, 124
    vB = 128
    vKVB, vZB, vD = 128, 144, [148, 152]
    vA_c = 157
    vA_kr = 160
    vA_zc, vG16, vA_zl = 165, 166, 167
    NV = 168
    nst = [0]
    lite = (stamps == 2)
    def stamp(force=False):
        if lite and not force:
            nst[0] += 1
            return
        if stamps:
            A(f"s_memrealtime {sr(sSt + 2*nst[0], 2)}")
            nst[0] += 1
    def xstamp(i):
        if stamps and not lite: A(f"s_memrealtime {sr(sSt + 2*i, 2)}")
    def srdc(d, n):
        A(f"s_mov_b32 s{d+2}, {n}"); A(f"s_mov_b32 s{d+3}, 0x20000")

    stamp(True)
    A(f"s_load_dwordx2 {sr(SC,2)}, s[0:1], 8   ; k")
    A(f"s_load_dwordx2 {sr(SOM,2)}, s[0:1], 24  ; omega")
    A("s_cmp_ge_u32 s2, 256")
    A("s_cbranch_scc1 L_end")
    A(f"v_readfirstlane_b32 s{sWr}, v0")
    vc, vg = vT + 1, vT + 2
    A(f"v_and_b32 v{vc}, 15, v0")
    A(f"v_bfe_u32 v{vg}, v0, 4, 2")
    if hmap == 0:
        A(f"s_and_b32 s{sH}, s2, 31")
        A(f"s_lshr_b32 s{sP}, s2, 5")
    elif hmap == 2:
        A(f"s_lshr_b32 s{sH}, s2, 6")
        A(f"s_and_b32 s{sP}, s2, 7")
        A(f"s_lshl3_add_u32 s{sH}, s{sH}, s{sP}")
        A(f"s_bfe_u32 s{sP}, s2, 0x30003")
    else:
        A(f"s_lshr_b32 s{sH}, s2, 3")
        A(f"s_and_b32 s{sP}, s2, 7")
    A(f"v_xor_b32 v{vT+4}, v{vc}, v{vg}")
    A(f"v_lshlrev_b32 v{vT+4}, 4, v{vT+4}")
    A(f"s_lshl_b32 s{sBase}, s{sH}, 19")
    A(f"s_lshl_b32 s{sT}, s{sP}, 16")
    A(f"s_add_u32 s{sBase}, s{sBase}, s{sT}")
    A(f"s_bfe_u32 s{sRot}, s2, {rot[0] | (rot[1].bit_length() << 16):#x}")
    A(f"s_lshl_b32 s{sRot}, s{sRot}, 12")
    A(f"s_lshr_b32 s{sWr}, s{sWr}, 6")
    A("s_cbranch_scc1 L_main")

    C("---- loader: streams omega, K, V, Q into LDS by DMA and publishes a landed-tile count")
    C("tile j (16 rows, 4 KiB) of this workgroup's block is read from tile (j + rot) & 15; 16-byte chunks are")
    C("xor-swizzled inside each row so that the later LDS reads are free of bank conflicts")
    vA = 40; vAq = 44; vAv = 48; vS = 52; vAo = 54
    if lprio: A(f"s_setprio {lprio}")
    A(f"v_lshl_add_u32 v{vA}, v{vg}, 8, v{vT+4}")
    for i in range(1, 4):
        A(f"v_xor_b32 v{vA+i}, {64*i}, v{vA}")
    srdc(SC, 1 << 24)
    A(f"s_mov_b32 m0, {LDS_KQ}")
    A(f"s_add_u32 s{sT}, s{sBase}, s{sRot}")
    A("s_waitcnt lgkmcnt(0)")
    def loads():
        for i in range(4):
            A(f"buffer_load_dwordx4 v{vA+i}, {sr(SC,4)}, s{sT} offen offset:{i*1024} {ld} lds")
    loads()
    A(f"s_load_dwordx2 {sr(sPQ,2)}, s[0:1], 0")
    A(f"s_load_dwordx2 {sr(sPV,2)}, s[0:1], 16")
    if stamps: A(f"s_load_dwordx2 {sr(SWS,2)}, s[0:1], 48")
    srdc(SOM, 4096)
    A(f"v_lshlrev_b32 v{vT+3}, 4, v{vg}")
    A(f"v_lshl_add_u32 v{vAo}, v{vc}, 8, v{vT+3}")
    for s in range(4):
        A(f"s_mov_b32 m0, {LDS_OM + s*1024 - s*64}")
        A(["s_nop 0", f"s_mov_b32 s{sOff}, 4096", f"s_mov_b32 s{sEnd}, {pre*4096}", f"s_mov_b32 s{sLds}, {LDS_KQ}"][s])
        A(f"buffer_load_dwordx4 v{vAo}, {sr(SOM,4)}, 0 offen offset:{64*s} lds")
    A(f"s_mov_b32 s{sPr}, {2 - G}")
    A(f"s_mov_b32 s{sPh}, 0")
    A(f"v_mov_b32 v{vS}, 0")
    A(f"v_mov_b32 v{vA_fl}, {LDS_FLAG}")
    A(f"ds_write_b32 v{vA_fl}, v{vS} offset:8")
    for i in range(4): A(f"v_mov_b32 v{vAq+i}, v{vA+i}")
    A(f"v_lshlrev_b32 v{vT+5}, 1, v{vg}")
    A(f"v_xor_b32 v{vT+5}, v{vT+5}, v{vc}")
    A(f"v_lshlrev_b32 v{vT+5}, 4, v{vT+5}")
    A(f"v_lshl_add_u32 v{vAv}, v{vg}, 8, v{vT+5}")
    def prep():
        A(f"s_add_u32 m0, s{sLds}, s{sOff}")
        A(f"s_add_u32 s{sT}, s{sRot}, s{sOff}")
        A(f"s_and_b32 s{sT}, s{sT}, 0xffff")
        A(f"s_add_u32 s{sT}, s{sBase}, s{sT}")
    def body(w, end, label, clamp=False):
        A(f"s_waitcnt vmcnt({w})")
        A(f"ds_write_b32 v{vA_fl}, v{vS}")
        loads()
        A(f"s_add_u32 s{sOff}, s{sOff}, 4096")
        prep()
        A(f"s_add_u32 s{sPr}, s{sPr}, 1")
        if clamp:
            A(f"s_max_i32 s{sPh}, s{sPr}, 33")
            A(f"v_mov_b32 v{vS}, s{sPh}")
        else:
            A(f"v_mov_b32 v{vS}, s{sPr}")
        A(f"s_cmp_lg_u32 s{sOff}, {end}")
        A(f"s_cbranch_scc1 {label}")
    LB("L_lp0")
    prep()
    LB("L_lp")
    body(W, f"s{sEnd}", "L_lp")
    A(f"s_add_u32 s{sPh}, s{sPh}, 1")
    A(f"s_cmp_eq_u32 s{sPh}, 1")
    A("s_cbranch_scc0 L_ph2")
    A("s_waitcnt lgkmcnt(0)")
    A("s_barrier")
    xstamp(1)
    A(f"s_mov_b32 s{sEnd}, 65536")
    A("s_branch L_lp")
    LB("L_ph2")
    A(f"s_cmp_eq_u32 s{sPh}, 2")
    A("s_cbranch_scc0 L_ph3")
    A(f"s_mov_b64 {sr(SC,2)}, {sr(sPV,2)}")
    A(f"s_mov_b32 s{sOff}, 0")
    A(f"s_mov_b32 s{sLds}, {LDS_V}")
    A(f"v_mov_b32 v{vA}, v{vAv}")
    A(f"v_xor_b32 v{vA+1}, 128, v{vAv}")
    A(f"v_mov_b32 v{vA+2}, v{vAv}")
    A(f"v_xor_b32 v{vA+3}, 128, v{vAv}")
    A("s_branch L_lp0")
    LB("L_ph3")
    A(f"s_cmp_eq_u32 s{sPh}, 3")
    A("s_cbranch_scc0 L_ph4")
    A(f"s_mov_b64 {sr(SC,2)}, {sr(sPQ,2)}")
    A(f"s_mov_b32 s{sOff}, 0")
    A(f"s_mov_b32 s{sEnd}, {(G+1)*4096}")
    A(f"s_mov_b32 s{sLds}, {LDS_KQ}")
    for i in range(4): A(f"v_mov_b32 v{vA+i}, v{vAq+i}")
    xstamp(2)
    A("s_barrier")
    xstamp(3)
    A("s_branch L_lp0")
    LB("L_ph4")
    assert G < 14
    A(f"s_add_i32 s{sPr}, s{sPr}, {G - G2}")
    A(f"s_max_i32 s{sPh}, s{sPr}, 33")
    A(f"v_mov_b32 v{vS}, s{sPh}")
    LB("L_lq")
    body(W2, 65536, "L_lq", G2 > G + 1)
    xstamp(4)
    for k in range(min(G2, 15), -1, -1):
        A(f"v_mov_b32 v{vS+(k&1)}, {49 - k}")
        A(f"s_waitcnt vmcnt({4*k})")
        A(f"ds_write_b32 v{vA_fl}, v{vS+(k&1)}")
    if stamps:
        for i in range(5, 9): xstamp(i)
        srdc(SWS, WS_BYTES)
        A(f"s_mov_b32 s{sSpin2}, {spin}")
        A("s_branch L_fin")
    else:
        A("s_endpgm")

    C("---- main waves")
    LB("L_main")
    A(f"s_load_dwordx2 {sr(SO,2)}, s[0:1], 32")
    A(f"s_load_dwordx2 {sr(SDB,2)}, s[0:1], 40")
    A(f"s_load_dwordx2 {sr(SWS,2)}, s[0:1], 48")
    A(f"s_memrealtime {sr(sClk,2)}")
    A(f"s_getpc_b64 {sr(sPhiK,2)}")
    LB("L_pc")
    if pf:
        C("pull the rest of the code into the L2 while the first tiles are in flight")
        A(f"s_cmp_lg_u32 s{sWr}, {pfw}")
        A("s_cbranch_scc1 L_nopf")
        A(f"v_and_b32 v{vT+5}, 63, v0")
        A(f"v_lshlrev_b32 v{vT+5}, 7, v{vT+5}")
        A(f"v_min_u32 v{vT+5}, L_codeend-L_pc-4, v{vT+5}")
        A(f"global_load_dword v164, v{vT+5}, {sr(sPhiK,2)}")
        LB("L_nopf")
    A("s_barrier   ; B0")
    A(f"v_mov_b32 v{vA_fl}, {LDS_FLAG}")
    A(f"v_lshlrev_b32 v{vG16}, 4, v{vg}")
    A(f"v_and_b32 v{vA_lin}, 63, v0")
    A(f"v_lshlrev_b32 v{vA_lin}, 4, v{vA_lin}")
    A(f"s_mul_i32 s{sKVo}, s{sH}, {HSTRIDE}")
    A(f"v_add_u32 v{vA_phi}, {LDS_PHI}, v{vA_lin}")
    A(f"s_mov_b32 s{sSpin}, {spin*16}")
    A(f"s_mov_b32 s{sSpin2}, {spin}")
    srdc(SWS, WS_BYTES); srdc(SDB, 256); srdc(SO, 1 << 24)
    A(f"s_add_u32 s{sPhiQ}, s{sPhiK}, L_phiq-L_pc")
    A(f"s_addc_u32 s{sPhiQ+1}, s{sPhiK+1}, 0")
    A(f"s_add_u32 s{sPhiK}, s{sPhiK}, L_phik-L_pc")
    A(f"s_addc_u32 s{sPhiK+1}, s{sPhiK+1}, 0")
    A(f"s_sub_u32 s{sW}, s{sWr}, 1")
    A(f"s_lshl_b32 s{sM0}, s{sW}, 12")
    A(f"s_add_u32 s{sT}, s{sM0}, s{sRot}")
    A(f"s_and_b32 s{sT}, s{sT}, 0xffff")
    A(f"s_xor_b32 s{sBase2}, s{sT}, 0x8000")
    A(f"s_add_u32 s{sBase2}, s{sBase}, s{sBase2}")
    A(f"s_add_u32 s{sBase}, s{sBase}, s{sT}")
    A(f"s_add_u32 s{sT}, s{sM0}, {LDS_KQ}")
    A(f"s_lshl_b32 s{sM0}, s{sW}, 13")
    A(f"v_lshl_add_u32 v{vT+4}, v{vc}, 8, v{vT+4}")
    A(f"v_add_u32 v{vA_kr}, s{sT}, v{vT+4}")
    for i in range(1, 4):
        A(f"v_xor_b32 v{vA_kr+i}, {64*i}, v{vA_kr}")
    A(f"s_add_u32 s{sZo}, s{sKVo}, {WS_ZS}")
    A(f"s_lshl_b32 s{sT}, s{sW}, 8")
    A(f"s_add_u32 s{sCKo}, s{sKVo}, s{sT}")
    A(f"s_add_u32 s{sCKo}, s{sCKo}, {WS_CHK}")
    A(f"s_add_u32 s{sKVo}, s{sKVo}, s{sM0}")
    for i in range(7):
        A(f"s_add_u32 s{sGp+i}, s{sP}, {i+1}")
        A(f"s_and_b32 s{sGp+i}, s{sGp+i}, 7")
        A(f"s_lshl_b32 s{sGp+i}, s{sGp+i}, 10")
        A(f"s_add_u32 s{sGp+i}, s{sGp+i}, s{sKVo}")
    sc = f2u(128.0 ** -0.25)
    A(f"s_mov_b32 s{sScale}, {sc:#x}"); A(f"s_mov_b32 s{sScale+1}, {sc:#x}")
    l2e = f2u(1.4426950408889634)
    A(f"s_mov_b32 s{sL2E}, {l2e:#x}"); A(f"s_mov_b32 s{sL2E+1}, {l2e:#x}")
    A(f"s_mov_b32 s{sQuart}, {f2u(0.25):#x}"); A(f"s_mov_b32 s{sQuart+1}, {f2u(0.25):#x}")
    for r in range(4):
        A(f"s_mov_b32 s{sM[r]}, {(1<<r)|(1<<(20+r)):#x}")
        A(f"s_mov_b32 s{sM[r]+1}, {(1<<(8+r))|(1<<(28+r)):#x}")
    A(f"s_mov_b32 s{sK1}, 0x9E3779B1")
    A(f"v_mov_b32 v{vEps}, 0x35860000"); A(f"v_mov_b32 v{vEps+1}, 0x35860000")
    A(f"v_mov_b32 v{vNH}, 0xbf00bf00"); A(f"v_mov_b32 v{vNH+1}, 0xbf00bf00")
    A(f"v_mov_b32 v{vXA+1}, 0")
    A(f"s_lshl_b32 s{sT}, s{sW}, 10")
    A(f"v_add_u32 v{vA_phw}, s{sT}, v{vA_phi}")
    A(f"v_lshrrev_b32 v{vT+4}, 2, v{vc}")
    A(f"v_lshl_add_u32 v{vT+4}, v{vg}, 2, v{vT+4}")
    A(f"v_and_b32 v{vT+5}, 7, v{vT+4}")
    A(f"v_xor_b32 v{vT+5}, s{sW}, v{vT+5}")
    A(f"v_lshlrev_b32 v{vT+5}, 5, v{vT+5}")
    A(f"v_lshl_add_u32 v{vT+5}, v{vT+4}, 8, v{vT+5}")
    A(f"v_and_b32 v{vT+7}, 3, v{vc}")
    A(f"v_lshl_add_u32 v{vA_tr}, v{vT+7}, 3, v{vT+5}")
    A(f"s_lshr_b32 s{sT}, s{sW}, 1")
    A(f"v_bfe_u32 v{vT+4}, v{vc}, 1, 2")
    A(f"v_xor_b32 v{vT+4}, s{sT}, v{vT+4}")
    A(f"v_lshlrev_b32 v{vT+4}, 4, v{vT+4}")
    A(f"v_and_b32 v{vT+5}, 1, v{vc}")
    A(f"v_lshl_add_u32 v{vT+4}, v{vT+5}, 3, v{vT+4}")
    A(f"v_lshrrev_b32 v{vT+5}, 3, v{vc}")
    A(f"v_lshl_add_u32 v{vT+4}, v{vT+5}, 6, v{vT+4}")
    A(f"v_lshl_add_u32 v{vT+4}, v{vg}, 10, v{vT+4}")
    A(f"s_lshl_b32 s{sT}, s{sW}, 7")
    A(f"s_add_u32 s{sT}, s{sT}, {LDS_KVT}")
    A(f"v_add_u32 v{vA_kvw}, s{sT}, v{vT+4}")
    A(f"v_lshrrev_b32 v{vT+4}, 2, v{vc}")
    A(f"v_lshlrev_b32 v{vT+4}, 4, v{vT+4}")
    A(f"v_lshl_add_u32 v{vT+4}, v{vc}, 6, v{vT+4}")
    A(f"v_lshl_add_u32 v{vT+4}, v{vg}, 10, v{vT+4}")
    A(f"v_add_u32 v{vA_kvr}, {LDS_KVT}, v{vT+4}")
    for k in range(1, 4):
        A(f"v_xor_b32 v{vA_kvr+k}, {16*k}, v{vA_kvr}")
    A(f"v_lshrrev_b32 v{vA_cs}, 5, v{vA_lin}")
    A(f"v_and_b32 v{vA_cs}, 28, v{vA_cs}")
    A(f"v_lshlrev_b32 v{vT+4}, 4, v{vc}")
    A(f"v_lshl_add_u32 v{vA_o}, v{vg}, 10, v{vT+4}")
    A(f"v_and_b32 v{vNv}, 7, v{vc}")
    A(f"v_lshl_add_u32 v{vA_z}, v{vNv}, 7, v{vG16}")
    A(f"v_lshlrev_b32 v{vT+4}, 2, v{vg}")
    A(f"v_lshl_add_u32 v{vA_zc}, v{vNv}, 7, v{vT+4}")
    A(f"v_lshl_add_u32 v{vA_zl}, v{vg}, 3, v{vA_fl}")
    A("s_waitcnt lgkmcnt(0)")
    C("the first few workgroups offer a launch nonce; the first offer to land wins")
    A(f"s_lshl_b32 s{sT}, s2, 3")
    A(f"s_add_u32 s{sT}, s{sT}, s{sW}")
    A(f"s_and_b32 s{sT}, s{sT}, {(~((nroot-1) << 3)) & 0xffffffff:#x}")
    A("s_cbranch_scc1 L_noroot")
    A(f"s_or_b32 s{sClk}, s{sClk}, 0x80000000")
    A(f"v_mov_b32 v{vXA}, s{sClk}")
    A("s_mov_b64 exec, 1")
    A(f"buffer_atomic_cmpswap {vr(vXA,2)}, off, {sr(SDB,4)}, 0 sc1")
    A("s_mov_b64 exec, -1")
    LB("L_noroot")

    npoll = [0]
    def poll(need, sleep=True):
        n = npoll[0]; npoll[0] += 1
        LB(f"L_p{n}")
        A(f"ds_read_b32 v{vT}, v{vA_fl}")
        A(f"s_sub_u32 s{sSpin}, s{sSpin}, 1")
        A("s_waitcnt lgkmcnt(0)")
        A(f"v_cmp_le_i32 vcc, {need}, v{vT}")
        A(f"s_cbranch_vccnz L_pk{n}")
        if sleep and slp: A(f"s_sleep {slp}")
        A(f"s_cbranch_scc0 L_p{n}")
        A(f"s_mov_b32 s{sSpin}, 0")
        LB(f"L_pk{n}")
    def pollw(base, sleep=True):
        A(f"s_add_u32 s{sNeed}, s{sW}, {base}")
        poll(f"s{sNeed}", sleep)
    def rdkq(t):
        for s in range(4):
            A(f"ds_read_b128 {vr(vX+4*s,4)}, v{vA_kr+s} offset:{t*32768}")
    def round4(dst, src):
        for i in range(4):
            A(f"v_cvt_pk_bf16_f32 v{dst+i}, 0, v{src+i}")
    def red8(r):
        for pat in ("quad_perm:[1,0,3,2]", "quad_perm:[2,3,0,1]", "row_half_mirror"):
            A("s_nop 1")
            A(f"v_add_u32_dpp v{r}, v{r}, v{r} {pat} row_mask:0xf bank_mask:0xf")
    def call(s): A(f"s_swappc_b64 {sr(sRet,2)}, {sr(s,2)}")

    C("---- K phase: phi_k of this wave's two key tiles -> LDS")
    pollw(2)
    if not fine: stamp()
    for s in range(4):
        A(f"ds_read_b128 {vr(vOM+4*s,4)}, v{vA_phi} offset:{LDS_OM-LDS_PHI+1024*s}")
    rdkq(0)
    call(sPhiK)
    A(f"v_mov_b32 v{vK}, v{vR}")
    A(f"v_mov_b32 v{vK+1}, v{vR+1}")
    A(f"s_cmp_lg_u32 s{sW}, {nw}")
    A("s_cbranch_scc1 L_nn1")
    A(f"buffer_load_dword v{vNon}, off, {sr(SDB,4)}, 0 sc1")
    LB("L_nn1")
    pollw(10)
    if not fine: stamp()
    rdkq(1)
    call(sPhiK)
    A(f"ds_write2_b64 v{vA_phw}, {vr(vK,2)}, {vr(vR,2)} offset0:0 offset1:1")
    A(f"s_cmp_lg_u32 s{sW}, {nw}")
    A("s_cbranch_scc1 L_nn2")
    LB("L_non")
    A(f"s_sub_u32 s{sSpin2}, s{sSpin2}, 1")
    A("s_waitcnt vmcnt(0)")
    A(f"v_cmp_ne_u32 vcc, 0, v{vNon}")
    A("s_cbranch_vccnz L_nonk")
    A(f"buffer_load_dword v{vNon}, off, {sr(SDB,4)}, 0 sc1")
    A("s_cbranch_scc0 L_non")
    A(f"s_mov_b32 s{sSpin2}, 0")
    A("s_waitcnt vmcnt(0)")
    LB("L_nonk")
    A(f"ds_write_b32 v{vA_fl}, v{vNon} offset:4")
    LB("L_nn2")
    A("s_waitcnt lgkmcnt(0)")
    A("s_barrier   ; B1")
    if not fine: stamp()
    A(f"ds_read_b32 v{vNon}, v{vA_fl} offset:4")
    for b in range(8):
        A(f"ds_read_b128 {vr(vK+4*b,4)}, v{vA_phi} offset:{1024*b}")
    C("per-slot nonces: lane & 7 -> v4, own -> v100, expected sum of the other seven -> v101")
    A("s_waitcnt lgkmcnt(8)")
    A(f"v_add_u32 v{vNv}, v{vNv}, v{vNon}")
    A(f"v_mul_lo_u32 v{vNv}, v{vNv}, s{sK1}")
    A(f"v_lshrrev_b32 v{vT}, 15, v{vNv}")
    A(f"v_xor_b32 v{vNv}, v{vNv}, v{vT}")
    A(f"v_mul_lo_u32 v{vNv}, v{vNv}, s{sK1}")
    A(f"v_lshrrev_b32 v{vT}, 13, v{vNv}")
    A(f"v_xor_b32 v{vNv}, v{vNv}, v{vT}")
    A(f"v_mov_b32 v{vNon+1}, v{vNv}")
    A(f"v_readlane_b32 s{sT}, v{vNv}, s{sP}")
    red8(vNon+1)
    A(f"v_mov_b32 v{vNon}, s{sT}")
    A(f"v_sub_u32 v{vNon+1}, v{vNon+1}, v{vNon}")
    A(f"s_cmp_lg_u32 s{sW}, {zw}")
    A("s_cbranch_scc1 L_nz")
    C("z of this workgroup's keys")
    A(f"v_mov_b32 v{vT+12}, 0x3f803f80")
    for i in range(1, 4): A(f"v_mov_b32 v{vT+12+i}, v{vT+12}")
    A(f"s_lshl_b32 s{sT}, s{sP}, 7")
    A(f"s_add_u32 s{sT}, s{sT}, s{sZo}")
    A("s_waitcnt lgkmcnt(0)")
    for b in range(8):
        A(f"v_mfma_f32_16x16x32_bf16 {vr(vP,4)}, {vr(vK+4*b,4)}, {vr(vT+12,4)}, {'0' if b==0 else vr(vP,4)}")
    A(f"v_lshrrev_b32 v{vT+1}, 2, v{vG16}")
    A("s_mov_b32 exec_lo, 0x00010001")
    A("s_mov_b32 exec_hi, 0x00010001")
    A("s_nop 4")
    A(f"buffer_store_dwordx4 {vr(vP,4)}, v{vG16}, {sr(SWS,4)}, s{sT} offen sc1")
    A(f"v_add3_u32 v{vT}, v{vP}, v{vP+1}, v{vP+2}")
    A(f"v_add_u32 v{vT}, v{vT}, v{vP+3}")
    A(f"v_sub_u32 v{vT}, v{vNon}, v{vT}")
    A(f"buffer_store_dword v{vT}, v{vT+1}, {sr(SWS,4)}, s{sT} offen offset:64 sc1")
    A("s_mov_b64 exec, -1")
    LB("L_nz")
    A(f"s_lshl_b32 s{sT}, s{sP}, 10")
    A(f"s_add_u32 s{sT}, s{sT}, s{sKVo}")
    A(f"s_lshl_b32 s{sT2}, s{sP}, 5")
    A(f"s_add_u32 s{sT2}, s{sT2}, s{sCKo}")
    C("---- partial kv[16 features][16 columns of this wave] over the 256 keys, then publish data and check words")
    def kvblocks(b0, b1):
        for b in range(b0, b1):
            A(f"ds_read_b64_tr_b16 {vr(vB+4*b,2)}, v{vA_tr} offset:{4096*b}")
            A(f"ds_read_b64_tr_b16 {vr(vB+4*b+2,2)}, v{vA_tr} offset:{4096*b+32768}")
        for b in range(b0, b1):
            A(f"s_waitcnt lgkmcnt({2*(b1-1-b)})")
            A(f"v_mfma_f32_16x16x32_bf16 {vr(vOwn,4)}, {vr(vK+4*b,4)}, {vr(vB+4*b,4)}, {'0' if b==0 else vr(vOwn,4)}")
    poll(25 + kvs)
    kvblocks(0, kvs)
    poll(33, sleep=False)
    stamp()
    kvblocks(kvs, 8)
    A(f"v_and_b32 v{vA_c}, 0x70, v{vA_lin}")
    A(f"s_lshl_b32 s{sNeed}, s{sP}, 4")
    A(f"v_cmp_eq_u32 vcc, s{sNeed}, v{vA_c}")
    A(f"v_lshl_add_u32 v{vA_c}, v{vA_c}, 1, v{vA_cs}")
    A("s_nop 0")
    A(f"v_cndmask_b32 v{vA_c}, v{vA_c}, v{vNH}, vcc")
    A("s_nop 1")
    A(f"buffer_store_dwordx4 {vr(vOwn,4)}, v{vA_lin}, {sr(SWS,4)}, s{sT} offen sc1")
    A(f"v_add_u32 v{vT}, v{vOwn}, v{vOwn+1}")
    A(f"v_add3_u32 v{vT}, v{vT}, v{vOwn+2}, v{vOwn+3}")
    red8(vT)
    A(f"v_sub_u32 v{vT}, v{vNon}, v{vT}")
    A("s_mov_b32 exec_lo, 0x01010101")
    A("s_mov_b32 exec_hi, 0x01010101")
    A(f"buffer_store_dword v{vT}, v{vA_cs}, {sr(SWS,4)}, s{sT2} offen sc1")
    A("s_mov_b64 exec, -1")
    def zload():
        A(f"buffer_load_dwordx4 {vr(vZg,4)}, v{vA_z}, {sr(SWS,4)}, s{sZo} offen sc1")
        A(f"buffer_load_dword v{vC+3}, v{vA_zc}, {sr(SWS,4)}, s{sZo} offen offset:64 sc1")
    if not fine: stamp()
    C("---- Q phase")
    def den(t):
        A(f"v_mfma_f32_16x16x16_bf16 {vr(vD[t],4)}, {vr(vPHQ[t],2)}, {vr(vZB,2)}, 0")
    def den2(t):
        round4(vD[t], vD[t])
        A(f"v_pk_add_f32 {vr(vD[t],2)}, {vr(vD[t],2)}, {vr(vEps,2)}")
        A(f"v_pk_add_f32 {vr(vD[t]+2,2)}, {vr(vD[t]+2,2)}, {vr(vEps,2)}")
        round4(vD[t], vD[t])
        for i in range(4): A(f"v_rcp_f32 v{vD[t]+i}, v{vD[t]+i}")
    vGa = vK
    def gload(fl):
        for p in range(1, 8):
            A(f"buffer_load_dwordx4 {vr(vGa+4*p,4)}, v{vA_lin}, {sr(SWS,4)}, s{sGp+p-1} offen {fl}")
        A(f"buffer_load_dword v{vC}, v{vA_c}, {sr(SWS,4)}, s{sCKo} offen {fl}")
    pollw(34)
    rdkq(0)
    call(sPhiQ)
    A(f"v_mov_b32 v{vPHQ[0]}, v{vR}")
    A(f"v_mov_b32 v{vPHQ[0]+1}, v{vR+1}")
    A(f"s_cmp_lg_u32 s{sW}, {zg}")
    A("s_cbranch_scc1 L_nzl")
    zload()
    LB("L_nzl")
    stamp()
    C("the partials are read when most of Q has landed; the first waves run tile b's feature map meanwhile")
    A(f"s_mov_b32 s{sRot}, 0")
    A(f"s_cmp_ge_u32 s{sW}, {pb}")
    A("s_cbranch_scc1 L_nb")
    pollw(42, sleep=False)
    rdkq(1)
    call(sPhiQ)
    A(f"s_mov_b32 s{sRot}, 1")
    LB("L_nb")
    A(f"s_cmp_lg_u32 s{sW}, {zg}")
    A("s_cbranch_scc1 L_nzr")
    C("one wave sums the head's eight z and hands the result to the others")
    A("s_waitcnt vmcnt(0)")
    LB("L_zchk")
    A(f"v_add3_u32 v{vC+3}, v{vC+3}, v{vZg}, v{vZg+1}")
    for i in range(4):
        A(f"v_add_f32_dpp v{vT+i}, v{vZg+i}, v{vZg+i} quad_perm:[1,0,3,2] row_mask:0xf bank_mask:0xf")
    A(f"v_add3_u32 v{vC+3}, v{vC+3}, v{vZg+2}, v{vZg+3}")
    for i in range(4):
        A(f"v_add_f32_dpp v{vT+4+i}, v{vT+i}, v{vT+i} quad_perm:[2,3,0,1] row_mask:0xf bank_mask:0xf")
    A(f"v_cmp_ne_u32 vcc, v{vC+3}, v{vNv}")
    for i in range(4):
        A(f"v_add_f32_dpp v{vT+i}, v{vT+4+i}, v{vT+4+i} row_half_mirror row_mask:0xf bank_mask:0xf")
    A("s_cbranch_vccnz L_zbad")
    LB("L_zok")
    A(f"v_cvt_pk_bf16_f32 v{vZB}, v{vT}, v{vT+1}")
    A(f"v_cvt_pk_bf16_f32 v{vZB+1}, v{vT+2}, v{vT+3}")
    A(f"v_mov_b32 v{vT+4}, 1")
    A(f"ds_write_b64 v{vA_zl}, {vr(vZB,2)} offset:32")
    A(f"ds_write_b32 v{vA_fl}, v{vT+4} offset:8")
    LB("L_nzr")
    poll(gat, sleep=False)
    gload(gfl)
    if fine: stamp()
    LB("L_pz")
    A(f"ds_read_b32 v{vT}, v{vA_fl} offset:8")
    A(f"ds_read_b64 {vr(vZB,2)}, v{vA_zl} offset:32")
    A(f"s_sub_u32 s{sSpin}, s{sSpin}, 1")
    A("s_waitcnt lgkmcnt(0)")
    A(f"v_cmp_le_i32 vcc, 1, v{vT}")
    A("s_cbranch_vccnz L_pzk")
    A("s_cbranch_scc0 L_pz")
    A(f"s_mov_b32 s{sSpin}, 0")
    LB("L_pzk")
    den(0)
    A(f"s_cmp_eq_u32 s{sRot}, 0")
    A("s_cbranch_scc1 L_nob")
    den(1)
    A("s_nop 7")
    den2(1)
    LB("L_nob")
    A("s_nop 5")
    den2(0)
    if fine: stamp()
    stamp()
    vS_ = vT
    C("---- sum of the eight partials (own one from registers); verify the seven that were loaded")
    LB("L_gsum")
    for p in range(1, 8):
        A(f"s_waitcnt vmcnt({8 - p if p < 7 else 0})")
        if p == 1:
            if fine: stamp()
            A(f"v_pk_add_f32 {vr(vS_,2)}, {vr(vOwn,2)}, {vr(vGa+4,2)}")
            A(f"v_pk_add_f32 {vr(vS_+2,2)}, {vr(vOwn+2,2)}, {vr(vGa+6,2)}")
            A(f"v_add_u32 v{vC+2}, v{vGa+4}, v{vGa+5}")
            A(f"v_add_u32 v{vC+1}, v{vGa+6}, v{vGa+7}")
            continue
        A(f"v_pk_add_f32 {vr(vS_,2)}, {vr(vS_,2)}, {vr(vGa+4*p,2)}")
        A(f"v_pk_add_f32 {vr(vS_+2,2)}, {vr(vS_+2,2)}, {vr(vGa+4*p+2,2)}")
        A(f"v_add3_u32 v{vC+2}, v{vC+2}, v{vGa+4*p}, v{vGa+4*p+1}")
        A(f"v_add3_u32 v{vC+1}, v{vC+1}, v{vGa+4*p+2}, v{vGa+4*p+3}")
    A(f"v_add3_u32 v{vC}, v{vC}, v{vC+1}, v{vC+2}")
    A(f"v_cvt_pk_bf16_f32 v{vT+12}, v{vS_}, v{vS_+1}")
    A(f"v_cvt_pk_bf16_f32 v{vT+13}, v{vS_+2}, v{vS_+3}")
    A(f"v_add_u32_dpp v{vC}, v{vC}, v{vC} quad_perm:[1,0,3,2] row_mask:0xf bank_mask:0xf")
    A(f"ds_write_b64 v{vA_kvw}, {vr(vT+12,2)}")
    A(f"s_sub_u32 s{sSpin2}, s{sSpin2}, 1")
    A(f"v_add_u32_dpp v{vC}, v{vC}, v{vC} quad_perm:[2,3,0,1] row_mask:0xf bank_mask:0xf")
    A("s_nop 1")
    A(f"v_add_u32_dpp v{vC}, v{vC}, v{vC} row_half_mirror row_mask:0xf bank_mask:0xf")
    A(f"v_cmp_ne_u32 vcc, v{vC}, v{vNon+1}")
    A("s_cbranch_vccnz L_regather")
    LB("L_gok")
    if fine: stamp()
    A("s_waitcnt lgkmcnt(0)")
    A("s_barrier")
    stamp()
    for k in range(4):
        A(f"ds_read_b128 {vr(vKVB+4*k,4)}, v{vA_kvr+k}")
    C("the loader has ended before B3 opened, so every Q tile is in LDS")
    rdkq(1)
    vN = [vK, vX]
    C("---- numerators, division, stores (tile a, then tile b)")
    def mf(t, dd): return f"v_mfma_f32_16x16x16_bf16 {vr(vN[t]+4*dd,4)}, {vr(vPHQ[t],2)}, {vr(vKVB+2*dd,2)}, 0"
    def rnd(t, dd, r): return f"v_cvt_pk_bf16_f32 v{vN[t]+4*dd+r}, 0, v{vN[t]+4*dd+r}"
    def mul(t, dd, r0): return f"v_pk_mul_f32 {vr(vN[t]+4*dd+r0,2)}, {vr(vN[t]+4*dd+r0,2)}, {vr(vD[t]+r0,2)}"
    def emit_rows(t, r0):
        for r in (r0, r0+1):
            o = vT + 4*r
            for j in range(4):
                A(f"v_cvt_pk_bf16_f32 v{o+j}, v{vN[t]+8*j+r}, v{vN[t]+8*j+4+r}")
            A(f"buffer_store_dwordx4 {vr(o,4)}, v{vA_o}, {sr(SO,4)}, s{sBase+t} offen offset:{256*r} {st}")
    def second_half(t):
        for dd in range(8):
            A(rnd(t, dd, 2)); A(rnd(t, dd, 3))
        for dd in range(8): A(mul(t, dd, 2))
        emit_rows(t, 2)
    A("s_waitcnt lgkmcnt(7)"); A(mf(0,0)); A(mf(0,1))
    A("s_waitcnt lgkmcnt(6)"); A(mf(0,2)); A(mf(0,3))
    A("s_waitcnt lgkmcnt(5)"); A(mf(0,4)); A(mf(0,5))
    A("s_waitcnt lgkmcnt(4)")
    A(rnd(0,0,0)); A(rnd(0,0,1)); A(mf(0,6))
    A(rnd(0,1,0)); A(rnd(0,1,1)); A(mf(0,7))
    for dd in range(2, 8): A(rnd(0,dd,0)); A(rnd(0,dd,1))
    for dd in range(8): A(mul(0, dd, 0))
    emit_rows(0, 0)
    second_half(0)
    A(f"s_cmp_lg_u32 s{sRot}, 0")
    A("s_cbranch_scc1 L_j2")
    call(sPhiQ)
    A("s_nop 0")
    den(1)
    d = vD[1]
    for dd in range(4): A(mf(1,dd))
    A("s_nop 3")
    for i in range(4): A(f"v_cvt_pk_bf16_f32 v{d+i}, 0, v{d+i}")
    A(mf(1,4))
    A(f"v_pk_add_f32 {vr(d,2)}, {vr(d,2)}, {vr(vEps,2)}")
    A(f"v_pk_add_f32 {vr(d+2,2)}, {vr(d+2,2)}, {vr(vEps,2)}")
    A(f"v_cvt_pk_bf16_f32 v{d}, 0, v{d}")
    A(mf(1,5))
    for i in range(1, 4): A(f"v_cvt_pk_bf16_f32 v{d+i}, 0, v{d+i}")
    A(mf(1,6))
    A(f"v_rcp_f32 v{d}, v{d}"); A(f"v_rcp_f32 v{d+1}, v{d+1}")
    A(mf(1,7))
    A(f"v_rcp_f32 v{d+2}, v{d+2}"); A(f"v_rcp_f32 v{d+3}, v{d+3}")
    A("s_branch L_j3")
    LB("L_j2")
    A("s_waitcnt lgkmcnt(0)")
    for dd in range(8): A(mf(1,dd))
    A("s_nop 0")
    LB("L_j3")
    for dd in range(8): A(rnd(1,dd,0)); A(rnd(1,dd,1))
    for dd in range(8): A(mul(1, dd, 0))
    emit_rows(1, 0)
    second_half(1)
    LB("L_fin")
    if stamps:
        stamp()
        A("s_waitcnt vmcnt(0)")
        stamp(True)
        A("s_waitcnt lgkmcnt(0)")
        assert nst[0] <= 11, nst[0]
        for i in range(12):
            A(f"v_mov_b32 v{vK+i}, s{sSt+2*i}" if i < nst[0] else f"v_mov_b32 v{vK+i}, s{sSpin2}")
        A(f"s_mul_i32 s{sT}, s2, {NW}")
        A(f"s_add_u32 s{sT}, s{sT}, s{sWr}")
        A(f"s_mul_i32 s{sT}, s{sT}, 48")
        A(f"s_add_u32 s{sT}, s{sT}, {WS_STAMP}")
        A("s_mov_b64 exec, 1")
        for i in range(3):
            A(f"buffer_store_dwordx4 {vr(vK+4*i,4)}, off, {sr(SWS,4)}, s{sT} offset:{16*i}")
    LB("L_end")
    A("s_endpgm")

    def phi(isq):
        base = vX
        for s in range(4):
            A(f"s_waitcnt lgkmcnt({3-s})")
            b = base + 4*s
            for i in range(4):
                A(f"v_lshlrev_b32 v{vT+2*i}, 16, v{b+i}")
                A(f"v_and_b32 v{vT+2*i+1}, 0xffff0000, v{b+i}")
            for i in range(4):
                A(f"v_pk_mul_f32 {vr(vT+2*i,2)}, {vr(vT+2*i,2)}, {sr(sScale,2)}")
            for i in range(4):
                A(f"v_cvt_pk_bf16_f32 v{b+i}, v{vT+2*i}, v{vT+2*i+1}")
            if s > 0:
                x = vr(base+4*(s-1), 4); o = vr(vOM+4*(s-1), 4)
                c0 = "0" if s == 1 else vr(vG, 4); c1 = "0" if s == 1 else vr(vP, 4)
                A(f"v_mfma_f32_16x16x32_bf16 {vr(vG,4)}, {x}, {x}, {c0}")
                A(f"v_mfma_f32_16x16x32_bf16 {vr(vP,4)}, {o if isq else x}, {x if isq else o}, {c1}")
        x = vr(base+12, 4); o = vr(vOM+12, 4)
        A(f"v_mfma_f32_16x16x32_bf16 {vr(vG,4)}, {x}, {x}, {vr(vG,4)}")
        A(f"v_mfma_f32_16x16x32_bf16 {vr(vP,4)}, {o if isq else x}, {x if isq else o}, {vr(vP,4)}")
        A("s_nop 6")
        A(f"v_cndmask_b32 v{vT}, 0, v{vG}, {sr(sM[0],2)}")
        for r in range(1, 4):
            A(f"v_cndmask_b32 v{vT}, v{vT}, v{vG+r}, {sr(sM[r],2)}")
        A(f"v_cvt_pk_bf16_f32 v{vXA}, v{vT}, v{vXA+1}")
        round4(vT+4, vP)
        A("s_nop 1")
        a, b = (vr(vNH,2), vr(vXA,2)) if isq else (vr(vXA,2), vr(vNH,2))
        A(f"v_mfma_f32_16x16x16_bf16 {vr(vP,4)}, {a}, {b}, {vr(vT+4,4)}")
        A("s_nop 7")
        round4(vT+8, vP)
        A(f"v_pk_mul_f32 {vr(vT+8,2)}, {vr(vT+8,2)}, {sr(sL2E,2)}")
        A(f"v_pk_mul_f32 {vr(vT+10,2)}, {vr(vT+10,2)}, {sr(sL2E,2)}")
        for i in range(4):
            A(f"v_exp_f32 v{vT+8+i}, v{vT+8+i}")
        A("s_nop 0")
        round4(vT+12, vT+8)
        A(f"v_pk_fma_f32 {vr(vT+12,2)}, {vr(vT+12,2)}, {sr(sQuart,2)}, {vr(vEps,2)}")
        A(f"v_pk_fma_f32 {vr(vT+14,2)}, {vr(vT+14,2)}, {sr(sQuart,2)}, {vr(vEps,2)}")
        A(f"v_cvt_pk_bf16_f32 v{vR}, v{vT+12}, v{vT+13}")
        A(f"v_cvt_pk_bf16_f32 v{vR+1}, v{vT+14}, v{vT+15}")
        A(f"s_setpc_b64 {sr(sRet,2)}")
    C("---- feature map of one 16-row tile: v72..87 raw rows -> v16,17 packed phi (key and query forms)")
    LB("L_phik")
    phi(False)
    LB("L_phiq")
    phi(True)
    C("---- something had not arrived when it was read: read again")
    LB("L_regather")
    A("s_cbranch_scc1 L_gok")
    gload('sc1')
    A("s_branch L_gsum")
    LB("L_zbad")
    A(f"s_sub_u32 s{sSpin2}, s{sSpin2}, 1")
    A("s_cbranch_scc1 L_zgive")
    zload()
    A("s_waitcnt vmcnt(0)")
    A("s_branch L_zchk")
    LB("L_zgive")
    A(f"s_mov_b32 s{sSpin2}, 0")
    A("s_branch L_zok")
    LB("L_codeend")
    return HEADER.format(lds=LDS_TOTAL) + "\n".join(x for x in L if x) + FOOTER.format(vgpr=NV, sgpr=98 if stamps else 72, acc=NV)

if __name__ == '__main__':
    out = sys.argv[1]
    kw = {}
    for a in sys.argv[2:]:
        k, v = a.split('=')
        kw[k] = v if k in ('ld', 'st', 'gfl') else (tuple(map(int, v.split(','))) if k == 'rot' else int(v))
    open(out, 'w').write(gen(**kw))
```
